```python
import torch

def _softmax(x, axis=-1):
    return torch.softmax(x, dim=axis)

def _gelu(x):
    return torch.nn.functional.gelu(x, approximate='tanh')

def _silu(x):
    return torch.nn.functional.silu(x)

def _sigmoid(x):
    return torch.sigmoid(x)

def _layernorm(x, axis=-1, eps=1e-05):
    m = x.mean(dim=axis, keepdim=True)
    v = x.var(dim=axis, keepdim=True, unbiased=False)
    return (x - m) / torch.sqrt(v + eps)

def _scatter_add(tgt, idx, src, axis=0):
    return tgt.clone().index_add_(axis, idx, src)

def _segment_sum(src, seg, n):
    out = torch.zeros((n,) + src.shape[1:], dtype=src.dtype)
    return out.index_add_(0, seg, src)

def _pad(x, pw):
    flat = tuple((v for pair in reversed(pw) for v in pair))
    return torch.nn.functional.pad(x, flat)
kernel_name = 'sequential_preLN__memory_aug_recurrent_mem_tr__dense_activation_relu__prompt'

def setup_inputs():

    _w = lambda a: (lambda t: t.to(torch.bfloat16) if t.is_floating_point() else t)(torch.as_tensor(a))

    def _A_setup():
        B, S, Dm = (1, 2048, 512)
        H, Dh = (32, 128)
        M, seg = (8, 32)
        seg = min(seg, S)
        S = S // seg * seg
        return {'x': _w((lambda *s: torch.randn(*s, dtype=torch.bfloat16) * 0.05)(B, S, Dm)), 'mem0': _w((lambda *s: torch.randn(*s, dtype=torch.bfloat16) * 0.2)(B, M, Dm)), 'Wq': _w((lambda *s: torch.randn(*s, dtype=torch.bfloat16) * 1.6)(Dm, H, Dh) * Dm ** (-0.5)), 'Wk': _w((lambda *s: torch.randn(*s, dtype=torch.bfloat16) * 1.6)(Dm, H, Dh) * Dm ** (-0.5)), 'Wv': _w((lambda *s: torch.randn(*s, dtype=torch.bfloat16) * 0.2)(Dm, H, Dh) * Dm ** (-0.5)), 'Wo': _w((lambda *s: torch.randn(*s, dtype=torch.bfloat16) * 0.2)(H, Dh, Dm) * (H * Dh) ** (-0.5)), 'seg_len': seg}
    _A_in = _A_setup()

    def _B_setup():
        B, S, D, Dff = (1, 2048, 512, 1792)
        return {'x': _w((lambda *s: torch.randn(*s, dtype=torch.bfloat16) * 0.05)(B, S, D)), 'w1': _w((lambda *s: torch.randn(*s, dtype=torch.bfloat16) * 0.05)(D, Dff)), 'w2': _w((lambda *s: torch.randn(*s, dtype=torch.bfloat16) * 0.05)(Dff, D))}
    _B_in = _B_setup()
    return {'A_x': _A_in['x'], 'A_mem0': _A_in['mem0'], 'A_Wq': _A_in['Wq'], 'A_Wk': _A_in['Wk'], 'A_Wv': _A_in['Wv'], 'A_Wo': _A_in['Wo'], 'A_seg_len': _A_in['seg_len'], 'B_x': _B_in['x'], 'B_w1': _B_in['w1'], 'B_w2': _B_in['w2']}

def reference(A_x, A_mem0, A_Wq, A_Wk, A_Wv, A_Wo, A_seg_len, B_x, B_w1, B_w2):

    def _A_ref(x, mem0, Wq, Wk, Wv, Wo, seg_len):
        B, S, Dm = x.shape
        H, Dh = (Wq.shape[1], Wq.shape[2])
        M = mem0.shape[1]
        scale = Dh ** (-0.5)
        n_seg = S // seg_len
        L = M + seg_len
        idx = torch.arange(L)
        mask = (idx[:, None] < M) | (idx[:, None] >= idx[None, :])
        mem = mem0
        outs = []
        for s in range(n_seg):
            xs = x[:, s * seg_len:(s + 1) * seg_len, :].clone()
            h = torch.concatenate([mem, xs], axis=1)
            q = torch.einsum('btd,dhe->bhte', h, Wq)
            k = torch.einsum('btd,dhe->bhte', h, Wk)
            v = torch.einsum('btd,dhe->bhte', h, Wv)
            scores = torch.einsum('bhqe,bhke->bhqk', q, k) * scale
            scores = torch.where(mask[None, None], scores, -1000000000.0)
            p = _softmax(scores, axis=-1)
            o = torch.einsum('bhqk,bhke->bhqe', p, v)
            o = torch.einsum('bhte,hed->btd', o, Wo)
            mem = o[:, :M, :].clone()
            outs.append(o[:, M:, :])
        return torch.concatenate(outs, axis=1)

    def _B_ref(x, w1, w2):
        h = torch.einsum('bsd,df->bsf', x, w1)
        zero = torch.zeros_like(h)
        h = torch.maximum(h, zero)
        return torch.einsum('bsf,fd->bsd', h, w2)
    x = A_x
    h = x + _A_ref(_layernorm(x, axis=-1), A_mem0, A_Wq, A_Wk, A_Wv, A_Wo, A_seg_len)
    h2 = h + _B_ref(_layernorm(h, axis=-1), B_w1, B_w2)
    return h2
```

```python
class Asm:
    def __init__(self):
        self.lines = []
        self.uid = 0
    def __call__(self, s=""):
        for ln in s.split("\n"):
            self.lines.append(ln)
    def e(self, s):
        self.lines.append("    " + s)
    def label(self, name):
        self.lines.append(name + ":")
    def new_label(self, base):
        self.uid += 1
        return f"{base}_{self.uid}"
    def text(self):
        return "\n".join(self.lines) + "\n"

def vr(a, n=1):
    return f"v{a}" if n == 1 else f"v[{a}:{a+n-1}]"
def ar(a, n=1):
    return f"a{a}" if n == 1 else f"a[{a}:{a+n-1}]"
def sr(a, n=1):
    return f"s{a}" if n == 1 else f"s[{a}:{a+n-1}]"
```

```python
from asm import *
from layout import *

L_KS = 0x20000
L_VS = 0x22000
L_MS = 0x24000
L_QT = 0x26000
L_OX = 0x27000
SPIN_MAX = 200000

V_L16, V_IDX, V_QW, V_QR, V_KXA, V_VXA, V_WOA, V_PST, V_MST, V_DK, V_DV, V_T = range(116, 128)
S_WQ, S_WK, S_WV, S_WO, S_WS = 4, 8, 12, 16, 20
S_H, S_W, S_STEP = 24, 25, 26
S_MLO, S_MHI, S_C, S_SPIN = 40, 42, 44, 45
S_OXM, S_MSTM = 48, 50
CSCALE = 0x3e0293ee

import struct, math
CSCALE = struct.unpack("<I", struct.pack("<f", (128 ** -0.5) * math.log2(math.e)))[0]

def srd(A, s, ka, nbytes):
    A.e(f"s_load_dwordx2 s[{s}:{s+1}], s[0:1], {ka}")

def finish_srd(A, s, nbytes):
    A.e(f"s_mov_b32 s{s+2}, {hex(nbytes)}")
    A.e(f"s_mov_b32 s{s+3}, 0x00020000")

def wreg(mat, t, c):
    if mat < 2:
        return ("a", 128 * mat + 64 * t + 8 * c)
    return ("v", 128 + 64 * t + 8 * c)

def rr(kind, base, n):
    return f"{kind}[{base}:{base+n-1}]"

def stamp(A, opts, idx):
    if opts.get("stamps"):
        A.e("s_waitcnt lgkmcnt(0)")
        A.e("s_memtime s[60:61]")
        A.e("s_waitcnt lgkmcnt(0)")
        A.e(f"s_sub_u32 s62, s60, s63")
        A.e(f"s_add_u32 s{64+idx}, s{64+idx}, s62")
        A.e("s_mov_b32 s63, s60")

def gen_chain(A, opts):
    A("; ---------------- chain role: s24 = head ----------------")
    if opts.get("total"):
        A.e("s_memrealtime s[80:81]")
    for s, ka in ((S_WQ, KA_WQ), (S_WK, KA_WK), (S_WV, KA_WV), (S_WO, KA_WO), (S_WS, KA_WS)):
        srd(A, s, ka, 0)
    A.e("v_lshrrev_b32 v1, 6, v0")
    A.e("v_and_b32 v2, 63, v0                 ; lane")
    A.e("v_readfirstlane_b32 s25, v1          ; wave")
    A.e("s_waitcnt lgkmcnt(0)")
    for s, n in ((S_WQ, 0x400000), (S_WK, 0x400000), (S_WV, 0x400000), (S_WO, 0x400000), (S_WS, WS_SIZE)):
        finish_srd(A, s, n)
    A.e(f"s_mov_b32 s{S_MLO}, -1")
    A.e(f"s_mov_b32 s{S_MLO+1}, 0")
    A.e(f"s_mov_b32 s{S_MHI}, 0")
    A.e(f"s_mov_b32 s{S_MHI+1}, -1")
    A.e(f"s_mov_b32 s{S_C}, {hex(CSCALE)}")
    A.e(f"s_mov_b32 s{S_MSTM}, 0x00550055")
    A.e(f"s_mov_b32 s{S_MSTM+1}, 0x00550055")
    A.e("s_and_b32 s27, s25, 1")
    A.e("s_cmp_eq_u32 s27, 0")
    A.e(f"s_mov_b32 s28, 0xff00ff00")
    A.e(f"s_cselect_b32 s{S_OXM}, 0x00ff00ff, s28")
    A.e(f"s_mov_b32 s{S_OXM+1}, s{S_OXM}")
    A.e("v_and_b32 v3, 15, v2")
    A.e("v_lshrrev_b32 v4, 4, v2")
    A.e("v_bfe_u32 v5, v2, 2, 2")
    A.e("v_and_b32 v6, 3, v2")
    A.e(f"v_lshlrev_b32 v{V_L16}, 4, v2")
    A.e(f"v_mov_b32 v{V_IDX}, 0x44444444")
    A.e("v_mov_b32 v7, 0xeeeeeeee")
    A.e("v_and_b32 v8, 8, v2")
    A.e("v_cmp_ne_u32 vcc, 0, v8")
    A.e("s_nop 1")
    A.e(f"v_cndmask_b32 v{V_IDX}, v{V_IDX}, v7, vcc")
    A.e("v_lshrrev_b32 v7, 5, v2")
    A.e("v_lshlrev_b32 v7, 4, v7")
    A.e("v_add_u32 v7, v7, v3")
    A.e("s_lshl_b32 s27, s25, 5")
    A.e("v_add_u32 v7, s27, v7")
    A.e("v_lshlrev_b32 v7, 4, v7")
    A.e("v_and_b32 v8, 1, v4")
    A.e("v_lshlrev_b32 v8, 3, v8")
    A.e("v_add_u32 v7, v7, v8")
    A.e(f"v_add_u32 v{V_QW}, {hex(L_QT)}, v7")
    A.e("v_lshlrev_b32 v7, 3, v4")
    A.e("v_add_u32 v7, v7, v5")
    A.e("v_lshlrev_b32 v7, 4, v7")
    A.e("v_and_b32 v8, 1, v2")
    A.e("v_lshlrev_b32 v8, 3, v8")
    A.e("v_add_u32 v7, v7, v8")
    A.e(f"v_add_u32 v{V_QR}, {hex(L_QT)}, v7")
    A.e("v_xor_b32 v7, v4, v3")
    A.e("v_lshlrev_b32 v7, 4, v7")
    A.e("v_lshlrev_b32 v8, 8, v3")
    A.e("v_add_u32 v7, v7, v8")
    A.e(f"v_add_u32 v{V_KXA}, {hex(L_KS)}, v7")
    A.e("v_lshlrev_b32 v7, 2, v4")
    A.e("v_add_u32 v7, v7, v5                 ; 4g + r")
    A.e("v_and_b32 v8, 7, v7")
    A.e("s_lshl_b32 s27, s25, 1")
    A.e("v_xor_b32 v8, s27, v8")
    A.e("v_lshlrev_b32 v8, 5, v8")
    A.e("v_lshlrev_b32 v7, 8, v7")
    A.e("v_add_u32 v7, v7, v8")
    A.e("v_lshlrev_b32 v8, 3, v6")
    A.e("v_add_u32 v7, v7, v8")
    A.e(f"v_add_u32 v{V_VXA}, {hex(L_VS)}, v7")
    A.e("v_lshrrev_b32 v7, 1, v5              ; r>>1")
    A.e("v_and_b32 v8, 1, v5                  ; r&1")
    A.e("v_and_b32 v9, 1, v4                  ; gb&1")
    A.e("v_lshrrev_b32 v10, 1, v4             ; gb>>1")
    A.e("v_lshlrev_b32 v11, 5, v7")
    A.e("v_lshl_add_u32 v11, v9, 4, v11")
    A.e("v_lshl_add_u32 v11, v10, 2, v11")
    A.e("v_add_u32 v11, v11, v8               ; rowpart")
    A.e("v_lshlrev_b32 v11, 8, v11")
    A.e("v_lshl_add_u32 v12, v9, 1, v8")
    A.e("v_lshl_add_u32 v12, v7, 2, v12       ; f")
    A.e("v_lshl_add_u32 v11, v12, 5, v11")
    A.e("v_lshl_add_u32 v11, v6, 3, v11")
    A.e("s_lshl_b32 s27, s25, 15")
    A.e(f"v_add_u32 v{V_WOA}, s27, v11")
    A.e("v_lshrrev_b32 v7, 5, v2")
    A.e("v_lshlrev_b32 v7, 14, v7")
    A.e("v_lshrrev_b32 v8, 2, v3")
    A.e("v_lshl_add_u32 v7, v8, 12, v7")
    A.e("v_lshl_add_u32 v7, v9, 6, v7")
    A.e(f"v_lshl_add_u32 v{V_PST}, v6, 4, v7")
    A.e("v_lshl_add_u32 v7, v9, 1, v10        ; r'")
    A.e("v_bfe_u32 v8, v2, 2, 1")
    A.e("v_lshl_add_u32 v7, v8, 2, v7         ; i")
    A.e("v_lshlrev_b32 v7, 4, v7")
    A.e("v_lshl_add_u32 v7, v6, 1, v7")
    A.e("s_lshr_b32 s27, s25, 1")
    A.e("s_lshl_b32 s27, s27, 7")
    A.e("s_and_b32 s28, s25, 1")
    A.e("s_lshl_b32 s28, s28, 3")
    A.e("s_add_u32 s27, s27, s28")
    A.e(f"v_add_u32 v{V_MST}, s27, v7")
    A.e("v_xor_b32 v7, v3, v4")
    A.e("v_lshlrev_b32 v7, 4, v7")
    A.e("v_lshl_add_u32 v7, v4, 8, v7")
    A.e("s_lshl_b32 s27, s25, 1")
    A.e("s_and_b32 s27, s27, 3")
    A.e("s_lshl_b32 s27, s27, 6")
    A.e(f"v_xor_b32 v{V_DK}, s27, v7")
    A.e("v_lshrrev_b32 v7, 1, v3")
    A.e("v_xor_b32 v7, v7, v4")
    A.e("v_lshlrev_b32 v7, 5, v7")
    A.e("v_lshl_add_u32 v7, v4, 8, v7")
    A.e("v_and_b32 v8, 1, v2")
    A.e(f"v_lshl_add_u32 v{V_DV}, v8, 4, v7")

    A.e("v_lshrrev_b32 v7, 2, v2")
    A.e("v_lshlrev_b32 v7, 13, v7")
    A.e("v_lshl_add_u32 v20, v6, 4, v7")
    A.e("v_lshlrev_b32 v7, 4, v10             ; 16*(gb>>1)")
    A.e("v_lshrrev_b32 v8, 1, v5")
    A.e("v_lshl_add_u32 v7, v8, 3, v7         ; + 8*(r>>1)")
    A.e("v_lshl_add_u32 v7, v9, 2, v7         ; + 4*(gb&1)")
    A.e("v_and_b32 v8, 1, v5")
    A.e("v_add_u32 v7, v7, v8")
    A.e("v_lshlrev_b32 v7, 6, v7")
    A.e("v_lshl_add_u32 v7, v6, 3, v7")
    A.e("s_lshl_b32 s27, s25, 15")
    A.e("v_add_u32 v21, s27, v7")
    A.e("s_lshl_b32 s27, s25, 13")
    A.e("s_add_u32 s27, s27, 0x20000")
    A.e("v_add_u32 v22, s27, v7")
    A.e("v_lshrrev_b32 v7, 1, v3")
    A.e("v_xor_b32 v7, v7, v9")
    A.e("v_lshlrev_b32 v7, 5, v7")
    A.e("v_lshl_add_u32 v7, v4, 10, v7")
    A.e("v_and_b32 v8, 1, v2")
    A.e("v_lshl_add_u32 v23, v8, 4, v7")
    A.e("s_lshl_b32 s28, s24, 8")
    A.e("s_lshl_b32 s29, s25, 6")
    A.e("s_add_u32 s28, s28, s29              ; h*256 + w*64")
    A.e("s_lshl_b32 s29, s25, 15")
    A.e("s_lshl_b32 s30, s25, 13")
    A.e("s_add_u32 s30, s30, 0x20000")
    A.e("s_lshl_b32 s31, s24, 17")
    A.e("s_lshl_b32 s32, s25, 8")
    A.e("s_add_u32 s31, s31, s32              ; h*128*1024 + w*256")

    def issue_unit(u):
        mat, c = divmod(u, 8)
        slot = u % 10
        srdreg = (S_WQ, S_WK, S_WV)[mat]
        for uu in range(4):
            if slot < 8:
                A.e(f"s_add_u32 m0, s29, {slot*4096 + uu*1024}")
            else:
                A.e(f"s_add_u32 m0, s30, {(slot-8)*4096 + uu*1024}")
            A.e(f"s_add_u32 s33, s28, {(64*c + 16*uu) * 8192}")
            A.e(f"buffer_load_dwordx4 v20, s[{srdreg}:{srdreg+3}], s33 offen lds")
    def issue_wo(k):
        A.e(f"v_xor_b32 v24, {(k & 3) << 6}, v23")
        for uu in range(4):
            A.e(f"s_add_u32 m0, s29, {k*4096 + uu*1024}")
            A.e(f"s_add_u32 s33, s31, {(16*k + 4*uu) * 1024}")
            A.e(f"buffer_load_dwordx4 v24, s[{S_WO}:{S_WO+3}], s33 offen lds")
    issued = 0
    for u in range(10):
        issue_unit(u); issued += 1
    for u in range(24):
        mat, c = divmod(u, 8)
        slot = u % 10
        A.e(f"s_waitcnt vmcnt({(issued - (u + 1)) * 4})")
        for t in range(2):
            kind, base = wreg(mat, t, c)
            for m in range(4):
                off = 2048 * (m >> 1) + 128 * (m & 1) + 32 * t
                if slot < 8:
                    A.e(f"ds_read_b64_tr_b16 {rr(kind, base + 2*m, 2)}, v21 offset:{slot*4096 + off}")
                else:
                    A.e(f"ds_read_b64_tr_b16 {rr(kind, base + 2*m, 2)}, v22 offset:{(slot-8)*4096 + off}")
        A.e("s_waitcnt lgkmcnt(0)")
        if u + 10 < 24:
            issue_unit(u + 10); issued += 1
        elif 14 <= u <= 17:
            issue_wo(u - 10); issued += 1
        elif u >= 20:
            issue_wo(u - 20); issued += 1
    A.e("s_barrier")

    def issue_kv_dma(step_sgpr_expr_add):
        A.e(f"s_add_u32 s33, s26, {step_sgpr_expr_add}")
        A.e("s_lshl_b32 s33, s33, 5")
        A.e("s_add_u32 s33, s33, s24")
        A.e("s_lshl_b32 s33, s33, 13            ; (s*32+h)*8192")
        A.e("s_lshl_b32 s34, s25, 11            ; 2w*1024")
        A.e("s_add_u32 s33, s33, s34")
        A.e(f"s_add_u32 s35, s33, {hex(WS_KX)}")
        A.e(f"s_add_u32 m0, s34, {hex(L_KS)}")
        A.e(f"v_xor_b32 v{V_T}, 64, v{V_DK}")
        A.e(f"buffer_load_dwordx4 v{V_DK}, s[{S_WS}:{S_WS+3}], s35 offen sc1 lds")
        A.e("s_add_u32 s35, s35, 1024")
        A.e(f"s_add_u32 m0, s34, {hex(L_KS + 1024)}")
        A.e("s_nop 0")
        A.e(f"buffer_load_dwordx4 v{V_T}, s[{S_WS}:{S_WS+3}], s35 offen sc1 lds")
        A.e(f"s_add_u32 s35, s33, {hex(WS_VX)}")
        A.e(f"s_add_u32 m0, s34, {hex(L_VS)}")
        A.e(f"v_xor_b32 v{V_T}, 128, v{V_DV}")
        A.e(f"buffer_load_dwordx4 v{V_DV}, s[{S_WS}:{S_WS+3}], s35 offen sc1 lds")
        A.e("s_add_u32 s35, s35, 1024")
        A.e(f"s_add_u32 m0, s34, {hex(L_VS + 1024)}")
        A.e("s_nop 0")
        A.e(f"buffer_load_dwordx4 v{V_T}, s[{S_WS}:{S_WS+3}], s35 offen sc1 lds")

    A.e("s_mov_b32 s26, 0")
    issue_kv_dma(0)
    for r in range(32, 56):
        A.e(f"v_mov_b32 v{r}, 0")
    if opts.get("stamps"):
        for i in range(16):
            A.e(f"s_mov_b32 s{64+i}, 0")
        A.e("s_memtime s[60:61]")
        A.e("s_waitcnt lgkmcnt(0)")
        A.e("s_mov_b32 s63, s60")

    if opts.get("total"):
        A.e("s_waitcnt vmcnt(0)")
        A.e("s_memtime s[82:83]")
        A.e("s_memrealtime s[84:85]")
        A.e("s_waitcnt lgkmcnt(0)")
    A.label("L_step")
    A.e("s_and_b32 s27, s26, 1")
    A.e("s_lshl_b32 s27, s27, 13")
    A.e("s_lshl_b32 s28, s25, 11")
    A.e("s_add_u32 s27, s27, s28")
    A.e(f"s_add_u32 s27, s27, {hex(WS_MEM)}")
    A.e(f"s_mov_b32 s{S_SPIN}, 0")
    A.label("L_poll2")
    A.e(f"buffer_load_dwordx4 v[0:3], v{V_L16}, s[{S_WS}:{S_WS+3}], s27 offen sc1")
    A.e(f"buffer_load_dwordx4 v[4:7], v{V_L16}, s[{S_WS}:{S_WS+3}], s27 offen offset:1024 sc1")
    A.e(f"s_add_u32 s{S_SPIN}, s{S_SPIN}, 1")
    A.e(f"s_cmp_gt_u32 s{S_SPIN}, {SPIN_MAX}")
    A.e("s_cbranch_scc1 L_fail")
    A.e("s_waitcnt vmcnt(0)")
    A.e("v_max3_u32 v8, v0, v1, v2")
    A.e("v_max3_u32 v9, v3, v4, v5")
    A.e("v_max3_u32 v8, v8, v6, v7")
    A.e("v_max_u32 v8, v8, v9")
    A.e("v_cmp_eq_u32 vcc, -1, v8")
    A.e("s_cbranch_vccnz L_poll2")
    stamp(A, opts, 0)
    if opts.get("dump"):
        A.e("s_lshl_b32 s29, s25, 11")
        A.e(f"s_add_u32 s29, s29, {hex(WS_O + 0x100000)}")
        A.e(f"buffer_store_dwordx4 v[0:3], v{V_L16}, s[{S_WS}:{S_WS+3}], s29 offen")
        A.e(f"buffer_store_dwordx4 v[4:7], v{V_L16}, s[{S_WS}:{S_WS+3}], s29 offen offset:1024")
        A.e("s_waitcnt vmcnt(0)")
    A.e(f"v_add_u32 v109, {hex(L_MS)}, v{V_L16}")
    A.e("s_lshl_b32 s28, s25, 11")
    A.e("v_add_u32 v108, s28, v109")
    A.e("ds_write_b128 v108, v[0:3]")
    A.e("ds_write_b128 v108, v[4:7] offset:1024")
    A.e("s_waitcnt lgkmcnt(0)")
    A.e("s_barrier")
    for c in range(8):
        A.e(f"ds_read_b128 v[{4*c}:{4*c+3}], v109 offset:{1024*c}")
    A.e("s_cmp_eq_u32 s26, 0")
    A.e("s_cbranch_scc1 L_nopoison")
    A.e("s_add_u32 s27, s26, 1")
    A.e("s_and_b32 s27, s27, 1")
    A.e("s_lshl_b32 s27, s27, 19")
    A.e("s_lshl_b32 s28, s24, 14")
    A.e("s_add_u32 s27, s27, s28")
    A.e("s_lshl_b32 s28, s25, 12")
    A.e("s_add_u32 s27, s27, s28")
    A.e(f"s_add_u32 s27, s27, {hex(WS_P)}")
    for r in range(104, 108):
        A.e(f"v_mov_b32 v{r}, -1")
    for t in range(4):
        A.e(f"buffer_store_dwordx4 v[104:107], v{V_L16}, s[{S_WS}:{S_WS+3}], s27 offen offset:{1024*t}")
    A.label("L_nopoison")
    A.e("s_waitcnt lgkmcnt(0)")
    for ks in range(4):
        if ks == 0:
            ad = V_KXA
        else:
            A.e(f"v_xor_b32 v{V_T}, {ks << 6}, v{V_KXA}")
            ad = V_T
        for kt in range(2):
            A.e(f"ds_read_b128 v[{56+16*kt+4*ks}:{59+16*kt+4*ks}], v{ad} offset:{4096*kt}")
    if opts.get("dump"):
        A.e("s_cmp_lg_u32 s24, 0")
        A.e("s_cbranch_scc1 L_exit")
        A.e("s_lshl_b32 s27, s25, 16")
        A.e(f"s_add_u32 s27, s27, {hex(WS_O)}")
        for c in range(8):
            A.e(f"buffer_store_dwordx4 v[{4*c}:{4*c+3}], v{V_L16}, s[{S_WS}:{S_WS+3}], s27 offen offset:{1024*(c%4)}")
            if c == 3:
                A.e("s_add_u32 s27, s27, 4096")
        for j in range(32):
            A.e("s_add_u32 s27, s27, 4096" if j % 4 == 0 else "s_nop 0")
            A.e(f"buffer_store_dwordx4 a[{128+4*j}:{131+4*j}], v{V_L16}, s[{S_WS}:{S_WS+3}], s27 offen offset:{1024*(j%4)}")
        A.e("s_waitcnt vmcnt(0)")
        A.e("s_branch L_exit")
    stamp(A, opts, 1)
    for mat in range(3):
        for c in range(8):
            for t in range(2):
                kind, base = wreg(mat, t, c)
                acc = 32 + 8 * mat + 4 * t
                A.e(f"v_smfmac_f32_16x16x64_bf16 v[{acc}:{acc+3}], v[{4*c}:{4*c+3}], {rr(kind, base, 8)}, v{V_IDX}")
    A.e("s_nop 7")
    stamp(A, opts, 2)
    def extract(accA, accB, dst):
        for r in range(4):
            A.e(f"v_permlane32_swap_b32 v{accA+r}, v{accB+r}")
        for r in range(4):
            A.e(f"v_add_f32 v{accA+r}, v{accA+r}, v{accB+r}")
        A.e(f"v_cvt_pk_bf16_f32 v{dst}, v{accA}, v{accA+1}")
        A.e(f"v_cvt_pk_bf16_f32 v{dst+1}, v{accA+2}, v{accA+3}")
    extract(32, 36, 36)
    A.e(f"ds_write_b64 v{V_QW}, v[36:37]")
    extract(40, 44, 44)
    A.e(f"ds_write_b64 v{V_QW}, v[44:45] offset:2048")
    A.e("s_nop 3")
    extract(48, 52, 52)
    A.e("s_lshl_b32 s27, s26, 5")
    A.e("s_add_u32 s27, s27, s24")
    A.e("s_lshl_b32 s27, s27, 12")
    A.e(f"s_add_u32 s27, s27, {hex(WS_KMVM - L_QT)}")
    A.e(f"buffer_store_dwordx2 v[44:45], v{V_QW}, s[{S_WS}:{S_WS+3}], s27 offen sc1")
    A.e(f"buffer_store_dwordx2 v[52:53], v{V_QW}, s[{S_WS}:{S_WS+3}], s27 offen offset:2048 sc1")
    A.e("s_cmp_eq_u32 s26, 63")
    A.e("s_cbranch_scc1 L_done")
    A.e("s_waitcnt lgkmcnt(0)")
    A.e("s_barrier")
    stamp(A, opts, 3)
    for ks in range(4):
        for m in range(2):
            A.e(f"ds_read_b64_tr_b16 v[{88+4*ks+2*m}:{89+4*ks+2*m}], v{V_QR} offset:{512*ks + 64*m}")
    for ks in range(3):
        for m in range(2):
            A.e(f"ds_read_b64_tr_b16 v[{4*ks+2*m}:{4*ks+2*m+1}], v{V_QR} offset:{2048 + 512*ks + 64*m}")
    A.e("s_waitcnt lgkmcnt(6)")
    for m in range(2):
        A.e(f"ds_read_b64_tr_b16 v[{12+2*m}:{13+2*m}], v{V_QR} offset:{2048 + 512*3 + 64*m}")
    A.e(f"v_xor_b32 v{V_T}, 32, v{V_VXA}")
    for kt in range(2):
        A.e(f"ds_read_b64_tr_b16 v[{16+2*kt}:{17+2*kt}], v{V_VXA} offset:{4096*kt}")
    for kt in range(2):
        A.e(f"ds_read_b64_tr_b16 v[{20+2*kt}:{21+2*kt}], v{V_T} offset:{4096*kt}")
    for ks in range(4):
        for kt in range(2):
            c = "0" if ks == 0 else f"v[{104+4*kt}:{107+4*kt}]"
            A.e(f"v_mfma_f32_16x16x32_bf16 v[{104+4*kt}:{107+4*kt}], v[{56+16*kt+4*ks}:{59+16*kt+4*ks}], v[{88+4*ks}:{91+4*ks}], {c}")
    A.e("s_waitcnt lgkmcnt(4)")
    for ks in range(4):
        c = "0" if ks == 0 else "v[112:115]"
        A.e(f"v_mfma_f32_16x16x32_bf16 v[112:115], v[{4*ks}:{4*ks+3}], v[{88+4*ks}:{91+4*ks}], {c}")
    for r in range(56, 88):
        A.e(f"v_mov_b32 v{r}, 0")
    stamp(A, opts, 4)
    A.e("v_max3_f32 v32, v104, v105, v106")
    A.e("v_max3_f32 v33, v107, v108, v109")
    A.e("v_max3_f32 v32, v32, v110, v111")
    A.e("v_max3_f32 v33, v33, v112, v113")
    A.e("v_max3_f32 v32, v32, v114, v115")
    A.e("v_max_f32 v32, v32, v33")
    A.e("v_mov_b32 v33, v32")
    A.e("s_nop 1")
    A.e("v_permlane32_swap_b32 v32, v33")
    A.e("v_max_f32 v32, v32, v33")
    A.e("v_mov_b32 v33, v32")
    A.e("s_nop 1")
    A.e("v_permlane16_swap_b32 v32, v33")
    A.e("v_max_f32 v32, v32, v33")
    A.e(f"v_mul_f32 v32, s{S_C}, v32")
    for j in range(12):
        A.e(f"v_fma_f32 v{104+j}, v{104+j}, s{S_C}, -v32")
    for j in range(12):
        A.e(f"v_exp_f32 v{104+j}, v{104+j}")
    A.e("v_cvt_pk_bf16_f32 v24, v104, v105")
    A.e("v_cvt_pk_bf16_f32 v25, v106, v107")
    A.e("v_cvt_pk_bf16_f32 v26, v108, v109")
    A.e("v_cvt_pk_bf16_f32 v27, v110, v111")
    A.e("v_cvt_pk_bf16_f32 v30, v112, v113")
    A.e("v_cvt_pk_bf16_f32 v31, v114, v115")
    A.e(f"v_cndmask_b32 v28, 0, v30, s[{S_MLO}:{S_MLO+1}]")
    A.e(f"v_cndmask_b32 v29, 0, v31, s[{S_MLO}:{S_MLO+1}]")
    A.e(f"v_cndmask_b32 v30, 0, v30, s[{S_MHI}:{S_MHI+1}]")
    A.e(f"v_cndmask_b32 v31, 0, v31, s[{S_MHI}:{S_MHI+1}]")
    A.e("s_waitcnt lgkmcnt(0)")
    A.e("s_nop 0")
    A.e("v_mfma_f32_16x16x32_bf16 v[36:39], v[16:19], v[24:27], 0")
    A.e("v_mfma_f32_16x16x32_bf16 v[40:43], v[20:23], v[24:27], 0")
    A.e("v_mfma_f32_16x16x16_bf16 v[36:39], v[52:53], v[28:29], v[36:39]")
    A.e("v_mfma_f32_16x16x16_bf16 v[40:43], v[52:53], v[30:31], v[40:43]")
    A.e("v_add_f32 v112, v112, v113")
    A.e("v_add_f32 v114, v114, v115")
    A.e("v_add_f32 v104, v104, v105")
    A.e("v_add_f32 v106, v106, v107")
    A.e("v_add_f32 v112, v112, v114")
    A.e("v_add_f32 v108, v108, v109")
    A.e("v_add_f32 v110, v110, v111")
    A.e(f"v_cndmask_b32 v112, 0, v112, s[{S_MLO}:{S_MLO+1}]")
    A.e("v_add_f32 v104, v104, v106")
    A.e("v_add_f32 v108, v108, v110")
    A.e("v_add_f32 v104, v104, v112")
    A.e("v_add_f32 v104, v104, v108")
    A.e("v_mov_b32 v105, v104")
    A.e("s_nop 1")
    A.e("v_permlane32_swap_b32 v104, v105")
    A.e("v_add_f32 v104, v104, v105")
    A.e("v_mov_b32 v105, v104")
    A.e("s_nop 1")
    A.e("v_permlane16_swap_b32 v104, v105")
    A.e("v_add_f32 v104, v104, v105")
    A.e("v_rcp_f32 v104, v104")
    A.e("s_nop 0")
    for r in range(8):
        A.e(f"v_mul_f32 v{36+r}, v{36+r}, v104")
    A.e("v_cvt_pk_bf16_f32 v44, v36, v37")
    A.e("v_cvt_pk_bf16_f32 v45, v38, v39")
    A.e("v_cvt_pk_bf16_f32 v46, v40, v41")
    A.e("v_cvt_pk_bf16_f32 v47, v42, v43")
    A.e("s_lshr_b32 s27, s25, 1")
    A.e("s_lshl_b32 s27, s27, 10")
    A.e(f"s_add_u32 s27, s27, {hex(L_OX)}")
    A.e(f"v_add_u32 v{V_T}, s27, v{V_L16}")
    A.e(f"s_mov_b64 exec, s[{S_OXM}:{S_OXM+1}]")
    A.e(f"ds_write_b128 v{V_T}, v[44:47]")
    A.e("s_mov_b64 exec, -1")
    A.e("s_waitcnt lgkmcnt(0)")
    A.e("s_barrier")
    stamp(A, opts, 5)
    A.e(f"v_add_u32 v{V_T}, {hex(L_OX)}, v{V_L16}")
    A.e(f"ds_read_b128 v[48:51], v{V_T}")
    A.e(f"ds_read_b128 v[52:55], v{V_T} offset:1024")
    issue_kv_dma(1)
    slots = [0, 8, 16, 24, 32, 40, 88, 96, 104]
    ops = [(t, cc) for t in range(8) for cc in range(2)]
    def load_op(i):
        t, cc = ops[i]
        b = slots[i % len(slots)]
        if t == 0:
            ad = V_WOA
        else:
            if cc == 0:
                A.e(f"v_xor_b32 v{V_T}, {t << 5}, v{V_WOA}")
            ad = V_T
        for m in range(4):
            off = (64 * cc + 8 * (m >> 1) + 2 * (m & 1)) * 256
            A.e(f"ds_read_b64_tr_b16 v[{b+2*m}:{b+2*m+1}], v{ad} offset:{off}")
    A.e("s_waitcnt lgkmcnt(0)")
    for i in range(3):
        load_op(i)
    nxt = 3
    for i in range(16):
        inflight = nxt - (i + 1)
        A.e(f"s_waitcnt lgkmcnt({inflight * 4})")
        t, cc = ops[i]
        b = slots[i % len(slots)]
        acc = 56 + 4 * t
        A.e(f"v_smfmac_f32_16x16x64_bf16 v[{acc}:{acc+3}], v[{48+4*cc}:{51+4*cc}], v[{b}:{b+7}], v{V_IDX}")
        if nxt < 16:
            load_op(nxt); nxt += 1
    A.e("s_nop 7")
    stamp(A, opts, 6)
    A.e("s_and_b32 s27, s26, 1")
    A.e("s_lshl_b32 s27, s27, 19")
    A.e("s_lshl_b32 s28, s25, 17              ; 8w*16384")
    A.e("s_add_u32 s27, s27, s28")
    A.e("s_lshl_b32 s28, s24, 7")
    A.e("s_add_u32 s27, s27, s28")
    A.e(f"s_add_u32 s27, s27, {hex(WS_P)}")
    for u in range(4):
        a, b = 56 + 8 * u, 60 + 8 * u
        for r in range(4):
            A.e(f"v_permlane32_swap_b32 v{a+r}, v{b+r}")
        for r in range(4):
            A.e(f"v_add_f32 v{a+r}, v{a+r}, v{b+r}")
        A.e(f"buffer_store_dwordx4 v[{a}:{a+3}], v{V_PST}, s[{S_WS}:{S_WS+3}], s27 offen")
        if u < 3:
            A.e("s_add_u32 s27, s27, 0x8000")
    for r in range(32, 56):
        A.e(f"v_mov_b32 v{r}, 0")
    stamp(A, opts, 7)
    A.e("s_and_b32 s27, s26, 1")
    A.e("s_lshl_b32 s27, s27, 19")
    A.e("s_lshl_b32 s28, s24, 14")
    A.e("s_add_u32 s27, s27, s28")
    A.e("s_lshl_b32 s28, s25, 12")
    A.e("s_add_u32 s27, s27, s28")
    A.e(f"s_add_u32 s27, s27, {hex(WS_P)}")
    A.e(f"s_mov_b32 s{S_SPIN}, 0")
    A.label("L_poll1")
    for t in range(4):
        A.e(f"buffer_load_dwordx4 v[{4*t}:{4*t+3}], v{V_L16}, s[{S_WS}:{S_WS+3}], s27 offen offset:{1024*t} sc1")
    A.e(f"s_add_u32 s{S_SPIN}, s{S_SPIN}, 1")
    A.e(f"s_cmp_gt_u32 s{S_SPIN}, {SPIN_MAX}")
    A.e("s_cbranch_scc1 L_fail")
    A.e("s_waitcnt vmcnt(0)")
    A.e("v_max3_u32 v16, v0, v1, v2")
    A.e("v_max3_u32 v17, v3, v4, v5")
    A.e("v_max3_u32 v18, v6, v7, v8")
    A.e("v_max3_u32 v19, v9, v10, v11")
    A.e("v_max3_u32 v20, v12, v13, v14")
    A.e("v_max3_u32 v16, v16, v17, v15")
    A.e("v_max3_u32 v18, v18, v19, v20")
    A.e("v_max_u32 v16, v16, v18")
    A.e("v_cmp_eq_u32 vcc, -1, v16")
    A.e("s_cbranch_vccnz L_poll1")
    stamp(A, opts, 8)
    for r in range(4):
        A.e(f"v_add_f32 v{r}, v{r}, v{4+r}")
    for r in range(4):
        A.e(f"v_add_f32 v{8+r}, v{8+r}, v{12+r}")
    for r in range(4):
        A.e(f"v_add_f32 v{r}, v{r}, v{8+r}")
    A.e("s_nop 1")
    A.e("v_permlane32_swap_b32 v0, v1")
    A.e("v_permlane32_swap_b32 v2, v3")
    A.e("v_add_f32 v0, v0, v1")
    A.e("v_add_f32 v2, v2, v3")
    A.e("s_nop 1")
    A.e("v_permlane16_swap_b32 v0, v2")
    A.e("v_add_f32 v0, v0, v2")
    A.e("s_nop 1")
    A.e("v_add_f32_dpp v0, v0, v0 row_ror:8 row_mask:0xf bank_mask:0xf")
    A.e("s_nop 1")
    A.e("v_mov_b32_dpp v1, v0 quad_perm:[1,0,3,2] row_mask:0xf bank_mask:0xf")
    A.e("v_cvt_pk_bf16_f32 v2, v0, v1")
    A.e("v_mov_b32 v3, -1")
    A.e("s_add_u32 s27, s26, 1")
    A.e("s_and_b32 s27, s27, 1")
    A.e("s_lshl_b32 s27, s27, 13")
    A.e("s_lshl_b32 s28, s24, 8")
    A.e("s_add_u32 s28, s28, " + hex(WS_MEM))
    A.e("s_add_u32 s27, s27, s28              ; slot (s+1)&1")
    A.e("s_xor_b32 s29, s27, 0x2000           ; slot s&1")
    A.e(f"s_mov_b64 exec, s[{S_MSTM}:{S_MSTM+1}]")
    A.e(f"buffer_store_dword v2, v{V_MST}, s[{S_WS}:{S_WS+3}], s27 offen")
    A.e(f"buffer_store_dword v3, v{V_MST}, s[{S_WS}:{S_WS+3}], s29 offen")
    A.e("s_mov_b64 exec, -1")
    stamp(A, opts, 9)
    A.e("s_add_u32 s26, s26, 1")
    A.e("s_branch L_step")

    A.label("L_done")
    A.e("s_waitcnt vmcnt(0)")
    if opts.get("total"):
        A.e("s_memtime s[86:87]")
        A.e("s_memrealtime s[88:89]")
        A.e("s_waitcnt lgkmcnt(0)")
        A.e("s_sub_u32 s64, s84, s80")
        A.e("s_sub_u32 s65, s88, s84")
        A.e("s_sub_u32 s66, s86, s82")
    if opts.get("stamps") or opts.get("total"):
        A.e("s_cmp_lg_u32 s24, 0")
        A.e("s_cbranch_scc1 L_exit")
        A.e("s_cmp_lg_u32 s25, 0")
        A.e("s_cbranch_scc1 L_exit")
        A.e(f"s_load_dwordx2 s[36:37], s[0:1], {KA_DBG}")
        A.e("s_waitcnt lgkmcnt(0)")
        A.e("v_mov_b32 v1, 0")
        for i in range(12):
            A.e(f"v_mov_b32 v2, s{64+i}")
            A.e(f"global_store_dword v1, v2, s[36:37] offset:{128 + 4*i}")
        A.e("s_waitcnt vmcnt(0)")
    A.e("s_branch L_exit")
    A.label("L_fail")
    A.e("s_mov_b64 exec, -1")
    A.e(f"s_load_dwordx2 s[36:37], s[0:1], {KA_DBG}")
    A.e("s_waitcnt vmcnt(0) lgkmcnt(0)")
    A.e("v_mov_b32 v1, 0")
    A.e("v_mov_b32 v2, 0xdead")
    A.e("global_store_dword v1, v2, s[36:37] offset:252")
    A.e("s_waitcnt vmcnt(0)")
    A.e("s_branch L_exit")
```

```python
from asm import *
from layout import *
import struct, math

L_KS = 0x0000
L_VS = 0x2000
L_QT = 0x4000
L_KT = 0x5000
L_OX = 0x6000
L_WO = 0x8000
SPIN_MAX = 200000

(V_L16, V_IDX, V_QW, V_QR0, V_QR1, V_KXA, V_VXA, V_WOL, V_PST, V_MST, V_DK, V_DV) = range(112, 124)
V_PM0 = 124
V_PM1 = 126
V_KV4 = 104
V_PX = 108
V_T = 110
S_WQ, S_WK, S_WV, S_WO, S_WS = 4, 8, 12, 16, 20
S_H, S_W, S_STEP = 24, 25, 26
S_C = 40
S_SPIN = 45
S_OXM, S_MSTM = 48, 50
S_MEMRD, S_MEMRD4 = 52, 53
S_PST = 54
S_PLD = 55
S_PPZ = 56
S_MST, S_MPZ = 57, 58
S_KM = 59
S_KD, S_VD = 90, 91
S_KL, S_VL = 92, 93
S_TK = 94
S_PSTB = 95
CSCALE = struct.unpack("<I", struct.pack("<f", (128 ** -0.5) * math.log2(math.e)))[0]
WSRD = f"s[{S_WS}:{S_WS+3}]"

def wreg(mat, t, c):
    if mat < 2:
        return ("a", 128 * mat + 64 * t + 8 * c)
    return ("v", 128 + 64 * t + 8 * c)
def rr(kind, base, n):
    return f"{kind}[{base}:{base+n-1}]"

def isvalu(s):
    return s.startswith("v_") and not s.startswith("v_mfma") and not s.startswith("v_smfmac")

def weave(A, mfmas, fillers, nv=1, no=2):
    fillers = list(fillers)
    for m in mfmas:
        A.e(m)
        v = o = 0
        while fillers:
            f = fillers[0]
            if f.endswith(":"):
                A.label(f[:-1]); fillers.pop(0); continue
            if isvalu(f):
                if v >= nv: break
                v += 1
            else:
                if o + v >= 3: break
                o += 1
            A.e(f); fillers.pop(0)
            if v + o >= 3: break
    return fillers

def flush(A, fillers):
    for f in fillers:
        if f.endswith(":"): A.label(f[:-1])
        else: A.e(f)

def stamp(A, opts, idx):
    if opts.get("stamps"):
        A.e("s_waitcnt lgkmcnt(0)")
        A.e("s_memtime s[60:61]")
        A.e("s_waitcnt lgkmcnt(0)")
        A.e(f"s_sub_u32 s62, s60, s63")
        A.e(f"s_add_u32 s{64+idx}, s{64+idx}, s62")
        A.e("s_mov_b32 s63, s60")

def gen_setup(A, opts):
    for s, ka in ((S_WQ, KA_WQ), (S_WK, KA_WK), (S_WV, KA_WV), (S_WO, KA_WO), (S_WS, KA_WS)):
        A.e(f"s_load_dwordx2 s[{s}:{s+1}], s[0:1], {ka}")
    A.e("v_lshrrev_b32 v1, 6, v0")
    A.e("v_and_b32 v2, 63, v0                 ; lane")
    A.e("v_readfirstlane_b32 s25, v1          ; wave")
    A.e("s_waitcnt lgkmcnt(0)")
    for s, n in ((S_WQ, 0x400000), (S_WK, 0x400000), (S_WV, 0x400000), (S_WO, 0x400000), (S_WS, WS_SIZE)):
        A.e(f"s_mov_b32 s{s+2}, {hex(n)}")
        A.e(f"s_mov_b32 s{s+3}, 0x00020000")
    A.e(f"s_mov_b32 s{S_C}, {hex(CSCALE)}")
    A.e(f"s_mov_b32 s{S_C+1}, {hex(CSCALE)}")
    A.e(f"s_mov_b32 s{S_MSTM}, 0x00550055")
    A.e(f"s_mov_b32 s{S_MSTM+1}, 0x00550055")
    A.e("s_and_b32 s27, s25, 1")
    A.e("s_cmp_eq_u32 s27, 0")
    A.e(f"s_mov_b32 s28, 0xcccccccc")
    A.e(f"s_cselect_b32 s{S_OXM}, 0x33333333, s28")
    A.e(f"s_mov_b32 s{S_OXM+1}, s{S_OXM}")
    A.e("v_and_b32 v3, 15, v2")
    A.e("v_lshrrev_b32 v4, 4, v2")
    A.e("v_bfe_u32 v5, v2, 2, 2")
    A.e("v_and_b32 v6, 3, v2")
    A.e("v_and_b32 v9, 1, v4")
    A.e("v_lshrrev_b32 v10, 1, v4")
    A.e(f"v_lshlrev_b32 v{V_L16}, 4, v2")
    A.e(f"v_mov_b32 v{V_IDX}, 0x44444444")
    A.e("v_mov_b32 v7, 0xeeeeeeee")
    A.e("v_and_b32 v8, 2, v2")
    A.e("v_cmp_ne_u32 vcc, 0, v8")
    A.e("s_nop 1")
    A.e(f"v_cndmask_b32 v{V_IDX}, v{V_IDX}, v7, vcc")
    A.e("s_lshl_b32 s27, s25, 5")
    A.e("v_add_u32 v7, s27, v3")
    A.e("v_lshlrev_b32 v7, 5, v7")
    A.e("v_lshrrev_b32 v8, 1, v7")
    A.e("v_and_b32 v8, 128, v8")
    A.e("v_xor_b32 v7, v7, v8")
    A.e("v_lshl_add_u32 v7, v4, 3, v7")
    A.e(f"v_add_u32 v{V_QW}, {hex(L_QT)}, v7")
    A.e("v_lshlrev_b32 v7, 3, v4")
    A.e("v_add_u32 v7, v7, v5")
    A.e("v_lshlrev_b32 v7, 5, v7")
    A.e("v_lshrrev_b32 v8, 1, v7")
    A.e("v_and_b32 v8, 128, v8")
    A.e("v_xor_b32 v7, v7, v8")
    A.e("v_lshl_add_u32 v7, v6, 3, v7")
    A.e(f"v_add_u32 v{V_QR0}, {hex(L_QT)}, v7")
    A.e(f"v_xor_b32 v{V_QR1}, 128, v{V_QR0}")
    A.e("v_xor_b32 v7, v4, v3")
    A.e("v_lshlrev_b32 v7, 4, v7")
    A.e("v_lshl_add_u32 v7, v3, 8, v7")
    A.e(f"v_add_u32 v{V_KXA}, {hex(L_KS)}, v7")
    A.e("v_lshlrev_b32 v7, 2, v4")
    A.e("v_add_u32 v7, v7, v5")
    A.e("v_and_b32 v8, 7, v7")
    A.e("s_lshl_b32 s27, s25, 1")
    A.e("v_xor_b32 v8, s27, v8")
    A.e("v_lshlrev_b32 v8, 5, v8")
    A.e("v_lshl_add_u32 v7, v7, 8, v8")
    A.e("v_lshl_add_u32 v7, v6, 3, v7")
    A.e(f"v_add_u32 v{V_VXA}, {hex(L_VS)}, v7")
    A.e("s_lshl_b32 s27, s25, 15")
    A.e(f"s_add_u32 s27, s27, {hex(L_WO)}")
    A.e(f"v_add_u32 v{V_WOL}, s27, v{V_L16}")
    A.e("v_lshrrev_b32 v7, 3, v3")
    A.e("v_lshlrev_b32 v7, 14, v7")
    A.e("v_lshl_add_u32 v7, v4, 12, v7")
    A.e("v_and_b32 v8, 7, v3")
    A.e(f"v_lshl_add_u32 v{V_PST}, v8, 4, v7")
    A.e("v_lshl_add_u32 v7, v9, 1, v10")
    A.e("s_lshl_b32 s27, s25, 2")
    A.e("v_add_u32 v7, s27, v7")
    A.e("v_lshlrev_b32 v7, 4, v7")
    A.e("v_bfe_u32 v8, v2, 1, 2")
    A.e(f"v_lshl_add_u32 v{V_MST}, v8, 2, v7")
    A.e("v_xor_b32 v7, v3, v4")
    A.e("v_lshlrev_b32 v7, 4, v7")
    A.e("v_lshl_add_u32 v7, v4, 8, v7")
    A.e("s_lshl_b32 s27, s25, 1")
    A.e("s_and_b32 s27, s27, 3")
    A.e("s_lshl_b32 s27, s27, 6")
    A.e(f"v_xor_b32 v{V_DK}, s27, v7")
    A.e("v_lshrrev_b32 v7, 1, v3")
    A.e("v_xor_b32 v7, v7, v4")
    A.e("v_lshlrev_b32 v7, 5, v7")
    A.e("v_lshl_add_u32 v7, v4, 8, v7")
    A.e("v_and_b32 v8, 1, v2")
    A.e(f"v_lshl_add_u32 v{V_DV}, v8, 4, v7")
    A.e(f"v_mov_b32 v{V_PM0+1}, 0")
    A.e(f"v_mov_b32 v{V_PM1}, 0")

def gen_weights(A, opts):
    A.e("v_lshrrev_b32 v7, 2, v2")
    A.e("v_lshlrev_b32 v7, 13, v7")
    A.e("v_lshl_add_u32 v20, v6, 4, v7")
    A.e("v_lshrrev_b32 v8, 1, v5              ; r>>1")
    A.e("v_lshlrev_b32 v7, 4, v8")
    A.e("v_lshl_add_u32 v7, v4, 2, v7         ; + 4*gb")
    A.e("v_and_b32 v11, 1, v5                 ; r&1")
    A.e("v_add_u32 v7, v7, v11")
    A.e("v_lshlrev_b32 v7, 6, v7")
    A.e("v_lshl_add_u32 v7, v6, 3, v7")
    A.e("s_lshl_b32 s29, s25, 15")
    A.e(f"s_add_u32 s29, s29, {hex(L_WO)}")
    A.e("v_add_u32 v21, s29, v7")
    A.e("s_lshl_b32 s30, s25, 13")
    A.e("v_add_u32 v22, s30, v7")
    A.e("v_lshrrev_b32 v7, 1, v3")
    A.e("v_xor_b32 v7, v7, v9")
    A.e("v_lshlrev_b32 v7, 5, v7")
    A.e("v_lshl_add_u32 v7, v4, 10, v7")
    A.e("v_and_b32 v12, 1, v2")
    A.e("v_lshl_add_u32 v23, v12, 4, v7")
    A.e("v_lshlrev_b32 v7, 5, v8")
    A.e("v_lshl_add_u32 v7, v9, 4, v7")
    A.e("v_lshl_add_u32 v7, v10, 2, v7")
    A.e("v_add_u32 v7, v7, v11")
    A.e("v_lshlrev_b32 v7, 8, v7")
    A.e("v_lshl_add_u32 v12, v9, 1, v11")
    A.e("v_lshl_add_u32 v12, v8, 2, v12")
    A.e("v_lshl_add_u32 v7, v12, 5, v7")
    A.e("v_lshl_add_u32 v7, v6, 3, v7")
    A.e("v_add_u32 v25, s29, v7")
    A.e("s_lshl_b32 s28, s24, 8")
    A.e("s_lshl_b32 s33, s25, 6")
    A.e("s_add_u32 s28, s28, s33              ; h*256 + w*64")
    A.e("s_lshl_b32 s31, s24, 17")
    A.e("s_lshl_b32 s32, s25, 8")
    A.e("s_add_u32 s31, s31, s32              ; h*128*1024 + w*256")
    def issue_unit(u):
        mat, c = divmod(u, 8)
        slot = u % 10
        srdreg = (S_WQ, S_WK, S_WV)[mat]
        for uu in range(4):
            if slot < 8:
                A.e(f"s_add_u32 m0, s29, {slot*4096 + uu*1024}")
            else:
                A.e(f"s_add_u32 m0, s30, {(slot-8)*4096 + uu*1024}")
            A.e(f"s_add_u32 s33, s28, {(64*c + 16*uu) * 8192}")
            A.e(f"buffer_load_dwordx4 v20, s[{srdreg}:{srdreg+3}], s33 offen lds")
    def issue_wo(k):
        A.e(f"v_xor_b32 v24, {(k & 3) << 6}, v23")
        for uu in range(4):
            A.e(f"s_add_u32 m0, s29, {k*4096 + uu*1024}")
            A.e(f"s_add_u32 s33, s31, {(16*k + 4*uu) * 1024}")
            A.e(f"buffer_load_dwordx4 v24, s[{S_WO}:{S_WO+3}], s33 offen lds")
    issued = 0
    for u in range(10):
        issue_unit(u); issued += 1
    for u in range(24):
        mat, c = divmod(u, 8)
        slot = u % 10
        A.e(f"s_waitcnt vmcnt({(issued - (u + 1)) * 4})")
        for t in range(2):
            kind, base = wreg(mat, t, c)
            for m in range(4):
                off = 2048 * (m >> 1) + 128 * (m & 1) + 32 * t
                if slot < 8:
                    A.e(f"ds_read_b64_tr_b16 {rr(kind, base + 2*m, 2)}, v21 offset:{slot*4096 + off}")
                else:
                    A.e(f"ds_read_b64_tr_b16 {rr(kind, base + 2*m, 2)}, v22 offset:{(slot-8)*4096 + off}")
        A.e("s_waitcnt lgkmcnt(0)")
        if u + 10 < 24:
            issue_unit(u + 10); issued += 1
        elif 14 <= u <= 17:
            issue_wo(u - 10); issued += 1
        elif u >= 20:
            issue_wo(u - 20); issued += 1
    A.e("s_waitcnt vmcnt(0)")
    for cc in range(2):
        for t in range(8):
            if t == 0:
                ad = 25
            else:
                A.e(f"v_xor_b32 v26, {t << 5}, v25")
                ad = 26
            for m in range(4):
                off = (64 * cc + 8 * (m >> 1) + 2 * (m & 1)) * 256
                A.e(f"ds_read_b64_tr_b16 v[{32+8*t+2*m}:{33+8*t+2*m}], v{ad} offset:{off}")
            if t % 2 == 1:
                A.e("s_waitcnt lgkmcnt(0)")
        for t in range(8):
            for half in range(2):
                A.e(f"ds_write_b128 v{V_WOL}, v[{32+8*t+4*half}:{35+8*t+4*half}] offset:{cc*16384 + t*2048 + half*1024}")
            if t % 4 == 3:
                A.e("s_waitcnt lgkmcnt(0)")
    A.e("s_barrier")

def k_dma(T):
    return [f"s_mov_b32 m0, s{S_KL}",
            f"v_xor_b32 v{T}, 64, v{V_DK}",
            f"buffer_load_dwordx4 v{V_DK}, {WSRD}, s{S_KD} offen sc1 lds",
            f"s_add_u32 m0, s{S_KL}, 1024",
            f"s_add_u32 s{S_KD}, s{S_KD}, 1024",
            f"buffer_load_dwordx4 v{T}, {WSRD}, s{S_KD} offen sc1 lds"]
def v_dma(T):
    return [f"s_mov_b32 m0, s{S_VL}",
            f"v_xor_b32 v{T}, 128, v{V_DV}",
            f"buffer_load_dwordx4 v{V_DV}, {WSRD}, s{S_VD} offen sc1 lds",
            f"s_add_u32 m0, s{S_VL}, 1024",
            f"s_add_u32 s{S_VD}, s{S_VD}, 1024",
            f"buffer_load_dwordx4 v{T}, {WSRD}, s{S_VD} offen sc1 lds"]
def kv_soffsets(add):
    return [f"s_add_u32 s33, s26, {add}",
            "s_lshl_b32 s33, s33, 5",
            "s_add_u32 s33, s33, s24",
            "s_lshl_b32 s33, s33, 13",
            "s_lshl_b32 s34, s25, 11",
            "s_add_u32 s33, s33, s34",
            f"s_add_u32 s{S_KD}, s33, {hex(WS_KX)}",
            f"s_add_u32 s{S_VD}, s33, {hex(WS_VX)}"]

def mem_loads(c0):
    out = []
    for c in range(c0, 8):
        s = S_MEMRD if c < 4 else S_MEMRD4
        out.append(f"buffer_load_dwordx4 v[{4*c}:{4*c+3}], v{V_L16}, {WSRD}, s{s} offen offset:{1024*(c%4)} sc1")
    return out
def mem_check(c, T):
    return [f"v_max3_u32 v{T}, v{4*c}, v{4*c+1}, v{4*c+2}",
            f"v_max_u32 v{T}, v{T}, v{4*c+3}",
            f"v_cmp_eq_u32 vcc, -1, v{T}"]

def gen_chain(A, opts):
    A("; ---------------- chain role: s24 = head ----------------")
    if opts.get("total"):
        A.e("s_memrealtime s[80:81]")
    gen_setup(A, opts)
    gen_weights(A, opts)
    A.e("s_lshl_b32 s27, s25, 11")
    A.e(f"s_add_u32 s{S_KL}, s27, {hex(L_KS)}")
    A.e(f"s_add_u32 s{S_VL}, s27, {hex(L_VS)}")
    A.e("s_mov_b32 s26, 0")
    flush(A, kv_soffsets(0))
    flush(A, k_dma(V_T))
    flush(A, v_dma(V_T))
    for r in range(32, 56):
        A.e(f"v_mov_b32 v{r}, 0")
    A.e(f"s_mov_b32 s{S_MEMRD}, {hex(WS_MEM)}")
    A.e(f"s_mov_b32 s{S_MEMRD4}, {hex(WS_MEM + 4096)}")
    flush(A, ["s_lshl_b32 s29, s24, 14",
              "s_lshl_b32 s30, s25, 12",
              "s_add_u32 s29, s29, s30",
              f"s_add_u32 s{S_PLD}, s29, {hex(WS_P)}",
              f"s_xor_b32 s{S_PPZ}, s{S_PLD}, 0x80000",
              "s_lshl_b32 s29, s25, 17",
              "s_lshl_b32 s30, s24, 7",
              "s_add_u32 s29, s29, s30",
              f"s_add_u32 s{S_PSTB}, s29, {hex(WS_P)}",
              "s_lshl_b32 s29, s24, 8",
              f"s_add_u32 s{S_MPZ}, s29, {hex(WS_MEM)}",
              f"s_xor_b32 s{S_MST}, s{S_MPZ}, 0x2000",
              "s_lshl_b32 s27, s24, 12",
              "s_lshl_b32 s28, s25, 10",
              "s_add_u32 s27, s27, s28",
              f"s_add_u32 s{S_KM}, s27, {hex(WS_KMVM)}"])
    if opts.get("stamps"):
        for i in range(16):
            A.e(f"s_mov_b32 s{64+i}, 0")
        A.e("s_memtime s[60:61]")
        A.e("s_waitcnt lgkmcnt(0)")
        A.e("s_mov_b32 s63, s60")
    if opts.get("total"):
        A.e("s_waitcnt vmcnt(0)")
        A.e("s_memtime s[82:83]")
        A.e("s_memrealtime s[84:85]")
        A.e("s_waitcnt lgkmcnt(0)")
    A.e("s_waitcnt vmcnt(0)")

    A.label("L_step")
    flush(A, mem_loads(0))
    T = 108
    A.e("s_waitcnt vmcnt(7)")
    flush(A, mem_check(0, T))
    A.e("s_cbranch_vccnz L_retry_0")
    A.label("L_ok_0")
    stamp(A, opts, 0)
    kx_reads = []
    for ks in range(4):
        if ks == 0:
            ad = V_KXA
        else:
            kx_reads.append(f"v_xor_b32 v109, {ks << 6}, v{V_KXA}")
            ad = 109
        for kt in range(2):
            kx_reads.append(f"ds_read_b128 v[{56+16*kt+4*ks}:{59+16*kt+4*ks}], v{ad} offset:{4096*kt}")
    prep = [f"s_mov_b32 s{S_SPIN}, 0",
            f"s_mov_b32 s{S_PST}, s{S_PSTB}",
            f"s_add_u32 s{S_KD}, s{S_KD}, {hex(0x40000 - 1024)}",
            f"s_add_u32 s{S_VD}, s{S_VD}, {hex(0x40000 - 1024)}"]
    extra = ["s_barrier"] + kx_reads + prep
    for c in range(8):
        mf = []
        for mat in range(2):
            for t in range(2):
                kind, base = wreg(mat, t, c)
                acc = 32 + 8 * mat + 4 * t
                mf.append(f"v_smfmac_f32_16x16x64_bf16 v[{acc}:{acc+3}], v[{4*c}:{4*c+3}], {rr(kind, base, 8)}, v{V_IDX}")
        if c < 7:
            ck = mem_check(c + 1, T)
            A.e(mf[0]); A.e(f"s_waitcnt vmcnt({6-c})"); A.e(ck[0])
            ex = extra.pop(0) if extra and not isvalu(extra[0]) else None
            if ex: A.e(ex)
            A.e(mf[1]); A.e(ck[1])
            for _ in range(2):
                if extra and not isvalu(extra[0]): A.e(extra.pop(0))
            A.e(mf[2]); A.e(ck[2])
            for _ in range(2):
                if extra and not isvalu(extra[0]): A.e(extra.pop(0))
            A.e(mf[3])
            if extra and isvalu(extra[0]): A.e(extra.pop(0))
            A.e(f"s_cbranch_vccnz L_retry_{c+1}")
            A.label(f"L_ok_{c+1}")
        else:
            extra = weave(A, mf, extra)
    stamp(A, opts, 1)
    def vm(c, t):
        kind, base = wreg(2, t, c)
        acc = 48 + 4 * t
        return f"v_smfmac_f32_16x16x64_bf16 v[{acc}:{acc+3}], v[{4*c}:{4*c+3}], {rr(kind, base, 8)}, v{V_IDX}"
    vms = [vm(c, t) for c in range(8) for t in range(2)]
    A.e(vms[0]);
    if extra: A.e(extra.pop(0))
    if extra: A.e(extra.pop(0))
    A.e(vms[1])
    if extra: A.e(extra.pop(0))
    if extra: A.e(extra.pop(0))
    flush(A, extra); extra = []
    A.e("s_nop 0")
    A.e("v_pk_add_f32 v[32:33], v[32:33], v[34:35]")
    A.e("v_pk_add_f32 v[36:37], v[36:37], v[38:39]")
    A.e("v_pk_add_f32 v[40:41], v[40:41], v[42:43]")
    A.e("v_pk_add_f32 v[44:45], v[44:45], v[46:47]")
    A.e("v_cvt_pk_bf16_f32 v108, v32, v33")
    A.e("v_cvt_pk_bf16_f32 v109, v36, v37")
    A.e(f"v_cvt_pk_bf16_f32 v{V_KV4}, v40, v41")
    A.e(f"v_cvt_pk_bf16_f32 v{V_KV4+1}, v44, v45")
    A.e(f"ds_write2_b32 v{V_QW}, v108, v108 offset0:0 offset1:1")
    A.e(f"ds_write2_b32 v{V_QW}, v109, v109 offset0:128 offset1:129")
    A.e(f"ds_write2st64_b32 v{V_QW}, v{V_KV4}, v{V_KV4+1} offset0:16 offset1:18")
    A.e("s_cmp_eq_u32 s26, 63")
    A.e("s_cbranch_scc1 L_last")
    pz = [f"v_mov_b32 v{r}, -1" for r in range(88, 92)] + \
         [f"buffer_store_dwordx4 v[88:91], v{V_L16}, {WSRD}, s{S_PPZ} offen offset:{1024*t}" for t in range(4)]
    pz = weave(A, vms[2:6], pz)
    flush(A, pz)
    A.e("s_waitcnt lgkmcnt(0)")
    A.e("s_barrier")
    stamp(A, opts, 2)
    rd = []
    for ks in range(4):
        rd.append(f"ds_read_b64_tr_b16 v[{88+4*ks}:{89+4*ks}], v{V_QR0} offset:{1024*ks}")
        rd.append(f"ds_read_b64_tr_b16 v[{90+4*ks}:{91+4*ks}], v{V_QR1} offset:{1024*ks}")
    rk = []
    for ks in range(4):
        rk.append(f"ds_read_b64_tr_b16 v[{4*ks}:{4*ks+1}], v{V_QR0} offset:{4096 + 1024*ks}")
        rk.append(f"ds_read_b64_tr_b16 v[{4*ks+2}:{4*ks+3}], v{V_QR1} offset:{4096 + 1024*ks}")
    flush(A, rd[:4])
    A.e(vms[6]); flush(A, rd[4:7])
    A.e(vms[7]); flush(A, rd[7:8])
    flush(A, rk[:2])
    A.e(vms[8]); flush(A, rk[2:5])
    A.e(vms[9]); flush(A, rk[5:7])
    A.e("s_waitcnt lgkmcnt(7)")
    A.e(vms[10]); flush(A, rk[7:8])
    A.e(vms[11])
    sc = []
    for ks in range(4):
        for kt in range(2):
            c = "0" if ks == 0 else f"v[{32+4*kt}:{35+4*kt}]"
            sc.append(f"v_mfma_f32_16x16x32_bf16 v[{32+4*kt}:{35+4*kt}], v[{56+16*kt+4*ks}:{59+16*kt+4*ks}], v[{88+4*ks}:{91+4*ks}], {c}")
    fl = k_dma(110)
    fl = weave(A, vms[12:16] + sc[:4], fl)
    fl = weave(A, sc[4:8], fl)
    flush(A, fl)
    A.e("s_waitcnt lgkmcnt(0)")
    ms = []
    for ks in range(4):
        c = "0" if ks == 0 else "v[40:43]"
        ms.append(f"v_mfma_f32_16x16x32_bf16 v[40:43], v[{4*ks}:{4*ks+3}], v[{88+4*ks}:{91+4*ks}], {c}")
    vx = [f"ds_read_b64_tr_b16 v[56:57], v{V_VXA}",
          f"ds_read_b64_tr_b16 v[58:59], v{V_VXA} offset:4096",
          f"v_xor_b32 v110, 32, v{V_VXA}",
          f"ds_read_b64_tr_b16 v[60:61], v110",
          f"ds_read_b64_tr_b16 v[62:63], v110 offset:4096"]
    fl = weave(A, ms, vx)
    flush(A, fl)
    A.e("v_pk_add_f32 v[48:49], v[48:49], v[50:51]")
    A.e("v_pk_add_f32 v[52:53], v[52:53], v[54:55]")
    A.e(f"v_cvt_pk_bf16_f32 v{V_KV4+2}, v48, v49")
    A.e(f"v_cvt_pk_bf16_f32 v{V_KV4+3}, v52, v53")
    A.e(f"buffer_store_dwordx4 v[{V_KV4}:{V_KV4+3}], v{V_L16}, {WSRD}, s{S_KM} offen sc1")
    stamp(A, opts, 3)
    A.e("v_max3_f32 v52, v32, v33, v34")
    A.e("v_max3_f32 v53, v35, v36, v37")
    A.e("v_max3_f32 v52, v52, v38, v39")
    A.e("v_max3_f32 v53, v53, v40, v41")
    A.e("v_max_f32 v54, v52, v53")
    A.e("v_max_f32 v55, v52, v53")
    A.e("v_mov_b32 v48, 0")
    A.e("v_mov_b32 v49, 0")
    A.e("v_permlane32_swap_b32 v54, v55")
    A.e("v_max_f32 v52, v54, v55")
    A.e("v_max_f32 v53, v54, v55")
    A.e("v_mfma_f32_32x32x8_bf16 v[64:79], v[48:49], v[48:49], 0")
    A.e("s_nop 0")
    A.e("v_permlane16_swap_b32 v52, v53")
    A.e("v_max_f32 v52, v52, v53")
    A.e(f"v_mul_f32 v52, s{S_C}, v52")
    for j in range(5):
        A.e(f"v_pk_fma_f32 v[{32+2*j}:{33+2*j}], v[{32+2*j}:{33+2*j}], s[{S_C}:{S_C+1}], v[52:53] op_sel_hi:[1,1,0] neg_lo:[0,0,1] neg_hi:[0,0,1]")
    A.e("v_mfma_f32_32x32x8_bf16 v[80:95], v[48:49], v[48:49], 0")
    for j in range(10):
        A.e(f"v_exp_f32 v{32+j}, v{32+j}")
    A.e(f"v_cvt_pk_bf16_f32 v{V_PX}, v32, v33")
    A.e(f"v_cvt_pk_bf16_f32 v{V_PX+1}, v34, v35")
    A.e(f"v_cvt_pk_bf16_f32 v{V_PX+2}, v36, v37")
    A.e(f"v_cvt_pk_bf16_f32 v{V_PX+3}, v38, v39")
    A.e(f"v_cvt_pk_bf16_f32 v{V_PM0}, v40, v41")
    A.e(f"v_cvt_pk_bf16_f32 v{V_PM1+1}, v40, v41")
    A.e("s_waitcnt lgkmcnt(0)")
    A.e("s_nop 0")
    stamp(A, opts, 4)
    ops = []
    for u in range(4):
        for cc in range(2):
            for tt in range(2):
                ops.append((2 * u + tt, cc))
    slots = [0, 8, 16, 24, 44, 32, 96]
    def wo_load(i):
        t, cc = ops[i]
        b = slots[i % len(slots)]
        return [f"ds_read_b128 v[{b}:{b+3}], v{V_WOL} offset:{cc*16384 + t*2048}",
                f"ds_read_b128 v[{b+4}:{b+7}], v{V_WOL} offset:{cc*16384 + t*2048 + 1024}"]
    pv = [f"v_mfma_f32_16x16x32_bf16 v[96:99], v[56:59], v[{V_PX}:{V_PX+3}], 0",
          f"v_mfma_f32_16x16x32_bf16 v[100:103], v[60:63], v[{V_PX}:{V_PX+3}], 0",
          f"v_mfma_f32_16x16x16_bf16 v[96:99], v[{V_KV4+2}:{V_KV4+3}], v[{V_PM0}:{V_PM0+1}], v[96:99]",
          f"v_mfma_f32_16x16x16_bf16 v[100:103], v[{V_KV4+2}:{V_KV4+3}], v[{V_PM1}:{V_PM1+1}], v[100:103]"]
    lsum = ["v_pk_add_f32 v[52:53], v[32:33], v[34:35]",
            "v_pk_add_f32 v[54:55], v[36:37], v[38:39]",
            "v_pk_add_f32 v[52:53], v[52:53], v[40:41]",
            "v_pk_add_f32 v[52:53], v[52:53], v[54:55]"]
    pre = []
    for i in range(5):
        pre += wo_load(i)
    for k_, m in enumerate(pv):
        A.e(m); A.e(lsum[k_])
        A.e(pre.pop(0)); A.e(pre.pop(0))
    A.e("v_add_f32 v54, v52, v53")
    A.e("v_add_f32 v55, v52, v53")
    A.e(pre.pop(0)); A.e(pre.pop(0))
    A.e("v_permlane32_swap_b32 v54, v55")
    A.e("v_add_f32 v52, v54, v55")
    A.e("v_add_f32 v53, v54, v55")
    A.e("s_lshr_b32 s27, s25, 1")
    A.e("s_lshl_b32 s27, s27, 10")
    A.e("v_permlane16_swap_b32 v52, v53")
    A.e("v_add_f32 v52, v52, v53")
    A.e("v_rcp_f32 v52, v52")
    A.e(f"v_add_u32 v54, s27, v{V_L16}")
    for j in range(4):
        A.e(f"v_pk_mul_f32 v[{96+2*j}:{97+2*j}], v[{96+2*j}:{97+2*j}], v[52:53] op_sel_hi:[1,0]")
    for j in range(4):
        A.e(f"v_cvt_pk_bf16_f32 v{V_PX+j}, v{96+2*j}, v{97+2*j}")
    A.e(f"s_mov_b64 exec, s[{S_OXM}:{S_OXM+1}]")
    A.e(f"ds_write_b128 v54, v[{V_PX}:{V_PX+3}] offset:{L_OX}")
    A.e("s_mov_b64 exec, -1")
    flush(A, wo_load(5))
    A.e("s_waitcnt lgkmcnt(2)")
    A.e("s_barrier")
    stamp(A, opts, 5)
    A.e(f"ds_read_b128 v[56:59], v{V_L16} offset:{L_OX}")
    A.e(f"ds_read_b128 v[60:63], v{V_L16} offset:{L_OX + 1024}")
    flush(A, wo_load(6))
    vd = v_dma(110)
    flush(A, vd[:3])
    A.e("s_waitcnt lgkmcnt(2)")
    fill = []
    wo_m = []
    for i in range(16):
        t, cc = ops[i]
        b = slots[i % len(slots)]
        acc = 64 + 4 * t
        wo_m.append(f"v_smfmac_f32_16x16x64_bf16 v[{acc}:{acc+3}], v[{56+4*cc}:{59+4*cc}], v[{b}:{b+7}], v{V_IDX}")
    nxt = 7
    rest = vd[3:]
    def pair_out(u):
        a, b = 64 + 8 * u, 68 + 8 * u
        o = [f"v_pk_add_f32 v[{a}:{a+1}], v[{a}:{a+1}], v[{a+2}:{a+3}]",
             f"v_pk_add_f32 v[{a+2}:{a+3}], v[{b}:{b+1}], v[{b+2}:{b+3}]",
             f"buffer_store_dwordx4 v[{a}:{a+3}], v{V_PST}, {WSRD}, s{S_PST} offen"]
        if u < 3: o.append(f"s_add_u32 s{S_PST}, s{S_PST}, 0x8000")
        return o
    outq = []
    issued_reads = 14
    for i in range(16):
        after = issued_reads - 2 * (i + 1)
        if i >= 5:
            A.e(f"s_waitcnt lgkmcnt({after})")
        A.e(wo_m[i])
        if nxt < 16:
            flush(A, wo_load(nxt)); nxt += 1; issued_reads += 2
        if i >= 6 and (i - 6) % 4 == 0 and (i - 6) // 4 < 3:
            outq += pair_out((i - 6) // 4)
        v = False; n = 0
        while outq and n < 2:
            if isvalu(outq[0]):
                if v: break
                v = True
            A.e(outq.pop(0)); n += 1
        if nxt >= 16 and rest and not v:
            A.e(rest.pop(0))
    flush(A, outq)
    flush(A, rest)
    for r in range(32, 40):
        A.e(f"v_mov_b32 v{r}, 0")
    flush(A, pair_out(3))
    stamp(A, opts, 6)
    A.label("L_poll1")
    for t in range(4):
        A.e(f"buffer_load_dwordx4 v[{4*t}:{4*t+3}], v{V_L16}, {WSRD}, s{S_PLD} offen offset:{1024*t} sc1")
    for r in range(40, 56):
        A.e(f"v_mov_b32 v{r}, 0")
    A.e("s_waitcnt vmcnt(0)")
    stamp(A, opts, 7)
    A.e("v_pk_add_f32 v[16:17], v[0:1], v[4:5]")
    A.e("v_pk_add_f32 v[18:19], v[2:3], v[6:7]")
    A.e("v_pk_add_f32 v[20:21], v[8:9], v[12:13]")
    A.e("v_pk_add_f32 v[22:23], v[10:11], v[14:15]")
    A.e("v_pk_add_f32 v[16:17], v[16:17], v[20:21]")
    A.e("v_pk_add_f32 v[18:19], v[18:19], v[22:23]")
    A.e("v_mov_b32 v24, -1")
    A.e("s_nop 0")
    A.e("v_permlane32_swap_b32 v16, v17")
    A.e("v_permlane32_swap_b32 v18, v19")
    A.e("v_add_f32 v16, v16, v17")
    A.e("v_add_f32 v18, v18, v19")
    A.e("s_nop 1")
    A.e("v_permlane16_swap_b32 v16, v18")
    A.e("v_add_f32 v16, v16, v18")
    A.e("s_nop 1")
    A.e("v_add_f32_dpp v16, v16, v16 row_ror:8 row_mask:0xf bank_mask:0xf")
    A.e("s_nop 0")
    A.e("v_cmp_u_f32 vcc, v16, v16")
    A.e("v_mov_b32_dpp v17, v16 quad_perm:[1,0,3,2] row_mask:0xf bank_mask:0xf")
    A.e("v_cvt_pk_bf16_f32 v18, v16, v17")
    A.e("s_cbranch_vccnz L_retry_p")
    A.label("L_ok_p")
    A.e(f"s_mov_b64 exec, s[{S_MSTM}:{S_MSTM+1}]")
    A.e(f"buffer_store_dword v18, v{V_MST}, {WSRD}, s{S_MST} offen")
    A.e(f"buffer_store_dword v24, v{V_MST}, {WSRD}, s{S_MPZ} offen")
    A.e("s_mov_b64 exec, -1")
    stamp(A, opts, 8)
    for r in (S_MEMRD, S_MEMRD4, S_MST, S_MPZ):
        A.e(f"s_xor_b32 s{r}, s{r}, 0x2000")
    for r in (S_PLD, S_PPZ, S_PSTB):
        A.e(f"s_xor_b32 s{r}, s{r}, 0x80000")
    A.e(f"s_add_u32 s{S_KM}, s{S_KM}, 0x20000")
    A.e("s_add_u32 s26, s26, 1")
    A.e("s_branch L_step")

    for c in range(8):
        A.label(f"L_retry_{c}")
        A.e(f"s_mov_b32 s{S_SPIN}, 0")
        A.label(f"L_rloop_{c}")
        flush(A, mem_loads(c))
        A.e(f"s_add_u32 s{S_SPIN}, s{S_SPIN}, 1")
        A.e(f"s_cmp_gt_u32 s{S_SPIN}, {SPIN_MAX}")
        A.e("s_cbranch_scc1 L_fail")
        A.e(f"s_waitcnt vmcnt({7-c})")
        flush(A, mem_check(c, 111))
        A.e(f"s_cbranch_vccnz L_rloop_{c}")
        A.e(f"s_branch L_ok_{c}")
    A.label("L_retry_p")
    A.e("v_max3_u32 v20, v0, v1, v2")
    A.e("v_max3_u32 v21, v3, v4, v5")
    A.e("v_max3_u32 v22, v6, v7, v8")
    A.e("v_max3_u32 v23, v9, v10, v11")
    A.e("v_max3_u32 v20, v20, v12, v13")
    A.e("v_max3_u32 v21, v21, v14, v15")
    A.e("v_max3_u32 v20, v20, v21, v22")
    A.e("v_max_u32 v20, v20, v23")
    A.e("v_cmp_eq_u32 vcc, -1, v20")
    A.e("s_cbranch_vccz L_ok_p")
    A.e(f"s_add_u32 s{S_SPIN}, s{S_SPIN}, 1")
    A.e(f"s_cmp_gt_u32 s{S_SPIN}, {SPIN_MAX}")
    A.e("s_cbranch_scc1 L_fail")
    A.e("s_branch L_poll1")

    A.label("L_last")
    for m in vms[2:]:
        A.e(m)
    A.e("s_nop 7")
    A.e("v_pk_add_f32 v[48:49], v[48:49], v[50:51]")
    A.e("v_pk_add_f32 v[52:53], v[52:53], v[54:55]")
    A.e(f"v_cvt_pk_bf16_f32 v{V_KV4+2}, v48, v49")
    A.e(f"v_cvt_pk_bf16_f32 v{V_KV4+3}, v52, v53")
    A.e(f"buffer_store_dwordx4 v[{V_KV4}:{V_KV4+3}], v{V_L16}, {WSRD}, s{S_KM} offen sc1")
    A.e("s_waitcnt vmcnt(0)")
    if opts.get("total"):
        A.e("s_memtime s[86:87]")
        A.e("s_memrealtime s[88:89]")
        A.e("s_waitcnt lgkmcnt(0)")
        A.e("s_sub_u32 s64, s84, s80")
        A.e("s_sub_u32 s65, s88, s84")
        A.e("s_sub_u32 s66, s86, s82")
    if opts.get("stamps") or opts.get("total"):
        A.e("s_cmp_lg_u32 s24, 0")
        A.e("s_cbranch_scc1 L_exit")
        A.e("s_cmp_lg_u32 s25, 0")
        A.e("s_cbranch_scc1 L_exit")
        A.e(f"s_load_dwordx2 s[36:37], s[0:1], {KA_DBG}")
        A.e("s_waitcnt lgkmcnt(0)")
        A.e("v_mov_b32 v1, 0")
        for i in range(12):
            A.e(f"v_mov_b32 v2, s{64+i}")
            A.e(f"global_store_dword v1, v2, s[36:37] offset:{128 + 4*i}")
        A.e("s_waitcnt vmcnt(0)")
    A.e("s_branch L_exit")
    A.label("L_fail")
    A.e("s_mov_b64 exec, -1")
    A.e(f"s_load_dwordx2 s[36:37], s[0:1], {KA_DBG}")
    A.e("s_waitcnt vmcnt(0) lgkmcnt(0)")
    A.e("v_mov_b32 v1, 0")
    A.e("v_mov_b32 v2, 0xdead")
    A.e("global_store_dword v1, v2, s[36:37] offset:252")
    A.e("s_waitcnt vmcnt(0)")
    A.e("s_branch L_exit")
```

```python
from asm import *
from layout import *
import struct, math

L_KS = 0x0000
L_VS = 0x2000
L_QT = 0x4000
L_KT = 0x5000
L_OX = 0x6000
L_MS = 0x6000
L_WO = 0x8000
SPIN_MAX = 200000

(V_L16, V_IDX, V_QW, V_QR0, V_QR1, V_KXA, V_VXA, V_WOL, V_PST, V_MST, V_DK, V_DV) = range(112, 124)
V_PM0 = 124
V_PM1 = 126
V_KV4 = 104
V_PX = 108
V_T = 110
S_WQ, S_WK, S_WV, S_WO, S_WS = 4, 8, 12, 16, 20
S_H, S_W, S_STEP = 24, 25, 26
S_C = 40
S_SPIN = 45
S_OXM, S_MSTM = 48, 50
S_MEMRD, S_MEMRD4 = 52, 53
S_PST = 54
S_PLD = 55
S_PPZ = 56
S_MST, S_MPZ = 57, 58
S_KM = 59
S_KD, S_VD = 90, 91
S_KL, S_VL = 92, 93
S_TK = 94
S_PSTB = 95
S_PH = 46
S_MSW = 47
S_MR = 96
CSCALE = struct.unpack("<I", struct.pack("<f", (128 ** -0.5) * math.log2(math.e)))[0]
WSRD = f"s[{S_WS}:{S_WS+3}]"

def wreg(mat, t, c):
    if mat < 2:
        return ("a", 128 * mat + 64 * t + 8 * c)
    return ("v", 128 + 64 * t + 8 * c)
def rr(kind, base, n):
    return f"{kind}[{base}:{base+n-1}]"

def isvalu(s):
    return s.startswith("v_") and not s.startswith("v_mfma") and not s.startswith("v_smfmac")

def weave(A, mfmas, fillers, nv=1, no=2):
    fillers = list(fillers)
    for m in mfmas:
        A.e(m)
        v = o = 0
        while fillers:
            f = fillers[0]
            if f.endswith(":"):
                A.label(f[:-1]); fillers.pop(0); continue
            if isvalu(f):
                if v >= nv: break
                v += 1
            else:
                if o + v >= 3: break
                o += 1
            A.e(f); fillers.pop(0)
            if v + o >= 3: break
    return fillers

def flush(A, fillers):
    for f in fillers:
        if f.endswith(":"): A.label(f[:-1])
        else: A.e(f)

def stamp(A, opts, idx):
    if opts.get("stamps"):
        A.e("s_waitcnt lgkmcnt(0)")
        A.e("s_memtime s[60:61]")
        A.e("s_waitcnt lgkmcnt(0)")
        A.e(f"s_sub_u32 s62, s60, s63")
        A.e(f"s_add_u32 s{64+idx}, s{64+idx}, s62")
        A.e("s_mov_b32 s63, s60")

def gen_setup(A, opts):
    for s, ka in ((S_WQ, KA_WQ), (S_WK, KA_WK), (S_WV, KA_WV), (S_WO, KA_WO), (S_WS, KA_WS)):
        A.e(f"s_load_dwordx2 s[{s}:{s+1}], s[0:1], {ka}")
    A.e("v_lshrrev_b32 v1, 6, v0")
    A.e("v_and_b32 v2, 63, v0                 ; lane")
    A.e("v_readfirstlane_b32 s25, v1          ; wave")
    A.e("s_waitcnt lgkmcnt(0)")
    for s, n in ((S_WQ, 0x400000), (S_WK, 0x400000), (S_WV, 0x400000), (S_WO, 0x400000), (S_WS, WS_SIZE)):
        A.e(f"s_mov_b32 s{s+2}, {hex(n)}")
        A.e(f"s_mov_b32 s{s+3}, 0x00020000")
    A.e(f"s_mov_b32 s{S_C}, {hex(CSCALE)}")
    A.e(f"s_mov_b32 s{S_C+1}, {hex(CSCALE)}")
    A.e(f"s_mov_b32 s{S_MSTM}, 0x00550055")
    A.e(f"s_mov_b32 s{S_MSTM+1}, 0x00550055")
    A.e("s_and_b32 s27, s25, 1")
    A.e("s_cmp_eq_u32 s27, 0")
    A.e(f"s_mov_b32 s28, 0xcccccccc")
    A.e(f"s_cselect_b32 s{S_OXM}, 0x33333333, s28")
    A.e(f"s_mov_b32 s{S_OXM+1}, s{S_OXM}")
    A.e("v_and_b32 v3, 15, v2")
    A.e("v_lshrrev_b32 v4, 4, v2")
    A.e("v_bfe_u32 v5, v2, 2, 2")
    A.e("v_and_b32 v6, 3, v2")
    A.e("v_and_b32 v9, 1, v4")
    A.e("v_lshrrev_b32 v10, 1, v4")
    A.e(f"v_lshlrev_b32 v{V_L16}, 4, v2")
    A.e(f"v_mov_b32 v{V_IDX}, 0x44444444")
    A.e("v_mov_b32 v7, 0xeeeeeeee")
    A.e("v_and_b32 v8, 2, v2")
    A.e("v_cmp_ne_u32 vcc, 0, v8")
    A.e("s_nop 1")
    A.e(f"v_cndmask_b32 v{V_IDX}, v{V_IDX}, v7, vcc")
    A.e("s_lshl_b32 s27, s25, 5")
    A.e("v_add_u32 v7, s27, v3")
    A.e("v_lshlrev_b32 v7, 5, v7")
    A.e("v_lshrrev_b32 v8, 1, v7")
    A.e("v_and_b32 v8, 128, v8")
    A.e("v_xor_b32 v7, v7, v8")
    A.e("v_lshl_add_u32 v7, v4, 3, v7")
    A.e(f"v_add_u32 v{V_QW}, {hex(L_QT)}, v7")
    A.e("v_lshlrev_b32 v7, 3, v4")
    A.e("v_add_u32 v7, v7, v5")
    A.e("v_lshlrev_b32 v7, 5, v7")
    A.e("v_lshrrev_b32 v8, 1, v7")
    A.e("v_and_b32 v8, 128, v8")
    A.e("v_xor_b32 v7, v7, v8")
    A.e("v_lshl_add_u32 v7, v6, 3, v7")
    A.e(f"v_add_u32 v{V_QR0}, {hex(L_QT)}, v7")
    A.e(f"v_xor_b32 v{V_QR1}, 128, v{V_QR0}")
    A.e("v_xor_b32 v7, v4, v3")
    A.e("v_lshlrev_b32 v7, 4, v7")
    A.e("v_lshl_add_u32 v7, v3, 8, v7")
    A.e(f"v_add_u32 v{V_KXA}, {hex(L_KS)}, v7")
    A.e("v_lshlrev_b32 v7, 2, v4")
    A.e("v_add_u32 v7, v7, v5")
    A.e("v_lshlrev_b32 v7, 6, v7")
    A.e("v_lshl_add_u32 v7, v9, 5, v7")
    A.e("v_lshl_add_u32 v7, v6, 3, v7")
    A.e("s_lshl_b32 s27, s25, 11")
    A.e(f"s_add_u32 s27, s27, {hex(L_VS)}")
    A.e(f"v_add_u32 v{V_VXA}, s27, v7")
    A.e("s_lshl_b32 s27, s25, 15")
    A.e(f"s_add_u32 s27, s27, {hex(L_WO)}")
    A.e(f"v_add_u32 v{V_WOL}, s27, v{V_L16}")
    A.e("v_lshrrev_b32 v7, 3, v3")
    A.e("v_lshlrev_b32 v7, 14, v7")
    A.e("v_lshl_add_u32 v7, v4, 12, v7")
    A.e("v_and_b32 v8, 7, v3")
    A.e(f"v_lshl_add_u32 v{V_PST}, v8, 4, v7")
    A.e("v_lshl_add_u32 v7, v9, 1, v10")
    A.e("s_lshl_b32 s27, s25, 2")
    A.e("v_add_u32 v7, s27, v7")
    A.e("v_lshlrev_b32 v7, 4, v7")
    A.e("v_bfe_u32 v8, v2, 1, 2")
    A.e(f"v_lshl_add_u32 v{V_MST}, v8, 2, v7")
    A.e("v_xor_b32 v7, v3, v4")
    A.e("v_lshlrev_b32 v7, 4, v7")
    A.e("v_lshl_add_u32 v7, v4, 8, v7")
    A.e("s_lshl_b32 s27, s25, 1")
    A.e("s_and_b32 s27, s27, 3")
    A.e("s_lshl_b32 s27, s27, 6")
    A.e(f"v_xor_b32 v{V_DK}, s27, v7")
    A.e("v_lshlrev_b32 v7, 1, v9")
    A.e("v_xor_b32 v7, v7, v6")
    A.e("v_lshlrev_b32 v7, 4, v7")
    A.e("v_lshrrev_b32 v8, 2, v2")
    A.e(f"v_lshl_add_u32 v{V_DV}, v8, 8, v7")
    A.e(f"v_mov_b32 v{V_PM0+1}, 0")
    A.e(f"v_mov_b32 v{V_PM1}, 0")

def gen_weights(A, opts):
    A.e("v_lshrrev_b32 v7, 2, v2")
    A.e("v_lshlrev_b32 v7, 13, v7")
    A.e("v_lshl_add_u32 v20, v6, 4, v7")
    A.e("v_lshrrev_b32 v8, 1, v5              ; r>>1")
    A.e("v_lshlrev_b32 v7, 4, v8")
    A.e("v_lshl_add_u32 v7, v4, 2, v7         ; + 4*gb")
    A.e("v_and_b32 v11, 1, v5                 ; r&1")
    A.e("v_add_u32 v7, v7, v11")
    A.e("v_lshlrev_b32 v7, 6, v7")
    A.e("v_lshl_add_u32 v7, v6, 3, v7")
    A.e("s_lshl_b32 s29, s25, 15")
    A.e(f"s_add_u32 s29, s29, {hex(L_WO)}")
    A.e("v_add_u32 v21, s29, v7")
    A.e("s_lshl_b32 s30, s25, 13")
    A.e("v_add_u32 v22, s30, v7")
    A.e("v_lshrrev_b32 v7, 1, v3")
    A.e("v_xor_b32 v7, v7, v9")
    A.e("v_lshlrev_b32 v7, 5, v7")
    A.e("v_lshl_add_u32 v7, v4, 10, v7")
    A.e("v_and_b32 v12, 1, v2")
    A.e("v_lshl_add_u32 v23, v12, 4, v7")
    A.e("v_lshlrev_b32 v7, 5, v8")
    A.e("v_lshl_add_u32 v7, v9, 4, v7")
    A.e("v_lshl_add_u32 v7, v10, 2, v7")
    A.e("v_add_u32 v7, v7, v11")
    A.e("v_lshlrev_b32 v7, 8, v7")
    A.e("v_lshl_add_u32 v12, v9, 1, v11")
    A.e("v_lshl_add_u32 v12, v8, 2, v12")
    A.e("v_lshl_add_u32 v7, v12, 5, v7")
    A.e("v_lshl_add_u32 v7, v6, 3, v7")
    A.e("v_add_u32 v25, s29, v7")
    A.e("s_lshl_b32 s28, s24, 8")
    A.e("s_lshl_b32 s33, s25, 6")
    A.e("s_add_u32 s28, s28, s33              ; h*256 + w*64")
    A.e("s_lshl_b32 s31, s24, 17")
    A.e("s_lshl_b32 s32, s25, 8")
    A.e("s_add_u32 s31, s31, s32              ; h*128*1024 + w*256")
    def issue_unit(u):
        mat, c = divmod(u, 8)
        slot = u % 10
        srdreg = (S_WQ, S_WK, S_WV)[mat]
        for uu in range(4):
            if slot < 8:
                A.e(f"s_add_u32 m0, s29, {slot*4096 + uu*1024}")
            else:
                A.e(f"s_add_u32 m0, s30, {(slot-8)*4096 + uu*1024}")
            if uu == 0:
                A.e("s_lshl_b32 s34, s25, 1")
                A.e(f"s_add_u32 s34, s34, {c}")
                A.e("s_and_b32 s34, s34, 7")
                A.e("s_lshl_b32 s34, s34, 19")
                A.e("s_add_u32 s34, s34, s28")
            A.e(f"s_add_u32 s33, s34, {(16*uu) * 8192}")
            A.e(f"buffer_load_dwordx4 v20, s[{srdreg}:{srdreg+3}], s33 offen lds")
    def issue_wo(k):
        A.e(f"v_xor_b32 v24, {(k & 3) << 6}, v23")
        for uu in range(4):
            A.e(f"s_add_u32 m0, s29, {k*4096 + uu*1024}")
            A.e(f"s_add_u32 s33, s31, {(16*k + 4*uu) * 1024}")
            A.e(f"buffer_load_dwordx4 v24, s[{S_WO}:{S_WO+3}], s33 offen lds")
    issued = 0
    for u in range(10):
        issue_unit(u); issued += 1
    for u in range(24):
        mat, c = divmod(u, 8)
        slot = u % 10
        A.e(f"s_waitcnt vmcnt({(issued - (u + 1)) * 4})")
        for t in range(2):
            kind, base = wreg(mat, t, c)
            for m in range(4):
                off = 2048 * (m >> 1) + 128 * (m & 1) + 32 * t
                if slot < 8:
                    A.e(f"ds_read_b64_tr_b16 {rr(kind, base + 2*m, 2)}, v21 offset:{slot*4096 + off}")
                else:
                    A.e(f"ds_read_b64_tr_b16 {rr(kind, base + 2*m, 2)}, v22 offset:{(slot-8)*4096 + off}")
        A.e("s_waitcnt lgkmcnt(0)")
        if u + 10 < 24:
            issue_unit(u + 10); issued += 1
        elif 14 <= u <= 17:
            issue_wo(u - 10); issued += 1
        elif u >= 20:
            issue_wo(u - 20); issued += 1
    A.e("s_waitcnt vmcnt(0)")
    for cc in range(2):
        for t in range(8):
            if t == 0:
                ad = 25
            else:
                A.e(f"v_xor_b32 v26, {t << 5}, v25")
                ad = 26
            for m in range(4):
                off = (64 * cc + 8 * (m >> 1) + 2 * (m & 1)) * 256
                A.e(f"ds_read_b64_tr_b16 v[{32+8*t+2*m}:{33+8*t+2*m}], v{ad} offset:{off}")
            if t % 2 == 1:
                A.e("s_waitcnt lgkmcnt(0)")
        for t in range(8):
            for half in range(2):
                A.e(f"ds_write_b128 v{V_WOL}, v[{32+8*t+4*half}:{35+8*t+4*half}] offset:{cc*16384 + t*2048 + half*1024}")
            if t % 4 == 3:
                A.e("s_waitcnt lgkmcnt(0)")
    A.e("s_barrier")


def k_dma(T):
    return [f"s_mov_b32 m0, s{S_KL}",
            f"v_xor_b32 v{T}, 64, v{V_DK}",
            f"buffer_load_dwordx4 v{V_DK}, {WSRD}, s{S_KD} offen sc1 lds",
            f"s_add_u32 m0, s{S_KL}, 1024",
            f"s_add_u32 s{S_KD}, s{S_KD}, 1024",
            f"buffer_load_dwordx4 v{T}, {WSRD}, s{S_KD} offen sc1 lds"]
def v_dma():
    return [f"s_mov_b32 m0, s{S_VL}",
            f"s_add_u32 s33, s{S_VD}, 4096",
            f"buffer_load_dwordx4 v{V_DV}, {WSRD}, s{S_VD} offen sc1 lds",
            f"s_add_u32 m0, s{S_VL}, 1024",
            "s_nop 0",
            f"buffer_load_dwordx4 v{V_DV}, {WSRD}, s33 offen sc1 lds"]

class Lds:
    def __init__(self, A): self.A = A; self.q = []
    def issue(self, instr, tag=None):
        self.A.e(instr); self.q.append(tag)
        assert len(self.q) <= 15, "more than 15 LDS operations outstanding"
    def note(self, tag=None):
        self.q.append(tag)
        assert len(self.q) <= 15, "more than 15 LDS operations outstanding"
    def wait(self, tag):
        if tag not in self.q: return None
        i = max(k for k, t in enumerate(self.q) if t == tag)
        n = len(self.q) - 1 - i
        self.q = self.q[i + 1:]
        return f"s_waitcnt lgkmcnt({n})"
    def waitall(self):
        self.q = []
        return "s_waitcnt lgkmcnt(0)"

def gen_chain(A, opts):
    A("; ---------------- chain role: s24 = head ----------------")
    if opts.get("total"):
        A.e("s_memrealtime s[80:81]")
    gen_setup(A, opts)
    gen_weights(A, opts)
    A.e("s_lshl_b32 s27, s25, 11")
    A.e(f"s_add_u32 s{S_KL}, s27, {hex(L_KS)}")
    A.e(f"s_add_u32 s{S_VL}, s27, {hex(L_VS)}")
    A.e(f"s_add_u32 s{S_MSW}, s27, 0                 ; w*2048")
    for p in range(1, 4):
        A.e(f"s_add_u32 s28, s27, {2048*p}")
        A.e(f"s_and_b32 s{S_MR+p-1}, s28, 0x1fff")
    A.e(f"s_add_u32 s{S_MEMRD}, s27, {hex(WS_MEM)}")
    A.e("s_mov_b32 s26, 0")
    flush(A, ["s_lshl_b32 s33, s24, 13",
              f"s_add_u32 s{S_KD}, s33, s27",
              f"s_add_u32 s{S_KD}, s{S_KD}, {hex(WS_KX)}",
              "s_lshl_b32 s34, s25, 6",
              f"s_add_u32 s{S_VD}, s33, s34",
              f"s_add_u32 s{S_VD}, s{S_VD}, {hex(WS_VX)}"])
    flush(A, k_dma(V_T))
    flush(A, v_dma())
    for r in range(32, 56):
        A.e(f"v_mov_b32 v{r}, 0")
    flush(A, ["s_lshl_b32 s29, s24, 14",
              "s_lshl_b32 s30, s25, 12",
              "s_add_u32 s29, s29, s30",
              f"s_add_u32 s{S_PLD}, s29, {hex(WS_P)}",
              "s_lshl_b32 s29, s25, 17",
              "s_lshl_b32 s30, s24, 7",
              "s_add_u32 s29, s29, s30",
              f"s_add_u32 s{S_PSTB}, s29, {hex(WS_P)}",
              "s_lshl_b32 s29, s24, 8",
              f"s_add_u32 s{S_MPZ}, s29, {hex(WS_MEM)}",
              f"s_xor_b32 s{S_MST}, s{S_MPZ}, 0x2000",
              "s_lshl_b32 s27, s24, 12",
              "s_lshl_b32 s28, s25, 10",
              "s_add_u32 s27, s27, s28",
              f"s_add_u32 s{S_KM}, s27, {hex(WS_KMVM - 0x20000)}",
              f"s_mov_b32 s{S_PH}, 1"])
    if opts.get("stamps"):
        for i in range(16):
            A.e(f"s_mov_b32 s{64+i}, 0")
        A.e("s_memtime s[60:61]")
        A.e("s_waitcnt lgkmcnt(0)")
        A.e("s_mov_b32 s63, s60")
    if opts.get("total"):
        A.e("s_waitcnt vmcnt(0)")
        A.e("s_memtime s[82:83]")
        A.e("s_memrealtime s[84:85]")
        A.e("s_waitcnt lgkmcnt(0)")
    A.e("s_waitcnt vmcnt(0)")

    L = Lds(A)
    def qk(c):
        out = []
        for mat in range(2):
            for t in range(2):
                kind, base = wreg(mat, t, c)
                acc = 32 + 8 * mat + 4 * t
                out.append(f"v_smfmac_f32_16x16x64_bf16 v[{acc}:{acc+3}], v[{4*c}:{4*c+3}], {rr(kind, base, 8)}, v{V_IDX}")
        return out
    def vm(c, t):
        kind, base = wreg(2, t, c)
        acc = 48 + 4 * t
        return f"v_smfmac_f32_16x16x64_bf16 v[{acc}:{acc+3}], v[{4*c}:{4*c+3}], {rr(kind, base, 8)}, v{V_IDX}"
    vms = [vm(c, t) for c in range(8) for t in range(2)]

    A.label("L_step")
    A.e(f"s_mov_b32 s{S_SPIN}, 0")
    A.label("L_poll2")
    A.e(f"buffer_load_dwordx4 v[0:3], v{V_L16}, {WSRD}, s{S_MEMRD} offen sc1")
    A.e(f"buffer_load_dwordx4 v[4:7], v{V_L16}, {WSRD}, s{S_MEMRD} offen offset:1024 sc1")
    A.e(f"v_add_u32 v88, s{S_MSW}, v{V_L16}")
    for p in range(3):
        A.e(f"v_add_u32 v{89+p}, s{S_MR+p}, v{V_L16}")
    A.e(f"s_add_u32 s{S_SPIN}, s{S_SPIN}, 1")
    A.e(f"s_cmp_gt_u32 s{S_SPIN}, {SPIN_MAX}")
    A.e("s_cbranch_scc1 L_fail")
    A.e("s_waitcnt vmcnt(0)")
    A.e("v_max3_u32 v108, v0, v1, v2")
    A.e("v_max3_u32 v109, v3, v4, v5")
    A.e("v_max3_u32 v108, v108, v6, v7")
    A.e("v_max_u32 v108, v108, v109")
    A.e("v_cmp_eq_u32 vcc, -1, v108")
    A.e("s_cbranch_vccnz L_poll2")
    stamp(A, opts, 0)
    L.issue(f"ds_write_b128 v88, v[0:3] offset:{L_MS}", "msw")
    L.issue(f"ds_write_b128 v88, v[4:7] offset:{L_MS + 1024}", "msw")
    m01 = qk(0) + qk(1)
    A.e(m01[0]); A.e(m01[1])
    A.e(L.wait("msw"))
    A.e("s_barrier")
    for c in range(2, 8):
        L.issue(f"ds_read_b128 v[{4*c}:{4*c+3}], v{89 + (c-2)//2} offset:{L_MS + 1024*(c%2)}", f"m{c}")
        if c in (3, 5):
            A.e(m01[2 + (c - 3) // 2])
    fl = []
    for ks in range(4):
        if ks == 0:
            ad = V_KXA
        else:
            fl.append(f"v_xor_b32 v109, {ks << 6}, v{V_KXA}")
            ad = 109
        for kt in range(2):
            fl.append(f"ds_read_b128 v[{56+16*kt+4*ks}:{59+16*kt+4*ks}], v{ad} offset:{4096*kt}")
    fl += [f"buffer_store_dwordx4 v[{V_KV4}:{V_KV4+3}], v{V_L16}, {WSRD}, s{S_KM} offen sc1",
           f"s_add_u32 s{S_KM}, s{S_KM}, 0x20000",
           f"s_mov_b32 s{S_PST}, s{S_PSTB}",
           f"s_add_u32 s{S_KD}, s{S_KD}, {hex(0x40000 - 1024)}",
           f"s_add_u32 s{S_VD}, s{S_VD}, 0x40000"]
    def emit_fill(nv=1, no=2):
        v = o = 0
        while fl:
            f = fl[0]
            if isvalu(f):
                if v >= nv: break
                v += 1
            else:
                if o >= no: break
                o += 1
            fl.pop(0)
            if f.startswith("ds_"): L.issue(f, "kx")
            else: A.e(f)
    for m in m01[4:]:
        A.e(m); emit_fill()
    for c in range(2, 8):
        w = L.wait(f"m{c}")
        if w: A.e(w)
        for m in qk(c):
            A.e(m); emit_fill()
    assert not fl
    stamp(A, opts, 1)
    A.e(vms[0]); A.e(vms[1])
    A.e("s_nop 0")
    A.e("v_pk_add_f32 v[32:33], v[32:33], v[34:35]")
    A.e("v_pk_add_f32 v[36:37], v[36:37], v[38:39]")
    A.e("v_pk_add_f32 v[40:41], v[40:41], v[42:43]")
    A.e("v_pk_add_f32 v[44:45], v[44:45], v[46:47]")
    A.e("v_cvt_pk_bf16_f32 v108, v32, v33")
    A.e("v_cvt_pk_bf16_f32 v109, v36, v37")
    A.e(f"v_cvt_pk_bf16_f32 v{V_KV4}, v40, v41")
    A.e(f"v_cvt_pk_bf16_f32 v{V_KV4+1}, v44, v45")
    L.issue(f"ds_write2_b32 v{V_QW}, v108, v108 offset0:0 offset1:1")
    L.issue(f"ds_write2_b32 v{V_QW}, v109, v109 offset0:128 offset1:129")
    L.issue(f"ds_write2st64_b32 v{V_QW}, v{V_KV4}, v{V_KV4+1} offset0:16 offset1:18")
    A.e("s_cmp_eq_u32 s26, 63")
    A.e("s_cbranch_scc1 L_last")
    for i in range(2, 8):
        A.e(vms[i])
    A.e(L.waitall())
    A.e("s_barrier")
    stamp(A, opts, 2)
    rd = []
    for ks in range(4):
        rd.append(f"ds_read_b64_tr_b16 v[{88+4*ks}:{89+4*ks}], v{V_QR0} offset:{1024*ks}")
        rd.append(f"ds_read_b64_tr_b16 v[{90+4*ks}:{91+4*ks}], v{V_QR1} offset:{1024*ks}")
    rk = []
    for ks in range(4):
        rk.append(f"ds_read_b64_tr_b16 v[{4*ks}:{4*ks+1}], v{V_QR0} offset:{4096 + 1024*ks}")
        rk.append(f"ds_read_b64_tr_b16 v[{4*ks+2}:{4*ks+3}], v{V_QR1} offset:{4096 + 1024*ks}")
    for k_, r in enumerate(rd):
        L.issue(r, f"q{k_//2}")
        if k_ == 3: A.e(vms[8])
    A.e(vms[9])
    for k_, r in enumerate(rk[:7]):
        L.issue(r, "km")
        if k_ == 2: A.e(vms[10])
        if k_ == 5: A.e(vms[11])
    sc = []
    for ks in range(4):
        for kt in range(2):
            c = "0" if ks == 0 else f"v[{32+4*kt}:{35+4*kt}]"
            sc.append(f"v_mfma_f32_16x16x32_bf16 v[{32+4*kt}:{35+4*kt}], v[{56+16*kt+4*ks}:{59+16*kt+4*ks}], v[{88+4*ks}:{91+4*ks}], {c}")
    kd = k_dma(110)
    A.e(L.wait("q0")); A.e(sc[0]); L.issue(rk[7], "km"); A.e(sc[1])
    A.e(L.wait("q1")); A.e(sc[2]); A.e(kd[0]); A.e(kd[1]); A.e(sc[3]); A.e(kd[2])
    A.e(L.wait("q2")); A.e(sc[4]); A.e(kd[3]); A.e(kd[4]); A.e(sc[5]); A.e(kd[5])
    A.e(L.wait("q3")); A.e(sc[6]); A.e(sc[7])
    A.e(L.wait("km"))
    ms = []
    for ks in range(4):
        c = "0" if ks == 0 else "v[40:43]"
        ms.append(f"v_mfma_f32_16x16x32_bf16 v[40:43], v[{4*ks}:{4*ks+3}], v[{88+4*ks}:{91+4*ks}], {c}")
    A.e(ms[0])
    L.issue(f"ds_read_b64_tr_b16 v[56:57], v{V_VXA}", "vx")
    L.issue(f"ds_read_b64_tr_b16 v[58:59], v{V_VXA} offset:1024", "vx")
    A.e(f"v_xor_b32 v110, 32, v{V_VXA}")
    A.e(ms[1])
    L.issue(f"ds_read_b64_tr_b16 v[60:61], v110", "vx")
    L.issue(f"ds_read_b64_tr_b16 v[62:63], v110 offset:1024", "vx")
    A.e(ms[2]); A.e(ms[3])
    for i in range(12, 16):
        A.e(vms[i])
    stamp(A, opts, 3)
    ops = []
    for u in range(4):
        for cc in range(2):
            for tt in range(2):
                ops.append((2 * u + tt, cc))
    slots = [0, 8, 16, 24, 44, 32, 96]
    def wo_load(i):
        t, cc = ops[i]
        b = slots[i % len(slots)]
        L.issue(f"ds_read_b128 v[{b}:{b+3}], v{V_WOL} offset:{cc*16384 + t*2048}", f"w{i}")
        L.issue(f"ds_read_b128 v[{b+4}:{b+7}], v{V_WOL} offset:{cc*16384 + t*2048 + 1024}", f"w{i}")
    A.e("v_max3_f32 v44, v32, v33, v34")
    A.e("v_max3_f32 v45, v35, v36, v37")
    A.e("v_max3_f32 v44, v44, v38, v39")
    A.e("v_max3_f32 v45, v45, v40, v41")
    A.e("v_max_f32 v46, v44, v45")
    A.e("v_max_f32 v47, v44, v45")
    wo_load(0)
    A.e("v_permlane32_swap_b32 v46, v47")
    A.e("v_max_f32 v44, v46, v47")
    A.e("v_max_f32 v45, v46, v47")
    wo_load(1)
    A.e("v_permlane16_swap_b32 v44, v45")
    A.e("v_max_f32 v44, v44, v45")
    A.e(f"v_mul_f32 v44, s{S_C}, v44")
    for j in range(5):
        A.e(f"v_pk_fma_f32 v[{32+2*j}:{33+2*j}], v[{32+2*j}:{33+2*j}], s[{S_C}:{S_C+1}], v[44:45] op_sel_hi:[1,1,0] neg_lo:[0,0,1] neg_hi:[0,0,1]")
    for j in range(10):
        A.e(f"v_exp_f32 v{32+j}, v{32+j}")
    A.e(f"v_cvt_pk_bf16_f32 v{V_PX}, v32, v33")
    A.e(f"v_cvt_pk_bf16_f32 v{V_PX+1}, v34, v35")
    A.e(f"v_cvt_pk_bf16_f32 v{V_PX+2}, v36, v37")
    A.e(f"v_cvt_pk_bf16_f32 v{V_PX+3}, v38, v39")
    A.e(f"v_cvt_pk_bf16_f32 v{V_PM0}, v40, v41")
    A.e(f"v_cvt_pk_bf16_f32 v{V_PM1+1}, v40, v41")
    A.e("v_pk_add_f32 v[48:49], v[48:49], v[50:51]")
    A.e("v_pk_add_f32 v[52:53], v[52:53], v[54:55]")
    A.e(L.wait("vx"))
    A.e("v_mfma_f32_16x16x32_bf16 v[96:99], v[56:59], v[%d:%d], 0" % (V_PX, V_PX + 3))
    A.e(f"v_cvt_pk_bf16_f32 v{V_KV4+2}, v48, v49")
    A.e("v_mfma_f32_16x16x32_bf16 v[100:103], v[60:63], v[%d:%d], 0" % (V_PX, V_PX + 3))
    A.e(f"v_cvt_pk_bf16_f32 v{V_KV4+3}, v52, v53")
    stamp(A, opts, 4)
    vd = v_dma()
    A.e(vd[0]); A.e(vd[1])
    A.e("v_mov_b32 v48, 0")
    A.e(f"v_mfma_f32_16x16x16_bf16 v[96:99], v[{V_KV4+2}:{V_KV4+3}], v[{V_PM0}:{V_PM0+1}], v[96:99]")
    A.e("v_mov_b32 v49, 0")
    A.e(vd[2]); A.e(vd[3])
    A.e(f"v_mfma_f32_16x16x16_bf16 v[100:103], v[{V_KV4+2}:{V_KV4+3}], v[{V_PM1}:{V_PM1+1}], v[100:103]")
    A.e("v_pk_add_f32 v[52:53], v[32:33], v[34:35]")
    A.e(vd[5])
    A.e("v_mfma_f32_32x32x8_bf16 v[64:79], v[48:49], v[48:49], 0")
    A.e("v_pk_add_f32 v[54:55], v[36:37], v[38:39]")
    wo_load(2)
    A.e("v_pk_add_f32 v[52:53], v[52:53], v[40:41]")
    A.e("v_pk_add_f32 v[52:53], v[52:53], v[54:55]")
    A.e("v_add_f32 v54, v52, v53")
    A.e("v_add_f32 v55, v52, v53")
    wo_load(3)
    A.e("v_permlane32_swap_b32 v54, v55")
    A.e("v_add_f32 v52, v54, v55")
    A.e("v_add_f32 v53, v54, v55")
    A.e("v_mfma_f32_32x32x8_bf16 v[80:95], v[48:49], v[48:49], 0")
    A.e("s_lshr_b32 s27, s25, 1")
    A.e("v_permlane16_swap_b32 v52, v53")
    A.e("v_add_f32 v52, v52, v53")
    A.e("v_rcp_f32 v52, v52")
    A.e("s_lshl_b32 s27, s27, 10")
    A.e(f"v_add_u32 v54, s27, v{V_L16}")
    for j in range(4):
        A.e(f"v_pk_mul_f32 v[{96+2*j}:{97+2*j}], v[{96+2*j}:{97+2*j}], v[52:53] op_sel_hi:[1,0]")
    for j in range(4):
        A.e(f"v_cvt_pk_bf16_f32 v{V_PX+j}, v{96+2*j}, v{97+2*j}")
    A.e(f"s_mov_b64 exec, s[{S_OXM}:{S_OXM+1}]")
    L.issue(f"ds_write_b128 v54, v[{V_PX}:{V_PX+3}] offset:{L_OX}", "ow")
    A.e("s_mov_b64 exec, -1")
    wo_load(4)
    wo_load(5)
    A.e(L.wait("ow"))
    A.e("s_barrier")
    stamp(A, opts, 5)
    L.issue(f"ds_read_b128 v[56:59], v{V_L16} offset:{L_OX}", "oa")
    L.issue(f"ds_read_b128 v[60:63], v{V_L16} offset:{L_OX + 1024}", "oa")
    wo_load(6)
    A.e(L.wait("oa"))
    wo_m = []
    for i in range(16):
        t, cc = ops[i]
        b = slots[i % len(slots)]
        acc = 64 + 4 * t
        wo_m.append(f"v_smfmac_f32_16x16x64_bf16 v[{acc}:{acc+3}], v[{56+4*cc}:{59+4*cc}], v[{b}:{b+7}], v{V_IDX}")
    def pair_out(u):
        a, b = 64 + 8 * u, 68 + 8 * u
        o = [f"v_pk_add_f32 v[{a}:{a+1}], v[{a}:{a+1}], v[{a+2}:{a+3}]",
             f"v_pk_add_f32 v[{a+2}:{a+3}], v[{b}:{b+1}], v[{b+2}:{b+3}]",
             f"v_and_or_b32 v{a}, v{a}, -2, s{S_PH}",
             f"buffer_store_dwordx4 v[{a}:{a+3}], v{V_PST}, {WSRD}, s{S_PST} offen"]
        if u < 3: o.append(f"s_add_u32 s{S_PST}, s{S_PST}, 0x8000")
        return o
    outq = []
    nxt = 7
    for i in range(16):
        w = L.wait(f"w{i}")
        if w: A.e(w)
        A.e(wo_m[i])
        if nxt < 16:
            wo_load(nxt); nxt += 1
        if i >= 6 and (i - 6) % 4 == 0 and (i - 6) // 4 < 3:
            outq += pair_out((i - 6) // 4)
        v = False; n = 0
        while outq and n < 2:
            if isvalu(outq[0]):
                if v: break
                v = True
            A.e(outq.pop(0)); n += 1
    flush(A, outq)
    for r in range(32, 40):
        A.e(f"v_mov_b32 v{r}, 0")
    flush(A, pair_out(3))
    stamp(A, opts, 6)
    for r in range(40, 56):
        A.e(f"v_mov_b32 v{r}, 0")
    A.e(f"s_mov_b32 s{S_SPIN}, 0")
    A.label("L_poll1")
    for t in range(4):
        A.e(f"buffer_load_dwordx4 v[{4*t}:{4*t+3}], v{V_L16}, {WSRD}, s{S_PLD} offen offset:{1024*t} sc1")
    A.e(f"s_add_u32 s{S_SPIN}, s{S_SPIN}, 1")
    A.e(f"s_cmp_gt_u32 s{S_SPIN}, {SPIN_MAX}")
    A.e("s_cbranch_scc1 L_fail")
    A.e("s_waitcnt vmcnt(0)")
    stamp(A, opts, 7)
    A.e("v_pk_add_f32 v[16:17], v[0:1], v[4:5]")
    A.e("v_pk_add_f32 v[18:19], v[2:3], v[6:7]")
    A.e("v_pk_add_f32 v[20:21], v[8:9], v[12:13]")
    A.e("v_pk_add_f32 v[22:23], v[10:11], v[14:15]")
    A.e("v_pk_add_f32 v[16:17], v[16:17], v[20:21]")
    A.e("v_pk_add_f32 v[18:19], v[18:19], v[22:23]")
    A.e("v_bitop3_b32 v24, v0, v4, v8 bitop3:0x7e")
    A.e(f"v_bitop3_b32 v25, v0, v12, s{S_PH} bitop3:0x7e")
    A.e("v_permlane32_swap_b32 v16, v17")
    A.e("v_permlane32_swap_b32 v18, v19")
    A.e("v_add_f32 v16, v16, v17")
    A.e("v_add_f32 v18, v18, v19")
    A.e("v_or_b32 v24, v24, v25")
    A.e("v_and_b32 v24, 1, v24")
    A.e("v_permlane16_swap_b32 v16, v18")
    A.e("v_add_f32 v16, v16, v18")
    A.e("v_cmp_ne_u32 vcc, 0, v24")
    A.e("v_mov_b32 v24, -1")
    A.e("v_add_f32_dpp v16, v16, v16 row_ror:8 row_mask:0xf bank_mask:0xf")
    A.e("s_cbranch_vccnz L_poll1")
    A.e("s_nop 0")
    A.e("v_mov_b32_dpp v17, v16 quad_perm:[1,0,3,2] row_mask:0xf bank_mask:0xf")
    A.e("v_cvt_pk_bf16_f32 v18, v16, v17")
    A.e(f"s_mov_b64 exec, s[{S_MSTM}:{S_MSTM+1}]")
    A.e(f"buffer_store_dword v18, v{V_MST}, {WSRD}, s{S_MST} offen")
    A.e(f"buffer_store_dword v24, v{V_MST}, {WSRD}, s{S_MPZ} offen")
    A.e("s_mov_b64 exec, -1")
    stamp(A, opts, 8)
    for r in (S_MEMRD, S_MST, S_MPZ):
        A.e(f"s_xor_b32 s{r}, s{r}, 0x2000")
    for r in (S_PLD, S_PSTB):
        A.e(f"s_xor_b32 s{r}, s{r}, 0x80000")
    A.e("s_add_u32 s26, s26, 1")
    A.e("s_lshr_b32 s27, s26, 1")
    A.e("s_and_b32 s27, s27, 1")
    A.e(f"s_xor_b32 s{S_PH}, s27, 1")
    A.e("s_branch L_step")

    A.label("L_last")
    for m in vms[2:]:
        A.e(m)
    A.e("s_nop 7")
    A.e("v_pk_add_f32 v[48:49], v[48:49], v[50:51]")
    A.e("v_pk_add_f32 v[52:53], v[52:53], v[54:55]")
    A.e(f"v_cvt_pk_bf16_f32 v{V_KV4+2}, v48, v49")
    A.e(f"v_cvt_pk_bf16_f32 v{V_KV4+3}, v52, v53")
    A.e(f"buffer_store_dwordx4 v[{V_KV4}:{V_KV4+3}], v{V_L16}, {WSRD}, s{S_KM} offen sc1")
    A.e("s_waitcnt vmcnt(0)")
    if opts.get("total"):
        A.e("s_memtime s[86:87]")
        A.e("s_memrealtime s[88:89]")
        A.e("s_waitcnt lgkmcnt(0)")
        A.e("s_sub_u32 s64, s84, s80")
        A.e("s_sub_u32 s65, s88, s84")
        A.e("s_sub_u32 s66, s86, s82")
    if opts.get("stamps") or opts.get("total"):
        A.e("s_cmp_lg_u32 s24, 0")
        A.e("s_cbranch_scc1 L_exit")
        A.e("s_cmp_lg_u32 s25, 0")
        A.e("s_cbranch_scc1 L_exit")
        A.e(f"s_load_dwordx2 s[36:37], s[0:1], {KA_DBG}")
        A.e("s_waitcnt lgkmcnt(0)")
        A.e("v_mov_b32 v1, 0")
        for i in range(12):
            A.e(f"v_mov_b32 v2, s{64+i}")
            A.e(f"global_store_dword v1, v2, s[36:37] offset:{128 + 4*i}")
        A.e("s_waitcnt vmcnt(0)")
    A.e("s_branch L_exit")
    A.label("L_fail")
    A.e(f"s_load_dwordx2 s[36:37], s[0:1], {KA_DBG}")
    A.e("s_waitcnt lgkmcnt(0)")
    A.e("v_mov_b32 v1, 0")
    A.e("v_mov_b32 v2, 0xdead")
    A.e("global_store_dword v1, v2, s[36:37] offset:252")
    A.e("s_waitcnt vmcnt(0)")
    A.e("s_branch L_exit")
```

```python
WS_XN    = 0x0000000
WS_H     = 0x0200000
WS_MEM   = 0x0400000
WS_FLAG  = 0x0410000
WS_P     = 0x0500000
WS_KMVM  = 0x0800000
WS_KX    = 0x1000000
WS_VX    = 0x2000000
WS_QX    = 0x3000000
WS_O     = 0x4000000
WS_A1    = 0x5000000
WS_SIZE  = 0x10000000
KA_X, KA_MEM0, KA_WQ, KA_WK, KA_WV, KA_WO, KA_SEG, KA_BX, KA_W1, KA_W2, KA_OUT, KA_DBG, KA_WS = [8*i for i in range(13)]
KNAME = "sequential_preLN__memory_aug_recurrent_mem_tr__dense_activation_relu__prompt"
WS_HN    = 0x7000000
WS_PART  = 0x6000000
FL_KV, FL_Q, FL_O, FL_P, FL_H, FL_A1, FL_KM = 0, 64, 96, 128, 160, 168, 256
FL_SEG = 2048
WS_TRACE = 0x8000000
```

```python
import sys
from asm import *
from layout import *
import chain, chain2, chain3

def header(A, launches):
    A("; generated by gen/main.py")
    for l in launches:
        A(l)
    A('.amdgcn_target "amdgcn-amd-amdhsa--gfx950"')
    A(".text")

def kstart(A, name):
    A(f".globl {name}")
    A(".p2align 8")
    A(f".type {name},@function")
    A(f"{name}:")

def kdesc(A, name, vgpr, sgpr, accum):
    A('.section .rodata,"a"')
    A(".p2align 6")
    A(f".amdhsa_kernel {name}")
    A(f"  .amdhsa_next_free_vgpr {vgpr}")
    A(f"  .amdhsa_next_free_sgpr {sgpr}")
    A(f"  .amdhsa_accum_offset {accum}")
    A("  .amdhsa_group_segment_fixed_size 0")
    A("  .amdhsa_kernarg_size 104")
    A("  .amdhsa_user_sgpr_count 2")
    A("  .amdhsa_user_sgpr_kernarg_segment_ptr 1")
    A("  .amdhsa_system_sgpr_workgroup_id_x 1")
    A(".end_amdhsa_kernel")
    A(".text")

def role_select(A):
    A.e("s_cmp_ge_u32 s2, 256")
    A.e("s_cbranch_scc1 L_exit")
    A.e(f"s_load_dwordx2 s[36:37], s[0:1], {KA_DBG}")
    A.e("s_getreg_b32 s38, hwreg(HW_REG_XCC_ID, 0, 4)")
    A.e("s_waitcnt lgkmcnt(0)")
    A.e("v_mov_b32 v1, 0")
    A.e("v_mov_b32 v2, 1")
    A.e("s_lshl_b32 s39, s38, 2")
    A.e("v_mov_b32 v3, s39")
    A.e("v_cmp_eq_u32 vcc, 0, v0")
    A.e("s_and_saveexec_b64 s[30:31], vcc")
    A.e("s_cbranch_execz L_noat")
    A.e("global_atomic_add v4, v3, v2, s[36:37] sc0")
    A.e("s_waitcnt vmcnt(0)")
    A.e("ds_write_b32 v1, v4")
    A.e("s_waitcnt lgkmcnt(0)")
    A.label("L_noat")
    A.e("s_mov_b64 exec, s[30:31]")
    A.e("s_barrier")
    A.e("ds_read_b32 v4, v1")
    A.e("s_waitcnt lgkmcnt(0)")
    A.e("s_nop 1")
    A.e("v_readfirstlane_b32 s24, v4")
    A.e("s_nop 3")
    A.e("s_barrier")
    A.e("s_cmp_lg_u32 s38, 0")
    A.e("s_cbranch_scc1 L_exit")
    A.e("s_cmp_ge_u32 s24, 32")
    A.e("s_cbranch_scc1 L_exit")

def build_chain_only(path, opts, mod=None):
    A = Asm()
    k = "chain_kernel"
    header(A, [f"; @launch grid=(256,1,1) block=(256,1,1) lds=163840"])
    kstart(A, k)
    role_select(A)
    (mod or chain).gen_chain(A, opts)
    A.label("L_exit")
    A.e("s_endpgm")
    kdesc(A, k, 512, 102, 256)
    open(path, "w").write(A.text())

if __name__ == "__main__":
    build_chain_only("chain_only.s", dict(stamps=False))
    build_chain_only("chain_stamps.s", dict(stamps=True))
    build_chain_only("chain_dump.s", dict(dump=True))
    build_chain_only("chain_total.s", dict(total=True))
    build_chain_only("chain2_only.s", dict(), chain2)
    build_chain_only("chain2_stamps.s", dict(stamps=True), chain2)
    build_chain_only("chain2_total.s", dict(total=True), chain2)
    build_chain_only("chain3_only.s", dict(), chain3)
    build_chain_only("chain3_stamps.s", dict(stamps=True), chain3)
    build_chain_only("chain3_total.s", dict(total=True), chain3)
```

```python
from asm import *
from layout import *
import struct, math

S_WS = 20
WSRD = f"s[{S_WS}:{S_WS+3}]"
FORMAT = "0x00020000"

def fbits(x):
    return hex(struct.unpack("<I", struct.pack("<f", x))[0])

def load_srd(A, s, ka, nbytes):
    A.e(f"s_load_dwordx2 s[{s}:{s+1}], s[0:1], {ka}")
def finish_srd(A, s, nbytes):
    A.e(f"s_mov_b32 s{s+2}, {hex(nbytes)}")
    A.e(f"s_mov_b32 s{s+3}, {FORMAT}")

def wave_lane(A):
    A.e("v_lshrrev_b32 v1, 6, v0")
    A.e("v_and_b32 v2, 63, v0")
    A.e("v_readfirstlane_b32 s25, v1")

def xlane_sum(A, v, t):
    for ctl in ("quad_perm:[1,0,3,2]", "quad_perm:[2,3,0,1]", "row_half_mirror", "row_mirror"):
        A.e("s_nop 1")
        A.e(f"v_add_f32_dpp v{v}, v{v}, v{v} {ctl} row_mask:0xf bank_mask:0xf")
    A.e(f"v_mov_b32 v{t}, v{v}")
    A.e("s_nop 1")
    A.e(f"v_permlane16_swap_b32 v{v}, v{t}")
    A.e(f"v_add_f32 v{v}, v{v}, v{t}")
    A.e(f"v_mov_b32 v{t}, v{v}")
    A.e("s_nop 1")
    A.e(f"v_permlane32_swap_b32 v{v}, v{t}")
    A.e(f"v_add_f32 v{v}, v{v}, v{t}")

def round_bf16(A, v):
    A.e(f"v_cvt_pk_bf16_f32 v{v}, v{v}, v{v}")
    A.e(f"v_lshlrev_b32 v{v}, 16, v{v}")

def unpack8(A, src, dst):
    for j in range(4):
        A.e(f"v_lshlrev_b32 v{dst+2*j}, 16, v{src+j}")
        A.e(f"v_and_b32 v{dst+2*j+1}, 0xffff0000, v{src+j}")

def layernorm8(A, x, out, t):
    A.e(f"v_pk_add_f32 v[{t}:{t+1}], v[{x}:{x+1}], v[{x+2}:{x+3}]")
    A.e(f"v_pk_add_f32 v[{t+2}:{t+3}], v[{x+4}:{x+5}], v[{x+6}:{x+7}]")
    A.e(f"v_pk_add_f32 v[{t}:{t+1}], v[{t}:{t+1}], v[{t+2}:{t+3}]")
    A.e(f"v_add_f32 v{t}, v{t}, v{t+1}")
    xlane_sum(A, t, t + 1)
    A.e(f"v_mul_f32 v{t}, {fbits(1.0/512)}, v{t}          ; mean")
    for j in range(8):
        A.e(f"v_sub_f32 v{t+4+j}, v{x+j}, v{t}")
    A.e(f"v_mul_f32 v{t+2}, v{t+4}, v{t+4}")
    for j in range(1, 8):
        A.e(f"v_fmac_f32 v{t+2}, v{t+4+j}, v{t+4+j}")
    xlane_sum(A, t + 2, t + 3)
    A.e(f"v_mul_f32 v{t+2}, {fbits(1.0/512)}, v{t+2}      ; variance")
    round_bf16(A, t + 2)
    A.e(f"v_add_f32 v{t+2}, {fbits(1e-5)}, v{t+2}")
    round_bf16(A, t + 2)
    A.e(f"v_sqrt_f32 v{t+2}, v{t+2}")
    A.e("s_nop 0")
    round_bf16(A, t + 2)
    A.e(f"v_rcp_f32 v{t+2}, v{t+2}")
    round_bf16(A, t)
    for j in range(8):
        A.e(f"v_sub_f32 v{t+4+j}, v{x+j}, v{t}")
    for j in range(4):
        A.e(f"v_cvt_pk_bf16_f32 v{t+1}, v{t+4+2*j}, v{t+5+2*j}")
        A.e(f"v_lshlrev_b32 v{t+4+2*j}, 16, v{t+1}")
        A.e(f"v_and_b32 v{t+5+2*j}, 0xffff0000, v{t+1}")
    for j in range(8):
        A.e(f"v_mul_f32 v{t+4+j}, v{t+4+j}, v{t+2}")
    for j in range(4):
        A.e(f"v_cvt_pk_bf16_f32 v{out+j}, v{t+4+2*j}, v{t+5+2*j}")

def gen_init(A):
    A.e("s_cmp_ge_u32 s2, 256")
    A.e("s_cbranch_scc1 L0_exit")
    load_srd(A, 4, KA_X, 0); load_srd(A, 8, KA_MEM0, 0); load_srd(A, S_WS, KA_WS, 0)
    wave_lane(A)
    A.e("s_waitcnt lgkmcnt(0)")
    finish_srd(A, 4, 0x200000); finish_srd(A, 8, 0x2000); finish_srd(A, S_WS, WS_SIZE)
    A.e("v_lshlrev_b32 v3, 4, v2                 ; lane*16")
    A.e("s_lshl_b32 s27, s2, 3")
    A.e("s_lshl_b32 s28, s25, 1")
    A.e("s_add_u32 s27, s27, s28")
    A.e("s_lshl_b32 s27, s27, 10                 ; row*1024")
    A.e("buffer_load_dwordx4 v[8:11], v3, s[4:7], s27 offen")
    A.e("buffer_load_dwordx4 v[12:15], v3, s[4:7], s27 offen offset:1024")
    A.e("v_lshlrev_b32 v4, 4, v0                 ; tid*16")
    for r in range(16, 20): A.e(f"v_mov_b32 v{r}, 0")
    A.e("s_lshl_b32 s28, s2, 12")
    A.e(f"s_add_u32 s29, s28, {hex(WS_P)}")
    A.e(f"buffer_store_dwordx4 v[16:19], v4, {WSRD}, s29 offen")
    A.e("s_cmp_ge_u32 s2, 16")
    A.e("s_cbranch_scc1 L0_noflag")
    A.e(f"s_add_u32 s29, s28, {hex(WS_FLAG)}")
    A.e(f"buffer_store_dwordx4 v[16:19], v4, {WSRD}, s29 offen")
    A.label("L0_noflag")
    A.e("s_cmp_lg_u32 s2, 16")
    A.e("s_cbranch_scc1 L0_nopz")
    for r in range(20, 24): A.e(f"v_mov_b32 v{r}, -1")
    A.e(f"s_mov_b32 s29, {hex(WS_MEM + 8192)}")
    A.e(f"buffer_store_dwordx4 v[20:23], v4, {WSRD}, s29 offen")
    A.e(f"s_mov_b32 s29, {hex(WS_MEM + 8192 + 4096)}")
    A.e(f"buffer_store_dwordx4 v[20:23], v4, {WSRD}, s29 offen")
    A.label("L0_nopz")
    A.e("s_cmp_lg_u32 s2, 17")
    A.e("s_cbranch_scc1 L0_nomem")
    A.e("v_and_b32 v5, 15, v0                    ; rho")
    A.e("v_lshrrev_b32 v6, 2, v5")
    A.e("v_lshlrev_b32 v6, 1, v6")
    A.e("v_and_b32 v7, 1, v5")
    A.e("v_add_u32 v6, v6, v7                    ; i")
    A.e("v_lshlrev_b32 v6, 10, v6                ; i*1024")
    A.e("v_bfe_u32 v7, v5, 1, 1                  ; hf")
    A.e("v_lshl_add_u32 v6, v7, 5, v6            ; + hf*16*2")
    A.e("v_bfe_u32 v7, v0, 4, 1                  ; ga&1")
    A.e("v_lshl_add_u32 v6, v7, 4, v6            ; + 8*2")
    A.e("v_bfe_u32 v7, v0, 5, 1                  ; ga>>1")
    A.e("v_lshl_add_u32 v6, v7, 6, v6            ; + 32*2")
    A.e("v_lshrrev_b32 v7, 6, v0                 ; c (0..3)")
    A.e("v_lshl_add_u32 v6, v7, 7, v6            ; + 64*2*c")
    A.e("buffer_load_dwordx4 v[20:23], v6, s[8:11], 0 offen")
    A.e("buffer_load_dwordx4 v[24:27], v6, s[8:11], 0 offen offset:512")
    A.e("s_waitcnt vmcnt(0)")
    A.e(f"s_mov_b32 s29, {hex(WS_MEM)}")
    A.e(f"buffer_store_dwordx4 v[20:23], v4, {WSRD}, s29 offen")
    A.e(f"s_mov_b32 s29, {hex(WS_MEM + 4096)}")
    A.e(f"buffer_store_dwordx4 v[24:27], v4, {WSRD}, s29 offen")
    A.label("L0_nomem")
    A.e("s_waitcnt vmcnt(0)")
    A.e(f"s_add_u32 s27, s27, {hex(WS_XN)}")
    for k in range(2):
        unpack8(A, 8 + 4 * k, 32)
        layernorm8(A, 32, 28, 40)
        A.e(f"buffer_store_dwordx4 v[28:31], v3, {WSRD}, s27 offen offset:{1024*k}")
        A.e("s_nop 1")
    A.e("s_waitcnt vmcnt(0)")
    A.label("L0_exit")
    A.e("s_endpgm")

def load_weights_32col(A, srd, s_off, rowstride, nks, stage_base_s, areg0, vtmp):
    assert nks % 1 == 0
    A.e(f"v_lshrrev_b32 v{vtmp}, 2, v2")
    A.e(f"s_mov_b32 s33, {rowstride}")
    A.e(f"v_mul_lo_u32 v{vtmp}, v{vtmp}, s33")
    A.e(f"v_and_b32 v{vtmp+1}, 3, v2")
    A.e(f"v_lshl_add_u32 v{vtmp}, v{vtmp+1}, 4, v{vtmp}")
    for ks in range(nks):
        A.e(f"s_add_u32 m0, s{stage_base_s}, {ks*1024}")
        if ks: A.e(f"s_add_u32 s{s_off}, s{s_off}, {16*rowstride}")
        else: A.e("s_nop 0")
        A.e(f"buffer_load_dwordx4 v{vtmp}, s[{srd}:{srd+3}], s{s_off} offen lds")
    A.e(f"v_lshrrev_b32 v{vtmp}, 5, v2")
    A.e(f"v_lshlrev_b32 v{vtmp}, 3, v{vtmp}")
    A.e(f"v_bfe_u32 v{vtmp+1}, v2, 2, 2")
    A.e(f"v_add_u32 v{vtmp}, v{vtmp}, v{vtmp+1}")
    A.e(f"v_lshlrev_b32 v{vtmp}, 6, v{vtmp}")
    A.e(f"v_bfe_u32 v{vtmp+1}, v2, 4, 1")
    A.e(f"v_lshl_add_u32 v{vtmp}, v{vtmp+1}, 5, v{vtmp}")
    A.e(f"v_and_b32 v{vtmp+1}, 3, v2")
    A.e(f"v_lshl_add_u32 v{vtmp}, v{vtmp+1}, 3, v{vtmp}")
    A.e(f"v_add_u32 v{vtmp}, s{stage_base_s}, v{vtmp}")
    for ks in range(nks):
        if ks % 4 == 0:
            rem = nks - min(nks, ks + 4)
            A.e(f"s_waitcnt vmcnt({rem})")
        for m in range(2):
            A.e(f"ds_read_b64_tr_b16 a[{areg0+4*ks+2*m}:{areg0+4*ks+2*m+1}], v{vtmp} offset:{ks*1024 + m*256}")
        if ks % 4 == 3 or ks == nks - 1:
            A.e("s_waitcnt lgkmcnt(0)")

def gen_proj(A, L, cfg):
    BUF = [0, 33280]; OST = 66560; ORS = 272
    ws, seg_stride = cfg["wstride"], cfg["seg_stride"]
    A.e(f"s_cmp_ge_u32 s26, 64")
    A.e(f"s_cbranch_scc1 {L}_exit")
    A.e("s_lshl_b32 s29, s25, 6")
    A.e("s_add_u32 s29, s29, s24")
    A.e("s_lshl_b32 s30, s25, 15")
    load_weights_32col(A, 4, 29, ws, 32, 30, 0, 8)
    A.e("s_barrier")
    A.e("v_lshlrev_b32 v3, 4, v2                 ; lane*16")
    A.e("v_and_b32 v4, 31, v2")
    A.e("s_movk_i32 s33, 1040")
    A.e("v_mul_lo_u32 v4, v4, s33")
    A.e("v_lshrrev_b32 v5, 5, v2                 ; hi")
    A.e("v_lshl_add_u32 v4, v5, 4, v4")
    A.e("v_and_b32 v6, 31, v2")
    A.e(f"s_movk_i32 s33, {ORS}")
    A.e("v_mul_lo_u32 v6, v6, s33")
    A.e("v_lshl_add_u32 v6, v5, 3, v6")
    A.e("s_lshl_b32 s33, s25, 6")
    A.e(f"s_add_u32 s33, s33, {OST}")
    A.e("v_add_u32 v6, s33, v6")
    A.e("v_lshrrev_b32 v7, 4, v2")
    A.e("s_lshl_b32 s33, s25, 3")
    A.e("v_add_u32 v7, s33, v7                   ; row")
    A.e("v_and_b32 v8, 15, v2")
    A.e(f"s_movk_i32 s33, {ORS}")
    A.e("v_mul_lo_u32 v9, v7, s33")
    A.e("v_lshl_add_u32 v9, v8, 4, v9")
    A.e(f"v_add_u32 v9, {OST}, v9")
    A.e(f"s_mov_b32 s33, {cfg['out_row']}")
    A.e("v_mul_lo_u32 v10, v7, s33")
    A.e("v_lshl_add_u32 v10, v8, 4, v10")
    def dma(buf_s):
        A.e("s_lshl_b32 s33, s31, 5")
        A.e("s_lshl_b32 s34, s25, 3")
        A.e("s_add_u32 s33, s33, s34")
        A.e("s_lshl_b32 s33, s33, 10")
        A.e(f"s_add_u32 s33, s33, {hex(cfg['a_base'])}")
        A.e("s_mul_i32 s34, s34, 1040")
        A.e(f"s_add_u32 s34, s34, s{buf_s}")
        for r in range(8):
            A.e(f"s_add_u32 m0, s34, {r*1040}")
            if r: A.e("s_add_u32 s33, s33, 1024")
            else: A.e("s_nop 0")
            A.e(f"buffer_load_dwordx4 v3, {WSRD}, s33 offen sc1 lds")
    A.e("s_mov_b32 s35, 0")
    A.e("s_mov_b32 s31, s26")
    if cfg.get("wait_in"): cfg["wait_in"](A, 31)
    dma(35)
    A.label(f"{L}_loop")
    A.e("s_waitcnt vmcnt(0)")
    A.e("s_barrier")
    A.e(f"s_xor_b32 s36, s35, {BUF[1]}")
    A.e(f"s_add_u32 s31, s26, {seg_stride}")
    A.e("s_cmp_ge_u32 s31, 64")
    A.e(f"s_cbranch_scc1 {L}_nodma")
    if cfg.get("wait_in"): cfg["wait_in"](A, 31)
    dma(36)
    A.label(f"{L}_nodma")
    A.e("v_add_u32 v11, s35, v4")
    for ks in range(4):
        A.e(f"ds_read_b128 v[{32+4*ks}:{35+4*ks}], v11 offset:{ks*32}")
    for ks in range(32):
        A.e(f"s_waitcnt lgkmcnt({min(3, 31-ks)})")
        c = "0" if ks == 0 else "v[16:31]"
        b = 32 + 4 * (ks % 5)
        A.e(f"v_mfma_f32_32x32x16_bf16 v[16:31], a[{4*ks}:{4*ks+3}], v[{b}:{b+3}], {c}")
        if ks + 4 < 32:
            b2 = 32 + 4 * ((ks + 4) % 5)
            A.e(f"ds_read_b128 v[{b2}:{b2+3}], v11 offset:{(ks+4)*32}")
    A.e("s_nop 7")
    A.e("s_nop 4")
    for j in range(8):
        A.e(f"v_cvt_pk_bf16_f32 v{52+j}, v{16+2*j}, v{17+2*j}")
    if cfg.get("relu"):
        for j in range(8):
            A.e(f"v_pk_max_i16 v{52+j}, v{52+j}, 0")
    for q in range(4):
        A.e(f"ds_write_b64 v6, v[{52+2*q}:{53+2*q}] offset:{16*q}")
    A.e("s_waitcnt lgkmcnt(0)")
    A.e("s_barrier")
    A.e("ds_read_b128 v[32:35], v9")
    A.e(f"ds_read_b128 v[36:39], v9 offset:{4*ORS}")
    A.e(f"s_mul_i32 s33, s26, {cfg['out_seg']}")
    A.e("s_add_u32 s33, s33, s28")
    A.e(f"s_add_u32 s34, s33, {4*cfg['out_row']}")
    A.e("s_waitcnt lgkmcnt(0)")
    A.e(f"buffer_store_dwordx4 v[32:35], v10, {WSRD}, s33 offen sc1")
    A.e(f"buffer_store_dwordx4 v[36:39], v10, {WSRD}, s34 offen sc1")
    if cfg.get("signal"): cfg["signal"](A, L)
    A.e("s_mov_b32 s35, s36")
    A.e(f"s_add_u32 s26, s26, {seg_stride}")
    A.e("s_cmp_lt_u32 s26, 64")
    A.e(f"s_cbranch_scc1 {L}_loop")
    A.e("s_waitcnt vmcnt(0)")

CSCALE = struct.unpack("<I", struct.pack("<f", (128 ** -0.5) * math.log2(math.e)))[0]

def gen_attn(A, L, cfg):
    seg_stride = cfg["seg_stride"]
    VS = 0; KT = 0x2000; OST = 0x3000; ORS = 272
    A.e("s_cmp_ge_u32 s26, 64")
    A.e(f"s_cbranch_scc1 {L}_exit")
    A.e("s_and_b32 s27, s25, 1                   ; qt")
    A.e("s_lshr_b32 s28, s25, 1                  ; dhh")
    A.e("v_and_b32 v3, 15, v2                    ; n")
    A.e("v_lshrrev_b32 v4, 4, v2                 ; g")
    A.e("v_bfe_u32 v5, v2, 2, 2                  ; r")
    A.e("v_and_b32 v6, 3, v2                     ; cq")
    A.e("v_lshlrev_b32 v7, 4, v2                 ; l*16")
    A.e("v_lshlrev_b32 v8, 8, v3")
    A.e("v_lshl_add_u32 v8, v4, 4, v8")
    A.e("s_lshl_b32 s33, s25, 5")
    A.e("v_add_u32 v9, s33, v3")
    A.e("v_lshlrev_b32 v9, 5, v9")
    A.e("v_lshrrev_b32 v10, 1, v9")
    A.e("v_and_b32 v10, 128, v10")
    A.e("v_xor_b32 v9, v9, v10")
    A.e("v_lshl_add_u32 v9, v4, 3, v9")
    A.e(f"v_add_u32 v9, {KT}, v9")
    A.e("v_lshlrev_b32 v10, 3, v4")
    A.e("v_add_u32 v10, v10, v5")
    A.e("v_lshlrev_b32 v10, 5, v10")
    A.e("v_lshrrev_b32 v11, 1, v10")
    A.e("v_and_b32 v11, 128, v11")
    A.e("v_xor_b32 v10, v10, v11")
    A.e("v_lshl_add_u32 v10, v6, 3, v10")
    A.e(f"v_add_u32 v10, {KT}, v10")
    A.e("v_xor_b32 v11, 128, v10")
    A.e("v_lshlrev_b32 v12, 2, v4")
    A.e("v_add_u32 v12, v12, v5")
    A.e("v_and_b32 v13, 7, v12")
    A.e("s_lshl_b32 s33, s28, 2")
    A.e("v_xor_b32 v13, s33, v13")
    A.e("v_lshlrev_b32 v13, 5, v13")
    A.e("v_lshl_add_u32 v12, v12, 8, v13")
    A.e("v_lshl_add_u32 v12, v6, 3, v12")
    A.e(f"v_add_u32 v12, {VS}, v12")
    A.e("v_lshrrev_b32 v13, 1, v3")
    A.e("v_xor_b32 v13, v13, v4")
    A.e("v_lshlrev_b32 v13, 5, v13")
    A.e("v_lshl_add_u32 v13, v4, 8, v13")
    A.e("v_and_b32 v14, 1, v2")
    A.e("v_lshl_add_u32 v13, v14, 4, v13")
    A.e("v_xor_b32 v14, 128, v13")
    A.e("s_lshl_b32 s33, s27, 4")
    A.e("v_add_u32 v15, s33, v3")
    A.e(f"s_movk_i32 s33, {ORS}")
    A.e("v_mul_lo_u32 v15, v15, s33")
    A.e("v_lshl_add_u32 v15, v4, 3, v15")
    A.e("s_lshl_b32 s33, s28, 7")
    A.e(f"s_add_u32 s33, s33, {OST}")
    A.e("v_add_u32 v15, s33, v15")
    A.e("s_lshl_b32 s33, s25, 3")
    A.e("v_add_u32 v17, s33, v4                  ; row = 8w + (l>>4)")
    A.e(f"s_movk_i32 s33, {ORS}")
    A.e("v_mul_lo_u32 v16, v17, s33")
    A.e("v_lshl_add_u32 v16, v3, 4, v16")
    A.e(f"v_add_u32 v16, {OST}, v16")
    A.e("v_lshlrev_b32 v17, 13, v17")
    A.e("v_lshl_add_u32 v17, v3, 4, v17")
    A.e("s_lshl_b32 s33, s27, 4")
    A.e("v_add_u32 v18, s33, v3")
    A.e("v_lshlrev_b32 v19, 2, v4")
    A.e("v_sub_u32 v18, v18, v19")
    for kt in range(2):
        for r in range(4):
            A.e(f"v_cmp_le_i32 s[{40+2*(4*kt+r)}:{41+2*(4*kt+r)}], {16*kt+r}, v18")
    A.e(f"s_mov_b32 s56, {hex(CSCALE)}")
    A.e(f"s_mov_b32 s57, {hex(CSCALE)}")
    A.e(f"v_mov_b32 v18, {fbits(-1e30)}")
    A.e("v_mov_b32 v21, 0                        ; [PM,0] = v[20:21]")
    A.e("v_mov_b32 v22, 0                        ; [0,PM] = v[22:23]")
    A.label(f"{L}_loop")
    if cfg.get("wait_in"): cfg["wait_in"](A, 26)
    A.e("s_lshl_b32 s33, s26, 5")
    A.e("s_add_u32 s33, s33, s24                 ; s*32+h")
    A.e("s_lshl_b32 s34, s33, 13")
    A.e(f"s_add_u32 s35, s34, {hex(WS_KX)}")
    A.e("s_add_u32 s36, s35, 4096")
    for kt in range(2):
        for ks in range(4):
            A.e(f"buffer_load_dwordx4 v[{32+16*kt+4*ks}:{35+16*kt+4*ks}], v8, {WSRD}, s{35+kt} offen offset:{64*ks} sc1")
    A.e("s_lshl_b32 s37, s27, 12")
    A.e("s_add_u32 s37, s37, s34")
    A.e(f"s_add_u32 s37, s37, {hex(WS_QX)}")
    for ks in range(4):
        A.e(f"buffer_load_dwordx4 v[{64+4*ks}:{67+4*ks}], v8, {WSRD}, s37 offen offset:{64*ks} sc1")
    A.e("s_lshl_b32 s38, s33, 12")
    A.e(f"s_add_u32 s38, s38, {hex(WS_KMVM)}")
    A.e("s_lshl_b32 s39, s25, 10")
    A.e("s_add_u32 s39, s39, s38")
    A.e(f"buffer_load_dwordx2 v[24:25], v7, {WSRD}, s39 offen sc1")
    A.e("s_lshl_b32 s39, s28, 11")
    A.e("s_add_u32 s39, s39, s38")
    A.e(f"buffer_load_dwordx2 v[26:27], v7, {WSRD}, s39 offen offset:8 sc1")
    A.e(f"buffer_load_dwordx2 v[28:29], v7, {WSRD}, s39 offen offset:1032 sc1")
    A.e("s_lshl_b32 s39, s25, 11")
    A.e("s_add_u32 s35, s34, s39")
    A.e(f"s_add_u32 s35, s35, {hex(WS_VX)}")
    A.e(f"s_add_u32 m0, s39, {VS}")
    A.e("s_nop 0")
    A.e(f"buffer_load_dwordx4 v13, {WSRD}, s35 offen sc1 lds")
    A.e("s_add_u32 s35, s35, 1024")
    A.e(f"s_add_u32 m0, s39, {VS + 1024}")
    A.e("s_nop 0")
    A.e(f"buffer_load_dwordx4 v14, {WSRD}, s35 offen sc1 lds")
    A.e("s_waitcnt vmcnt(0)")
    A.e("ds_write2st64_b32 v9, v24, v25 offset0:0 offset1:2")
    A.e("s_waitcnt lgkmcnt(0)")
    A.e("s_barrier")
    for ks in range(4):
        A.e(f"ds_read_b64_tr_b16 v[{80+4*ks}:{81+4*ks}], v10 offset:{1024*ks}")
        A.e(f"ds_read_b64_tr_b16 v[{82+4*ks}:{83+4*ks}], v11 offset:{1024*ks}")
    for ks in range(4):
        for kt in range(2):
            c = "0" if ks == 0 else f"v[{96+4*kt}:{99+4*kt}]"
            A.e(f"v_mfma_f32_16x16x32_bf16 v[{96+4*kt}:{99+4*kt}], v[{32+16*kt+4*ks}:{35+16*kt+4*ks}], v[{64+4*ks}:{67+4*ks}], {c}")
    A.e("s_waitcnt lgkmcnt(0)")
    for ks in range(4):
        c = "0" if ks == 0 else "v[104:107]"
        A.e(f"v_mfma_f32_16x16x32_bf16 v[104:107], v[{80+4*ks}:{83+4*ks}], v[{64+4*ks}:{67+4*ks}], {c}")
    for tp in range(4):
        if tp == 0:
            ad = 12
        else:
            A.e(f"v_xor_b32 v19, {tp << 5}, v12")
            ad = 19
        for kt in range(2):
            A.e(f"ds_read_b64_tr_b16 v[{32+4*tp+2*kt}:{33+4*tp+2*kt}], v{ad} offset:{4096*kt}")
    A.e("s_nop 3")
    for kt in range(2):
        for r in range(4):
            A.e(f"v_cndmask_b32 v{96+4*kt+r}, v18, v{96+4*kt+r}, s[{40+2*(4*kt+r)}:{41+2*(4*kt+r)}]")
    A.e("v_max3_f32 v48, v96, v97, v98")
    A.e("v_max3_f32 v49, v99, v100, v101")
    A.e("v_max3_f32 v48, v48, v102, v103")
    A.e("v_max3_f32 v49, v49, v104, v105")
    A.e("v_max_f32 v50, v48, v49")
    A.e("v_max_f32 v51, v48, v49")
    A.e("s_nop 1")
    A.e("v_permlane32_swap_b32 v50, v51")
    A.e("v_max_f32 v48, v50, v51")
    A.e("v_max_f32 v49, v50, v51")
    A.e("s_nop 1")
    A.e("v_permlane16_swap_b32 v48, v49")
    A.e("v_max_f32 v48, v48, v49")
    A.e("v_mul_f32 v48, s56, v48")
    for j in range(5):
        A.e(f"v_pk_fma_f32 v[{96+2*j}:{97+2*j}], v[{96+2*j}:{97+2*j}], s[56:57], v[48:49] op_sel_hi:[1,1,0] neg_lo:[0,0,1] neg_hi:[0,0,1]")
    for j in range(10):
        A.e(f"v_exp_f32 v{96+j}, v{96+j}")
    A.e("s_nop 0")
    for j in range(4):
        A.e(f"v_cvt_pk_bf16_f32 v{48+j}, v{96+2*j}, v{97+2*j}")
    A.e("v_cvt_pk_bf16_f32 v20, v104, v105")
    A.e("v_cvt_pk_bf16_f32 v23, v104, v105")
    A.e("s_waitcnt lgkmcnt(0)")
    A.e("s_nop 0")
    for tp in range(4):
        A.e(f"v_mfma_f32_16x16x32_bf16 v[{64+4*tp}:{67+4*tp}], v[{32+4*tp}:{35+4*tp}], v[48:51], 0")
    for tp in range(4):
        vp = 26 + 2 * (tp >> 1)
        pm = 20 if tp % 2 == 0 else 22
        A.e(f"v_mfma_f32_16x16x16_bf16 v[{64+4*tp}:{67+4*tp}], v[{vp}:{vp+1}], v[{pm}:{pm+1}], v[{64+4*tp}:{67+4*tp}]")
    A.e("v_pk_add_f32 v[52:53], v[96:97], v[98:99]")
    A.e("v_pk_add_f32 v[54:55], v[100:101], v[102:103]")
    A.e("v_pk_add_f32 v[52:53], v[52:53], v[104:105]")
    A.e("v_pk_add_f32 v[52:53], v[52:53], v[54:55]")
    A.e("v_add_f32 v54, v52, v53")
    A.e("v_add_f32 v55, v52, v53")
    A.e("s_nop 1")
    A.e("v_permlane32_swap_b32 v54, v55")
    A.e("v_add_f32 v52, v54, v55")
    A.e("v_add_f32 v53, v54, v55")
    A.e("s_nop 1")
    A.e("v_permlane16_swap_b32 v52, v53")
    A.e("v_add_f32 v52, v52, v53")
    A.e("v_rcp_f32 v52, v52")
    A.e("s_nop 3")
    for j in range(8):
        A.e(f"v_pk_mul_f32 v[{64+2*j}:{65+2*j}], v[{64+2*j}:{65+2*j}], v[52:53] op_sel_hi:[1,0]")
    for j in range(8):
        A.e(f"v_cvt_pk_bf16_f32 v{80+j}, v{64+2*j}, v{65+2*j}")
    for tp in range(4):
        A.e(f"ds_write_b64 v15, v[{80+2*tp}:{81+2*tp}] offset:{32*tp}")
    A.e("s_waitcnt lgkmcnt(0)")
    A.e("s_barrier")
    A.e("ds_read_b128 v[32:35], v16")
    A.e(f"ds_read_b128 v[36:39], v16 offset:{4*ORS}")
    A.e("s_lshl_b32 s33, s26, 18                 ; s*32 rows*8192")
    A.e("s_lshl_b32 s34, s24, 8")
    A.e("s_add_u32 s33, s33, s34")
    A.e(f"s_add_u32 s33, s33, {hex(WS_O)}")
    A.e("s_add_u32 s34, s33, 0x8000")
    A.e("s_waitcnt lgkmcnt(0)")
    A.e(f"buffer_store_dwordx4 v[32:35], v17, {WSRD}, s33 offen sc1")
    A.e(f"buffer_store_dwordx4 v[36:39], v17, {WSRD}, s34 offen sc1")
    if cfg.get("signal"): cfg["signal"](A, L)
    A.e("s_barrier")
    A.e(f"s_add_u32 s26, s26, {seg_stride}")
    A.e("s_cmp_lt_u32 s26, 64")
    A.e(f"s_cbranch_scc1 {L}_loop")
    A.e("s_waitcnt vmcnt(0)")

def gen_wo(A, L, cfg):
    seg_stride = cfg["seg_stride"]
    RS = 2064; BUF1 = 32 * RS; OST = 2 * BUF1; ORS = 272
    A.e("s_cmp_ge_u32 s26, 64")
    A.e(f"s_cbranch_scc1 {L}_exit")
    A.e("s_lshr_b32 s27, s24, 3                  ; kq")
    A.e("s_and_b32 s28, s24, 7                   ; nb")
    A.e("s_and_b32 s37, s25, 1                   ; nh")
    A.e("s_lshr_b32 s38, s25, 1                  ; kh")
    A.e("s_lshl_b32 s29, s27, 20")
    A.e("s_lshl_b32 s33, s38, 19")
    A.e("s_add_u32 s29, s29, s33")
    A.e("s_lshl_b32 s33, s28, 7")
    A.e("s_add_u32 s29, s29, s33")
    A.e("s_lshl_b32 s33, s37, 6")
    A.e("s_add_u32 s29, s29, s33")
    A.e("s_lshl_b32 s30, s25, 15")
    load_weights_32col(A, 4, 29, 1024, 32, 30, 0, 8)
    A.e("s_barrier")
    A.e("v_lshlrev_b32 v3, 4, v2")
    A.e("v_and_b32 v4, 31, v2")
    A.e(f"s_movk_i32 s33, {RS}")
    A.e("v_mul_lo_u32 v4, v4, s33")
    A.e("v_lshrrev_b32 v5, 5, v2                 ; hi")
    A.e("v_lshl_add_u32 v4, v5, 4, v4")
    A.e("s_lshl_b32 s33, s38, 10")
    A.e("v_add_u32 v4, s33, v4")
    A.e("v_and_b32 v6, 31, v2")
    A.e(f"s_movk_i32 s33, {ORS}")
    A.e("v_mul_lo_u32 v6, v6, s33")
    A.e("v_lshl_add_u32 v6, v5, 4, v6")
    A.e(f"s_mul_i32 s33, s38, {32*ORS}")
    A.e("s_lshl_b32 s34, s37, 7")
    A.e("s_add_u32 s33, s33, s34")
    A.e(f"s_add_u32 s33, s33, {OST}")
    A.e("v_add_u32 v6, s33, v6")
    A.e("v_lshrrev_b32 v7, 4, v2")
    A.e("s_lshl_b32 s33, s25, 3")
    A.e("v_add_u32 v7, s33, v7")
    A.e("v_and_b32 v8, 15, v2")
    A.e(f"s_movk_i32 s33, {ORS}")
    A.e("v_mul_lo_u32 v9, v7, s33")
    A.e("v_lshl_add_u32 v9, v8, 4, v9")
    A.e(f"v_add_u32 v9, {OST}, v9")
    A.e("v_lshlrev_b32 v10, 11, v7               ; row*2048")
    A.e("v_lshl_add_u32 v10, v8, 4, v10")
    def dma(buf_s):
        A.e("s_lshl_b32 s33, s31, 5")
        A.e("s_lshl_b32 s34, s25, 3")
        A.e("s_add_u32 s33, s33, s34")
        A.e("s_lshl_b32 s33, s33, 13             ; row*8192")
        A.e("s_lshl_b32 s39, s27, 11")
        A.e("s_add_u32 s33, s33, s39")
        A.e(f"s_add_u32 s33, s33, {hex(WS_O)}")
        A.e(f"s_mul_i32 s34, s34, {RS}")
        A.e(f"s_add_u32 s34, s34, s{buf_s}")
        for r in range(8):
            for hh in range(2):
                A.e(f"s_add_u32 m0, s34, {r*RS + hh*1024}")
                A.e(f"s_add_u32 s39, s33, {r*8192 + hh*1024}")
                A.e(f"buffer_load_dwordx4 v3, {WSRD}, s39 offen sc1 lds")
    A.e("s_mov_b32 s35, 0")
    A.e("s_mov_b32 s31, s26")
    if cfg.get("wait_in"): cfg["wait_in"](A, 31)
    dma(35)
    A.label(f"{L}_loop")
    A.e("s_waitcnt vmcnt(0)")
    A.e("s_barrier")
    A.e(f"s_xor_b32 s36, s35, {BUF1}")
    A.e(f"s_add_u32 s31, s26, {seg_stride}")
    A.e("s_cmp_ge_u32 s31, 64")
    A.e(f"s_cbranch_scc1 {L}_nodma")
    if cfg.get("wait_in"): cfg["wait_in"](A, 31)
    dma(36)
    A.label(f"{L}_nodma")
    A.e("v_add_u32 v11, s35, v4")
    for ks in range(4):
        A.e(f"ds_read_b128 v[{32+4*ks}:{35+4*ks}], v11 offset:{ks*32}")
    for ks in range(32):
        A.e(f"s_waitcnt lgkmcnt({min(3, 31-ks)})")
        c = "0" if ks == 0 else "v[16:31]"
        b = 32 + 4 * (ks % 5)
        A.e(f"v_mfma_f32_32x32x16_bf16 v[16:31], a[{4*ks}:{4*ks+3}], v[{b}:{b+3}], {c}")
        if ks + 4 < 32:
            b2 = 32 + 4 * ((ks + 4) % 5)
            A.e(f"ds_read_b128 v[{b2}:{b2+3}], v11 offset:{(ks+4)*32}")
    A.e("s_nop 7")
    A.e("s_nop 4")
    for q in range(4):
        A.e(f"ds_write_b128 v6, v[{16+4*q}:{19+4*q}] offset:{32*q}")
    A.e("s_waitcnt lgkmcnt(0)")
    A.e("s_barrier")
    A.e("ds_read_b128 v[32:35], v9")
    A.e(f"ds_read_b128 v[36:39], v9 offset:{32*ORS}")
    A.e(f"ds_read_b128 v[40:43], v9 offset:{4*ORS}")
    A.e(f"ds_read_b128 v[44:47], v9 offset:{36*ORS}")
    A.e("s_lshl_b32 s33, s27, 22")
    A.e("s_lshl_b32 s34, s26, 16")
    A.e("s_add_u32 s33, s33, s34")
    A.e("s_lshl_b32 s34, s28, 8")
    A.e("s_add_u32 s33, s33, s34")
    A.e(f"s_add_u32 s33, s33, {hex(WS_PART)}")
    A.e("s_add_u32 s34, s33, 8192")
    A.e("s_waitcnt lgkmcnt(0)")
    A.e("v_pk_add_f32 v[32:33], v[32:33], v[36:37]")
    A.e("v_pk_add_f32 v[34:35], v[34:35], v[38:39]")
    A.e("v_pk_add_f32 v[40:41], v[40:41], v[44:45]")
    A.e("v_pk_add_f32 v[42:43], v[42:43], v[46:47]")
    A.e(f"buffer_store_dwordx4 v[32:35], v10, {WSRD}, s33 offen sc1")
    A.e(f"buffer_store_dwordx4 v[40:43], v10, {WSRD}, s34 offen sc1")
    if cfg.get("signal"): cfg["signal"](A, L)
    A.e("s_mov_b32 s35, s36")
    A.e(f"s_add_u32 s26, s26, {seg_stride}")
    A.e("s_cmp_lt_u32 s26, 64")
    A.e(f"s_cbranch_scc1 {L}_loop")
    A.e("s_waitcnt vmcnt(0)")

def gen_red(A, L, cfg):
    st = cfg["grp_stride"]
    A.e("s_cmp_ge_u32 s26, 512")
    A.e(f"s_cbranch_scc1 {L}_exit")
    A.e("v_lshlrev_b32 v3, 4, v2                 ; l*16")
    A.e("v_lshlrev_b32 v4, 5, v2                 ; l*32")
    A.label(f"{L}_loop")
    if cfg.get("wait_in"): cfg["wait_in"](A, 26)
    A.e("s_lshl_b32 s27, s26, 2")
    A.e("s_add_u32 s27, s27, s25                 ; row")
    A.e("s_lshl_b32 s28, s27, 10")
    A.e("buffer_load_dwordx4 v[8:11], v3, s[4:7], s28 offen")
    A.e("s_lshl_b32 s29, s27, 11")
    A.e(f"s_add_u32 s29, s29, {hex(WS_PART)}")
    for kq in range(4):
        A.e(f"buffer_load_dwordx4 v[{16+8*kq}:{19+8*kq}], v4, {WSRD}, s29 offen sc1")
        A.e(f"buffer_load_dwordx4 v[{20+8*kq}:{23+8*kq}], v4, {WSRD}, s29 offen offset:16 sc1")
        if kq < 3: A.e("s_add_u32 s29, s29, 0x400000")
    A.e("s_waitcnt vmcnt(0)")
    for j in range(4):
        A.e(f"v_pk_add_f32 v[{16+2*j}:{17+2*j}], v[{16+2*j}:{17+2*j}], v[{24+2*j}:{25+2*j}]")
        A.e(f"v_pk_add_f32 v[{32+2*j}:{33+2*j}], v[{32+2*j}:{33+2*j}], v[{40+2*j}:{41+2*j}]")
    for j in range(4):
        A.e(f"v_pk_add_f32 v[{16+2*j}:{17+2*j}], v[{16+2*j}:{17+2*j}], v[{32+2*j}:{33+2*j}]")
    for j in range(4):
        A.e(f"v_cvt_pk_bf16_f32 v{24+j}, v{16+2*j}, v{17+2*j}")
    unpack8(A, 24, 32)
    unpack8(A, 8, 40)
    for j in range(4):
        A.e(f"v_pk_add_f32 v[{32+2*j}:{33+2*j}], v[{32+2*j}:{33+2*j}], v[{40+2*j}:{41+2*j}]")
    for j in range(4):
        A.e(f"v_cvt_pk_bf16_f32 v{24+j}, v{32+2*j}, v{33+2*j}")
    A.e(f"s_add_u32 s29, s28, {hex(WS_H)}")
    A.e(f"buffer_store_dwordx4 v[24:27], v3, {WSRD}, s29 offen sc1")
    unpack8(A, 24, 32)
    layernorm8(A, 32, 12, 48)
    A.e(f"s_add_u32 s29, s28, {hex(WS_HN)}")
    A.e(f"buffer_store_dwordx4 v[12:15], v3, {WSRD}, s29 offen sc1")
    if cfg.get("signal"): cfg["signal"](A, L)
    A.e(f"s_add_u32 s26, s26, {st}")
    A.e("s_cmp_lt_u32 s26, 512")
    A.e(f"s_cbranch_scc1 {L}_loop")
    A.e("s_waitcnt vmcnt(0)")

def gen_ffn2(A, L, cfg):
    seg_stride = cfg["seg_stride"]
    RS = 912; WB = 32 * RS; OST = 4 * WB; ORS = 144
    A.e("s_cmp_ge_u32 s26, 64")
    A.e(f"s_cbranch_scc1 {L}_exit")
    A.e("s_mul_i32 s29, s25, %d" % (448 * 1024))
    A.e("s_lshl_b32 s33, s24, 6")
    A.e("s_add_u32 s29, s29, s33")
    A.e("s_mul_i32 s30, s25, %d" % WB)
    load_weights_32col(A, 4, 29, 1024, 28, 30, 0, 8)
    A.e("s_barrier")
    A.e("v_lshlrev_b32 v3, 4, v2")
    A.e("v_and_b32 v4, 31, v2")
    A.e(f"s_movk_i32 s33, {RS}")
    A.e("v_mul_lo_u32 v4, v4, s33")
    A.e("v_lshrrev_b32 v5, 5, v2")
    A.e("v_lshl_add_u32 v4, v5, 4, v4")
    A.e("v_add_u32 v4, s30, v4")
    A.e("v_and_b32 v6, 31, v2")
    A.e(f"s_movk_i32 s33, {ORS}")
    A.e("v_mul_lo_u32 v6, v6, s33")
    A.e("v_lshl_add_u32 v6, v5, 4, v6")
    A.e(f"s_mul_i32 s33, s25, {32*ORS}")
    A.e(f"s_add_u32 s33, s33, {OST}")
    A.e("v_add_u32 v6, s33, v6")
    A.e("v_lshrrev_b32 v7, 3, v0")
    A.e("v_and_b32 v8, 7, v0")
    A.e(f"s_movk_i32 s33, {ORS}")
    A.e("v_mul_lo_u32 v9, v7, s33")
    A.e("v_lshl_add_u32 v9, v8, 4, v9")
    A.e(f"v_add_u32 v9, {OST}, v9")
    A.e("v_lshlrev_b32 v10, 10, v7")
    A.e("v_lshl_add_u32 v10, v8, 3, v10")
    A.label(f"{L}_loop")
    if cfg.get("wait_in"): cfg["wait_in"](A, 26)
    A.e("s_mul_i32 s33, s26, %d" % (32 * 3584))
    A.e("s_mul_i32 s34, s25, 896")
    A.e("s_add_u32 s33, s33, s34")
    A.e(f"s_add_u32 s33, s33, {hex(WS_A1)}")
    A.e("s_mov_b32 exec_hi, 0x00ffffff")
    for r in range(32):
        A.e(f"s_add_u32 m0, s30, {r*RS}")
        if r: A.e("s_add_u32 s33, s33, 3584")
        else: A.e("s_nop 0")
        A.e(f"buffer_load_dwordx4 v3, {WSRD}, s33 offen sc1 lds")
    A.e("s_mov_b32 exec_hi, -1")
    A.e("s_lshl_b32 s34, s26, 15")
    A.e("s_lshl_b32 s35, s24, 6")
    A.e("s_add_u32 s34, s34, s35")
    A.e(f"s_add_u32 s35, s34, {hex(WS_H)}")
    A.e(f"buffer_load_dwordx2 v[12:13], v10, {WSRD}, s35 offen sc1")
    A.e("s_waitcnt vmcnt(0)")
    for ks in range(4):
        A.e(f"ds_read_b128 v[{32+4*ks}:{35+4*ks}], v4 offset:{ks*32}")
    for ks in range(28):
        A.e(f"s_waitcnt lgkmcnt({min(3, 27-ks)})")
        c = "0" if ks == 0 else "v[16:31]"
        b = 32 + 4 * (ks % 5)
        A.e(f"v_mfma_f32_32x32x16_bf16 v[16:31], a[{4*ks}:{4*ks+3}], v[{b}:{b+3}], {c}")
        if ks + 4 < 28:
            b2 = 32 + 4 * ((ks + 4) % 5)
            A.e(f"ds_read_b128 v[{b2}:{b2+3}], v4 offset:{(ks+4)*32}")
    A.e("s_nop 7")
    A.e("s_nop 4")
    for q in range(4):
        A.e(f"ds_write_b128 v6, v[{16+4*q}:{19+4*q}] offset:{32*q}")
    A.e("s_waitcnt lgkmcnt(0)")
    A.e("s_barrier")
    for w in range(4):
        A.e(f"ds_read_b128 v[{32+4*w}:{35+4*w}], v9 offset:{w*32*ORS}")
    A.e("s_waitcnt lgkmcnt(0)")
    for j in range(2):
        A.e(f"v_pk_add_f32 v[{32+2*j}:{33+2*j}], v[{32+2*j}:{33+2*j}], v[{36+2*j}:{37+2*j}]")
        A.e(f"v_pk_add_f32 v[{40+2*j}:{41+2*j}], v[{40+2*j}:{41+2*j}], v[{44+2*j}:{45+2*j}]")
    for j in range(2):
        A.e(f"v_pk_add_f32 v[{32+2*j}:{33+2*j}], v[{32+2*j}:{33+2*j}], v[{40+2*j}:{41+2*j}]")
    A.e("v_cvt_pk_bf16_f32 v36, v32, v33")
    A.e("v_cvt_pk_bf16_f32 v37, v34, v35")
    for j in range(2):
        A.e(f"v_lshlrev_b32 v{32+2*j}, 16, v{36+j}")
        A.e(f"v_and_b32 v{33+2*j}, 0xffff0000, v{36+j}")
        A.e(f"v_lshlrev_b32 v{40+2*j}, 16, v{12+j}")
        A.e(f"v_and_b32 v{41+2*j}, 0xffff0000, v{12+j}")
    A.e("v_pk_add_f32 v[32:33], v[32:33], v[40:41]")
    A.e("v_pk_add_f32 v[34:35], v[34:35], v[42:43]")
    A.e("v_cvt_pk_bf16_f32 v36, v32, v33")
    A.e("v_cvt_pk_bf16_f32 v37, v34, v35")
    A.e("buffer_store_dwordx2 v[36:37], v10, s[8:11], s34 offen")
    A.e("s_barrier")
    A.e(f"s_add_u32 s26, s26, {seg_stride}")
    A.e("s_cmp_lt_u32 s26, 64")
    A.e(f"s_cbranch_scc1 {L}_loop")
    A.e("s_waitcnt vmcnt(0)")
```

```python
import sys
from asm import *
from layout import *
import roles, chain3
from main import header, kstart, kdesc, role_select

def bulk_kernel(A, name, L, pre, body, vgpr=512, accum=256):
    kstart(A, name)
    pre()
    body()
    A.label(f"{L}_exit")
    A.e("s_endpgm")

def common_pre(A, L, nwg, srds):
    A.e(f"s_cmp_ge_u32 s2, {nwg}")
    A.e(f"s_cbranch_scc1 {L}_exit")
    for s, ka, n in srds: roles.load_srd(A, s, ka, n)
    roles.load_srd(A, roles.S_WS, KA_WS, 0)
    roles.wave_lane(A)
    A.e("s_waitcnt lgkmcnt(0)")
    for s, ka, n in srds: roles.finish_srd(A, s, n)
    roles.finish_srd(A, roles.S_WS, WS_SIZE)

def build_bulk(path, opts):
    A = Asm()
    launches = [
        "; @launch kernel=k0_init_kernel grid=(256,1,1) block=(256,1,1) lds=0",
        "; @launch kernel=k1_proj_kernel grid=(192,1,1) block=(256,1,1) lds=131072",
        "; @launch kernel=k2_chain_kernel grid=(256,1,1) block=(256,1,1) lds=163840",
        "; @launch kernel=k3_attn_kernel grid=(256,1,1) block=(256,1,1) lds=24576",
        "; @launch kernel=k4_wo_kernel grid=(256,1,1) block=(256,1,1) lds=163840",
        "; @launch kernel=k5_red_kernel grid=(256,1,1) block=(256,1,1) lds=0",
        "; @launch kernel=k6_ffn1_kernel grid=(224,1,1) block=(256,1,1) lds=131072",
        "; @launch kernel=k7_ffn2_kernel grid=(256,1,1) block=(256,1,1) lds=163840",
    ]
    header(A, launches)
    descs = []
    kstart(A, "k0_init_kernel"); roles.gen_init(A); descs.append(("k0_init_kernel", 64, 64, 64))
    kstart(A, "k1_proj_kernel")
    L = "L1"
    A.e("s_cmp_ge_u32 s2, 192"); A.e(f"s_cbranch_scc1 {L}_exit")
    A.e("s_cmp_ge_u32 s2, 96"); A.e("s_cselect_b32 s26, 1, 0"); A.e("s_mul_i32 s27, s26, 96"); A.e("s_sub_u32 s27, s2, s27")
    A.e("s_lshr_b32 s30, s27, 5                  ; matrix")
    A.e("s_lshl_b32 s31, s30, 3")
    A.e(f"s_add_u32 s31, s31, {KA_WQ}")
    A.e("s_load_dwordx2 s[4:5], s[0:1], s31")
    roles.load_srd(A, roles.S_WS, KA_WS, 0)
    roles.wave_lane(A)
    A.e("s_waitcnt lgkmcnt(0)")
    roles.finish_srd(A, 4, 0x400000); roles.finish_srd(A, roles.S_WS, WS_SIZE)
    A.e("s_and_b32 s27, s27, 31                  ; head")
    A.e("s_lshl_b32 s24, s27, 8")
    A.e(f"s_mov_b32 s28, {hex(WS_QX)}")
    A.e("s_cmp_eq_u32 s30, 1"); A.e(f"s_cselect_b32 s28, {hex(WS_KX)}, s28")
    A.e("s_cmp_eq_u32 s30, 2"); A.e(f"s_cselect_b32 s28, {hex(WS_VX)}, s28")
    A.e("s_lshl_b32 s27, s27, 13"); A.e("s_add_u32 s28, s28, s27")
    roles.gen_proj(A, L, dict(wstride=8192, a_base=WS_XN, out_seg=0x40000, out_row=256, seg_stride=2))
    A.label(f"{L}_exit"); A.e("s_endpgm"); descs.append(("k1_proj_kernel", 384, 102, 256))
    kstart(A, "k2_chain_kernel")
    role_select(A)
    chain3.gen_chain(A, opts)
    A.label("L_exit"); A.e("s_endpgm"); descs.append(("k2_chain_kernel", 512, 102, 256))
    kstart(A, "k3_attn_kernel"); L = "L3"
    common_pre(A, L, 256, [])
    A.e("s_and_b32 s24, s2, 31"); A.e("s_lshr_b32 s26, s2, 5")
    roles.gen_attn(A, L, dict(seg_stride=8))
    A.label(f"{L}_exit"); A.e("s_endpgm"); descs.append(("k3_attn_kernel", 128, 102, 128))
    kstart(A, "k4_wo_kernel"); L = "L4"
    common_pre(A, L, 256, [(4, KA_WO, 0x400000)])
    A.e("s_and_b32 s24, s2, 31"); A.e("s_lshr_b32 s26, s2, 5")
    roles.gen_wo(A, L, dict(seg_stride=8))
    A.label(f"{L}_exit"); A.e("s_endpgm"); descs.append(("k4_wo_kernel", 384, 102, 256))
    kstart(A, "k5_red_kernel"); L = "L5"
    common_pre(A, L, 256, [(4, KA_X, 0x200000)])
    A.e("s_mov_b32 s26, s2")
    roles.gen_red(A, L, dict(grp_stride=256))
    A.label(f"{L}_exit"); A.e("s_endpgm"); descs.append(("k5_red_kernel", 64, 102, 64))
    kstart(A, "k6_ffn1_kernel"); L = "L6"
    common_pre(A, L, 224, [(4, KA_W1, 512 * 3584)])
    A.e(f"s_mov_b32 s27, {hex(-(-(1 << 32) // 14))}")
    A.e("s_mul_hi_u32 s26, s2, s27"); A.e("s_mul_i32 s27, s26, 14"); A.e("s_sub_u32 s27, s2, s27")
    A.e("s_lshl_b32 s24, s27, 8")
    A.e(f"s_add_u32 s28, s24, {hex(WS_A1)}")
    roles.gen_proj(A, L, dict(wstride=3584, a_base=WS_HN, out_seg=32 * 3584, out_row=3584, seg_stride=16, relu=True))
    A.label(f"{L}_exit"); A.e("s_endpgm"); descs.append(("k6_ffn1_kernel", 384, 102, 256))
    kstart(A, "k7_ffn2_kernel"); L = "L7"
    common_pre(A, L, 256, [(4, KA_W2, 1792 * 1024), (8, KA_OUT, 0x200000)])
    A.e("s_and_b32 s24, s2, 15"); A.e("s_lshr_b32 s26, s2, 4")
    roles.gen_ffn2(A, L, dict(seg_stride=16))
    A.label(f"{L}_exit"); A.e("s_endpgm"); descs.append(("k7_ffn2_kernel", 384, 102, 256))
    for d in descs: kdesc(A, *d)
    open(path, "w").write(A.text())

if __name__ == "__main__":
    build_bulk("bulk.s", dict())
```

```python
from asm import *
from layout import *
import struct, math

L_KS = 0x0000
L_VS = 0x2000
L_QT = 0x4000
L_KT = 0x5000
L_OX = 0x6000
L_MS = 0x6000
L_WO = 0x8000
SPIN_MAX = 200000

(V_L16, V_IDX, V_QW, V_QR0, V_QR1, V_KXA, V_VXA, V_WOL, V_PST, V_MST, V_DK, V_DV) = range(112, 124)
V_PM0 = 124
V_PM1 = 126
V_KV4 = 104
V_PX = 108
V_T = 110
S_WQ, S_WK, S_WV, S_WO, S_WS = 4, 8, 12, 16, 20
S_H, S_W, S_STEP = 24, 25, 26
S_C = 40
S_SPIN = 45
S_OXM, S_MSTM = 48, 50
S_MEMRD, S_MEMRD4 = 52, 53
S_PST = 54
S_PLD = 55
S_PPZ = 56
S_MST, S_MPZ = 57, 58
S_KM = 59
S_KD, S_VD = 90, 91
S_KL, S_VL = 92, 93
S_TK = 94
S_PSTB = 95
S_FKV = 99
S_FKM = 100
S_PH = 46
S_MSW = 47
S_MR = 96
CSCALE = struct.unpack("<I", struct.pack("<f", (128 ** -0.5) * math.log2(math.e)))[0]
WSRD = f"s[{S_WS}:{S_WS+3}]"

def wreg(mat, t, c):
    if mat < 2:
        return ("a", 128 * mat + 64 * t + 8 * c)
    return ("v", 128 + 64 * t + 8 * c)
def rr(kind, base, n):
    return f"{kind}[{base}:{base+n-1}]"

def isvalu(s):
    return s.startswith("v_") and not s.startswith("v_mfma") and not s.startswith("v_smfmac")

def weave(A, mfmas, fillers, nv=1, no=2):
    fillers = list(fillers)
    for m in mfmas:
        A.e(m)
        v = o = 0
        while fillers:
            f = fillers[0]
            if f.endswith(":"):
                A.label(f[:-1]); fillers.pop(0); continue
            if isvalu(f):
                if v >= nv: break
                v += 1
            else:
                if o + v >= 3: break
                o += 1
            A.e(f); fillers.pop(0)
            if v + o >= 3: break
    return fillers

def flush(A, fillers):
    for f in fillers:
        if f.endswith(":"): A.label(f[:-1])
        else: A.e(f)

def stamp(A, opts, idx):
    if opts.get("stamps") and (opts.get("only") is None or idx in opts["only"]):
        A.e("s_waitcnt lgkmcnt(0)")
        A.e("s_memtime s[60:61]")
        A.e("s_waitcnt lgkmcnt(0)")
        A.e(f"s_sub_u32 s62, s60, s63")
        A.e(f"s_add_u32 s{64+idx}, s{64+idx}, s62")
        A.e("s_mov_b32 s63, s60")

def gen_setup(A, opts):
    for s, ka in ((S_WQ, KA_WQ), (S_WK, KA_WK), (S_WV, KA_WV), (S_WO, KA_WO), (S_WS, KA_WS)):
        A.e(f"s_load_dwordx2 s[{s}:{s+1}], s[0:1], {ka}")
    A.e("v_lshrrev_b32 v1, 6, v0")
    A.e("v_and_b32 v2, 63, v0                 ; lane")
    A.e("v_readfirstlane_b32 s25, v1          ; wave")
    A.e("s_waitcnt lgkmcnt(0)")
    for s, n in ((S_WQ, 0x400000), (S_WK, 0x400000), (S_WV, 0x400000), (S_WO, 0x400000), (S_WS, WS_SIZE)):
        A.e(f"s_mov_b32 s{s+2}, {hex(n)}")
        A.e(f"s_mov_b32 s{s+3}, 0x00020000")
    A.e(f"s_mov_b32 s{S_C}, {hex(CSCALE)}")
    A.e(f"s_mov_b32 s{S_C+1}, {hex(CSCALE)}")
    A.e(f"s_mov_b32 s{S_MSTM}, 0x00550055")
    A.e(f"s_mov_b32 s{S_MSTM+1}, 0x00550055")
    A.e("s_and_b32 s27, s25, 1")
    A.e("s_cmp_eq_u32 s27, 0")
    A.e(f"s_mov_b32 s28, 0xcccccccc")
    A.e(f"s_cselect_b32 s{S_OXM}, 0x33333333, s28")
    A.e(f"s_mov_b32 s{S_OXM+1}, s{S_OXM}")
    A.e("v_and_b32 v3, 15, v2")
    A.e("v_lshrrev_b32 v4, 4, v2")
    A.e("v_bfe_u32 v5, v2, 2, 2")
    A.e("v_and_b32 v6, 3, v2")
    A.e("v_and_b32 v9, 1, v4")
    A.e("v_lshrrev_b32 v10, 1, v4")
    A.e(f"v_lshlrev_b32 v{V_L16}, 4, v2")
    A.e(f"v_mov_b32 v{V_IDX}, 0x44444444")
    A.e("v_mov_b32 v7, 0xeeeeeeee")
    A.e("v_and_b32 v8, 2, v2")
    A.e("v_cmp_ne_u32 vcc, 0, v8")
    A.e("s_nop 1")
    A.e(f"v_cndmask_b32 v{V_IDX}, v{V_IDX}, v7, vcc")
    A.e("s_lshl_b32 s27, s25, 5")
    A.e("v_add_u32 v7, s27, v3")
    A.e("v_lshlrev_b32 v7, 5, v7")
    A.e("v_lshrrev_b32 v8, 1, v7")
    A.e("v_and_b32 v8, 128, v8")
    A.e("v_xor_b32 v7, v7, v8")
    A.e("v_lshl_add_u32 v7, v4, 3, v7")
    A.e(f"v_add_u32 v{V_QW}, {hex(L_QT)}, v7")
    A.e("v_lshlrev_b32 v7, 3, v4")
    A.e("v_add_u32 v7, v7, v5")
    A.e("v_lshlrev_b32 v7, 5, v7")
    A.e("v_lshrrev_b32 v8, 1, v7")
    A.e("v_and_b32 v8, 128, v8")
    A.e("v_xor_b32 v7, v7, v8")
    A.e("v_lshl_add_u32 v7, v6, 3, v7")
    A.e(f"v_add_u32 v{V_QR0}, {hex(L_QT)}, v7")
    A.e(f"v_xor_b32 v{V_QR1}, 128, v{V_QR0}")
    A.e("v_xor_b32 v7, v4, v3")
    A.e("v_lshlrev_b32 v7, 4, v7")
    A.e("v_lshl_add_u32 v7, v3, 8, v7")
    A.e(f"v_add_u32 v{V_KXA}, {hex(L_KS)}, v7")
    A.e("v_lshlrev_b32 v7, 2, v4")
    A.e("v_add_u32 v7, v7, v5")
    A.e("v_lshlrev_b32 v7, 6, v7")
    A.e("v_lshl_add_u32 v7, v9, 5, v7")
    A.e("v_lshl_add_u32 v7, v6, 3, v7")
    A.e("s_lshl_b32 s27, s25, 11")
    A.e(f"s_add_u32 s27, s27, {hex(L_VS)}")
    A.e(f"v_add_u32 v{V_VXA}, s27, v7")
    A.e("s_lshl_b32 s27, s25, 15")
    A.e(f"s_add_u32 s27, s27, {hex(L_WO)}")
    A.e(f"v_add_u32 v{V_WOL}, s27, v{V_L16}")
    A.e("v_lshrrev_b32 v7, 3, v3")
    A.e("v_lshlrev_b32 v7, 14, v7")
    A.e("v_lshl_add_u32 v7, v4, 12, v7")
    A.e("v_and_b32 v8, 7, v3")
    A.e(f"v_lshl_add_u32 v{V_PST}, v8, 4, v7")
    A.e("v_lshl_add_u32 v7, v9, 1, v10")
    A.e("s_lshl_b32 s27, s25, 2")
    A.e("v_add_u32 v7, s27, v7")
    A.e("v_lshlrev_b32 v7, 4, v7")
    A.e("v_bfe_u32 v8, v2, 1, 2")
    A.e(f"v_lshl_add_u32 v{V_MST}, v8, 2, v7")
    A.e("v_xor_b32 v7, v3, v4")
    A.e("v_lshlrev_b32 v7, 4, v7")
    A.e("v_lshl_add_u32 v7, v4, 8, v7")
    A.e("s_lshl_b32 s27, s25, 1")
    A.e("s_and_b32 s27, s27, 3")
    A.e("s_lshl_b32 s27, s27, 6")
    A.e(f"v_xor_b32 v{V_DK}, s27, v7")
    A.e("v_lshlrev_b32 v7, 1, v9")
    A.e("v_xor_b32 v7, v7, v6")
    A.e("v_lshlrev_b32 v7, 4, v7")
    A.e("v_lshrrev_b32 v8, 2, v2")
    A.e(f"v_lshl_add_u32 v{V_DV}, v8, 8, v7")
    A.e(f"v_mov_b32 v{V_PM0+1}, 0")
    A.e(f"v_mov_b32 v{V_PM1}, 0")

def gen_weights(A, opts):
    A.e("v_lshrrev_b32 v7, 2, v2")
    A.e("v_lshlrev_b32 v7, 13, v7")
    A.e("v_lshl_add_u32 v20, v6, 4, v7")
    A.e("v_lshrrev_b32 v8, 1, v5              ; r>>1")
    A.e("v_lshlrev_b32 v7, 4, v8")
    A.e("v_lshl_add_u32 v7, v4, 2, v7         ; + 4*gb")
    A.e("v_and_b32 v11, 1, v5                 ; r&1")
    A.e("v_add_u32 v7, v7, v11")
    A.e("v_lshlrev_b32 v7, 6, v7")
    A.e("v_lshl_add_u32 v7, v6, 3, v7")
    A.e("s_lshl_b32 s29, s25, 15")
    A.e(f"s_add_u32 s29, s29, {hex(L_WO)}")
    A.e("v_add_u32 v21, s29, v7")
    A.e("s_lshl_b32 s30, s25, 13")
    A.e("v_add_u32 v22, s30, v7")
    A.e("v_lshrrev_b32 v7, 1, v3")
    A.e("v_xor_b32 v7, v7, v9")
    A.e("v_lshlrev_b32 v7, 5, v7")
    A.e("v_lshl_add_u32 v7, v4, 10, v7")
    A.e("v_and_b32 v12, 1, v2")
    A.e("v_lshl_add_u32 v23, v12, 4, v7")
    A.e("v_lshlrev_b32 v7, 5, v8")
    A.e("v_lshl_add_u32 v7, v9, 4, v7")
    A.e("v_lshl_add_u32 v7, v10, 2, v7")
    A.e("v_add_u32 v7, v7, v11")
    A.e("v_lshlrev_b32 v7, 8, v7")
    A.e("v_lshl_add_u32 v12, v9, 1, v11")
    A.e("v_lshl_add_u32 v12, v8, 2, v12")
    A.e("v_lshl_add_u32 v7, v12, 5, v7")
    A.e("v_lshl_add_u32 v7, v6, 3, v7")
    A.e("v_add_u32 v25, s29, v7")
    A.e("s_lshl_b32 s28, s24, 8")
    A.e("s_lshl_b32 s33, s25, 6")
    A.e("s_add_u32 s28, s28, s33              ; h*256 + w*64")
    A.e("s_lshl_b32 s31, s24, 17")
    A.e("s_lshl_b32 s32, s25, 8")
    A.e("s_add_u32 s31, s31, s32              ; h*128*1024 + w*256")
    def issue_unit(u):
        mat, c = divmod(u, 8)
        slot = u % 10
        srdreg = (S_WQ, S_WK, S_WV)[mat]
        for uu in range(4):
            if slot < 8:
                A.e(f"s_add_u32 m0, s29, {slot*4096 + uu*1024}")
            else:
                A.e(f"s_add_u32 m0, s30, {(slot-8)*4096 + uu*1024}")
            if uu == 0:
                A.e("s_lshl_b32 s34, s25, 1")
                A.e(f"s_add_u32 s34, s34, {c}")
                A.e("s_and_b32 s34, s34, 7")
                A.e("s_lshl_b32 s34, s34, 19")
                A.e("s_add_u32 s34, s34, s28")
            A.e(f"s_add_u32 s33, s34, {(16*uu) * 8192}")
            A.e(f"buffer_load_dwordx4 v20, s[{srdreg}:{srdreg+3}], s33 offen lds")
    def issue_wo(k):
        A.e(f"v_xor_b32 v24, {(k & 3) << 6}, v23")
        for uu in range(4):
            A.e(f"s_add_u32 m0, s29, {k*4096 + uu*1024}")
            A.e(f"s_add_u32 s33, s31, {(16*k + 4*uu) * 1024}")
            A.e(f"buffer_load_dwordx4 v24, s[{S_WO}:{S_WO+3}], s33 offen lds")
    issued = 0
    for u in range(10):
        issue_unit(u); issued += 1
    for u in range(24):
        mat, c = divmod(u, 8)
        slot = u % 10
        A.e(f"s_waitcnt vmcnt({(issued - (u + 1)) * 4})")
        for t in range(2):
            kind, base = wreg(mat, t, c)
            for m in range(4):
                off = 2048 * (m >> 1) + 128 * (m & 1) + 32 * t
                if slot < 8:
                    A.e(f"ds_read_b64_tr_b16 {rr(kind, base + 2*m, 2)}, v21 offset:{slot*4096 + off}")
                else:
                    A.e(f"ds_read_b64_tr_b16 {rr(kind, base + 2*m, 2)}, v22 offset:{(slot-8)*4096 + off}")
        A.e("s_waitcnt lgkmcnt(0)")
        if u + 10 < 24:
            issue_unit(u + 10); issued += 1
        elif 14 <= u <= 17:
            issue_wo(u - 10); issued += 1
        elif u >= 20:
            issue_wo(u - 20); issued += 1
    A.e("s_waitcnt vmcnt(0)")
    for cc in range(2):
        for t in range(8):
            if t == 0:
                ad = 25
            else:
                A.e(f"v_xor_b32 v26, {t << 5}, v25")
                ad = 26
            for m in range(4):
                off = (64 * cc + 8 * (m >> 1) + 2 * (m & 1)) * 256
                A.e(f"ds_read_b64_tr_b16 v[{32+8*t+2*m}:{33+8*t+2*m}], v{ad} offset:{off}")
            if t % 2 == 1:
                A.e("s_waitcnt lgkmcnt(0)")
        for t in range(8):
            for half in range(2):
                A.e(f"ds_write_b128 v{V_WOL}, v[{32+8*t+4*half}:{35+8*t+4*half}] offset:{cc*16384 + t*2048 + half*1024}")
            if t % 4 == 3:
                A.e("s_waitcnt lgkmcnt(0)")
    A.e("s_barrier")


def k_dma(T):
    return [f"s_mov_b32 m0, s{S_KL}",
            f"v_xor_b32 v{T}, 64, v{V_DK}",
            f"buffer_load_dwordx4 v{V_DK}, {WSRD}, s{S_KD} offen sc1 lds",
            f"s_add_u32 m0, s{S_KL}, 1024",
            f"s_add_u32 s{S_KD}, s{S_KD}, 1024",
            f"buffer_load_dwordx4 v{T}, {WSRD}, s{S_KD} offen sc1 lds"]
def v_dma():
    return [f"s_mov_b32 m0, s{S_VL}",
            f"s_add_u32 s33, s{S_VD}, 4096",
            f"buffer_load_dwordx4 v{V_DV}, {WSRD}, s{S_VD} offen sc1 lds",
            f"s_add_u32 m0, s{S_VL}, 1024",
            "s_nop 0",
            f"buffer_load_dwordx4 v{V_DV}, {WSRD}, s33 offen sc1 lds"]

class Lds:
    def __init__(self, A): self.A = A; self.q = []
    def issue(self, instr, tag=None):
        self.A.e(instr); self.q.append(tag)
        assert len(self.q) <= 15, "more than 15 LDS operations outstanding"
    def note(self, tag=None):
        self.q.append(tag)
        assert len(self.q) <= 15, "more than 15 LDS operations outstanding"
    def wait(self, tag):
        if tag not in self.q: return None
        i = max(k for k, t in enumerate(self.q) if t == tag)
        n = len(self.q) - 1 - i
        self.q = self.q[i + 1:]
        return f"s_waitcnt lgkmcnt({n})"
    def waitall(self):
        self.q = []
        return "s_waitcnt lgkmcnt(0)"

def gen_chain(A, opts):
    A("; ---------------- chain role: s24 = head ----------------")
    if opts.get("total"):
        A.e("s_memrealtime s[80:81]")
    gen_setup(A, opts)
    gen_weights(A, opts)
    A.e("s_lshl_b32 s27, s25, 11")
    A.e(f"s_add_u32 s{S_KL}, s27, {hex(L_KS)}")
    A.e(f"s_add_u32 s{S_VL}, s27, {hex(L_VS)}")
    A.e(f"s_add_u32 s{S_MSW}, s27, 0                 ; w*2048")
    for p in range(1, 4):
        A.e(f"s_add_u32 s28, s27, {2048*p}")
        A.e(f"s_and_b32 s{S_MR+p-1}, s28, 0x1fff")
    A.e(f"s_add_u32 s{S_MEMRD}, s27, {hex(WS_MEM)}")
    A.e("s_mov_b32 s26, 0")
    flush(A, ["s_lshl_b32 s33, s24, 13",
              f"s_add_u32 s{S_KD}, s33, s27",
              f"s_add_u32 s{S_KD}, s{S_KD}, {hex(WS_KX)}",
              "s_lshl_b32 s34, s25, 6",
              f"s_add_u32 s{S_VD}, s33, s34",
              f"s_add_u32 s{S_VD}, s{S_VD}, {hex(WS_VX)}"])
    if opts.get("flags"):
        A.e("s_lshl_b32 s33, s24, 3")
        A.e(f"s_add_u32 s{S_FKV}, s33, {hex(WS_FLAG)}")
        A.e(f"v_lshrrev_b32 v110, 2, v{V_L16}")
        A.e(f"s_mov_b32 s{S_SPIN}, 0")
        A.label("L_fkv0")
        A.e(f"buffer_load_dword v111, v110, {WSRD}, s{S_FKV} offen sc1")
        A.e(f"s_add_u32 s{S_SPIN}, s{S_SPIN}, 1")
        A.e(f"s_cmp_gt_u32 s{S_SPIN}, {SPIN_MAX*10}")
        A.e("s_cbranch_scc1 L_fail")
        A.e("s_waitcnt vmcnt(0)")
        A.e("v_cmp_eq_u32 vcc, 0, v111")
        A.e("s_and_b32 vcc_lo, vcc_lo, 3")
        A.e("s_cbranch_scc1 L_fkv0")
        A.e("s_lshl_b32 s33, s24, 4")
        A.e("s_lshl_b32 s34, s25, 2")
        A.e("s_add_u32 s33, s33, s34")
        A.e(f"s_add_u32 s{S_FKM}, s33, {hex(WS_FLAG + 4*FL_KM - 2*FL_SEG)}")
    flush(A, k_dma(V_T))
    flush(A, v_dma())
    for r in range(32, 56):
        A.e(f"v_mov_b32 v{r}, 0")
    flush(A, ["s_lshl_b32 s29, s24, 14",
              "s_lshl_b32 s30, s25, 12",
              "s_add_u32 s29, s29, s30",
              f"s_add_u32 s{S_PLD}, s29, {hex(WS_P)}",
              "s_lshl_b32 s29, s25, 17",
              "s_lshl_b32 s30, s24, 7",
              "s_add_u32 s29, s29, s30",
              f"s_add_u32 s{S_PSTB}, s29, {hex(WS_P)}",
              "s_lshl_b32 s29, s24, 8",
              f"s_add_u32 s{S_MPZ}, s29, {hex(WS_MEM)}",
              f"s_xor_b32 s{S_MST}, s{S_MPZ}, 0x2000",
              "s_lshl_b32 s27, s24, 12",
              "s_lshl_b32 s28, s25, 10",
              "s_add_u32 s27, s27, s28",
              f"s_add_u32 s{S_KM}, s27, {hex(WS_KMVM - 0x20000)}",
              f"s_mov_b32 s{S_PH}, 1"])
    if opts.get("stamps"):
        for i in range(16):
            A.e(f"s_mov_b32 s{64+i}, 0")
        A.e("s_memtime s[60:61]")
        A.e("s_waitcnt lgkmcnt(0)")
        A.e("s_mov_b32 s63, s60")
    if opts.get("total"):
        A.e("s_mov_b32 s67, 0")
        A.e("s_mov_b32 s68, 0")
        A.e("s_waitcnt vmcnt(0)")
        A.e("s_memtime s[82:83]")
        A.e("s_memrealtime s[84:85]")
        A.e("s_waitcnt lgkmcnt(0)")
    A.e("s_waitcnt vmcnt(0)")

    L = Lds(A)
    def qk(c):
        out = []
        for mat in range(2):
            for t in range(2):
                kind, base = wreg(mat, t, c)
                acc = 32 + 8 * mat + 4 * t
                out.append(f"v_smfmac_f32_16x16x64_bf16 v[{acc}:{acc+3}], v[{4*c}:{4*c+3}], {rr(kind, base, 8)}, v{V_IDX}")
        return out
    def vm(c, t):
        kind, base = wreg(2, t, c)
        acc = 48 + 4 * t
        return f"v_smfmac_f32_16x16x64_bf16 v[{acc}:{acc+3}], v[{4*c}:{4*c+3}], {rr(kind, base, 8)}, v{V_IDX}"
    vms = [vm(c, t) for c in range(8) for t in range(2)]

    A.label("L_step")
    if opts.get("trace"):
        A.e("s_or_b32 s27, s24, s25")
        A.e("s_cmp_lg_u32 s27, 0")
        A.e("s_cbranch_scc1 L_notrace")
        A.e("s_memrealtime s[60:61]")
        A.e("s_lshl_b32 s27, s26, 2")
        A.e(f"s_add_u32 s27, s27, {hex(WS_TRACE)}")
        A.e("s_waitcnt lgkmcnt(0)")
        A.e("v_mov_b32 v108, s60")
        A.e("s_mov_b64 exec, 1")
        A.e(f"buffer_store_dword v108, v{V_PM0+1}, {WSRD}, s27 offen")
        A.e("s_mov_b64 exec, -1")
        A.label("L_notrace")
    for _ in range(opts.get("d2", 0)): A.e("s_nop 7")
    A.e(f"s_mov_b32 s{S_SPIN}, 0")
    A.label("L_poll2")
    A.e(f"buffer_load_dwordx4 v[0:3], v{V_L16}, {WSRD}, s{S_MEMRD} offen sc1")
    A.e(f"buffer_load_dwordx4 v[4:7], v{V_L16}, {WSRD}, s{S_MEMRD} offen offset:1024 sc1")
    A.e(f"v_add_u32 v88, s{S_MSW}, v{V_L16}")
    for p in range(3):
        A.e(f"v_add_u32 v{89+p}, s{S_MR+p}, v{V_L16}")
    A.e(f"s_add_u32 s{S_SPIN}, s{S_SPIN}, 1")
    A.e(f"s_cmp_gt_u32 s{S_SPIN}, {SPIN_MAX}")
    A.e("s_cbranch_scc1 L_fail")
    A.e("s_waitcnt vmcnt(0)")
    A.e("v_max3_u32 v108, v0, v1, v2")
    A.e("v_max3_u32 v109, v3, v4, v5")
    A.e("v_max3_u32 v108, v108, v6, v7")
    A.e("v_max_u32 v108, v108, v109")
    A.e("v_cmp_eq_u32 vcc, -1, v108")
    if not opts.get("nocheck2"): A.e("s_cbranch_vccnz L_poll2")
    if opts.get("total"): A.e(f"s_add_u32 s67, s67, s{S_SPIN}")
    stamp(A, opts, 0)
    L.issue(f"ds_write_b128 v88, v[0:3] offset:{L_MS}", "msw")
    L.issue(f"ds_write_b128 v88, v[4:7] offset:{L_MS + 1024}", "msw")
    m01 = qk(0) + qk(1)
    A.e(m01[0]); A.e(m01[1])
    A.e(L.wait("msw"))
    A.e("s_barrier")
    for c in range(2, 8):
        L.issue(f"ds_read_b128 v[{4*c}:{4*c+3}], v{89 + (c-2)//2} offset:{L_MS + 1024*(c%2)}", f"m{c}")
        if c in (3, 5):
            A.e(m01[2 + (c - 3) // 2])
    fl = []
    for ks in range(4):
        if ks == 0:
            ad = V_KXA
        else:
            fl.append(f"v_xor_b32 v109, {ks << 6}, v{V_KXA}")
            ad = 109
        for kt in range(2):
            fl.append(f"ds_read_b128 v[{56+16*kt+4*ks}:{59+16*kt+4*ks}], v{ad} offset:{4096*kt}")
    if opts.get("flags"):
        fl += [f"s_add_u32 s{S_FKV}, s{S_FKV}, {FL_SEG}",
               f"v_lshrrev_b32 v110, 2, v{V_L16}",
               f"buffer_load_dword v111, v110, {WSRD}, s{S_FKV} offen sc1",
               f"s_mov_b64 exec, 1\n    buffer_store_dword v{V_IDX}, v{V_PM0+1}, {WSRD}, s{S_FKM} offen sc1\n    s_mov_b64 exec, -1",
               f"s_add_u32 s{S_FKM}, s{S_FKM}, {FL_SEG}"]
    fl += [f"buffer_store_dwordx4 v[{V_KV4}:{V_KV4+3}], v{V_L16}, {WSRD}, s{S_KM} offen sc1",
           f"s_add_u32 s{S_KM}, s{S_KM}, 0x20000",
           f"s_mov_b32 s{S_PST}, s{S_PSTB}",
           f"s_add_u32 s{S_KD}, s{S_KD}, {hex(0x40000 - 1024)}",
           f"s_add_u32 s{S_VD}, s{S_VD}, 0x40000"]
    def emit_fill(nv=1, no=2):
        v = o = 0
        while fl:
            f = fl[0]
            if isvalu(f):
                if v >= nv: break
                v += 1
            else:
                if o >= no: break
                o += 1
            fl.pop(0)
            if f.startswith("ds_"): L.issue(f, "kx")
            else: A.e(f)
    for m in m01[4:]:
        A.e(m); emit_fill()
    for c in range(2, 8):
        w = L.wait(f"m{c}")
        if w: A.e(w)
        for m in qk(c):
            A.e(m); emit_fill()
    assert not fl
    stamp(A, opts, 1)
    A.e(vms[0]); A.e(vms[1])
    A.e("s_nop 0")
    A.e("v_pk_add_f32 v[32:33], v[32:33], v[34:35]")
    A.e("v_pk_add_f32 v[36:37], v[36:37], v[38:39]")
    A.e("v_pk_add_f32 v[40:41], v[40:41], v[42:43]")
    A.e("v_pk_add_f32 v[44:45], v[44:45], v[46:47]")
    A.e("v_cvt_pk_bf16_f32 v108, v32, v33")
    A.e("v_cvt_pk_bf16_f32 v109, v36, v37")
    A.e(f"v_cvt_pk_bf16_f32 v{V_KV4}, v40, v41")
    A.e(f"v_cvt_pk_bf16_f32 v{V_KV4+1}, v44, v45")
    L.issue(f"ds_write2_b32 v{V_QW}, v108, v108 offset0:0 offset1:1")
    L.issue(f"ds_write2_b32 v{V_QW}, v109, v109 offset0:128 offset1:129")
    L.issue(f"ds_write2st64_b32 v{V_QW}, v{V_KV4}, v{V_KV4+1} offset0:16 offset1:18")
    A.e("s_cmp_eq_u32 s26, 63")
    A.e("s_cbranch_scc1 L_last")
    for i in range(2, 8):
        A.e(vms[i])
    A.e(L.waitall())
    A.e("s_barrier")
    stamp(A, opts, 2)
    rd = []
    for ks in range(4):
        rd.append(f"ds_read_b64_tr_b16 v[{88+4*ks}:{89+4*ks}], v{V_QR0} offset:{1024*ks}")
        rd.append(f"ds_read_b64_tr_b16 v[{90+4*ks}:{91+4*ks}], v{V_QR1} offset:{1024*ks}")
    rk = []
    for ks in range(4):
        rk.append(f"ds_read_b64_tr_b16 v[{4*ks}:{4*ks+1}], v{V_QR0} offset:{4096 + 1024*ks}")
        rk.append(f"ds_read_b64_tr_b16 v[{4*ks+2}:{4*ks+3}], v{V_QR1} offset:{4096 + 1024*ks}")
    for k_, r in enumerate(rd):
        L.issue(r, f"q{k_//2}")
        if k_ == 3: A.e(vms[8])
    A.e(vms[9])
    for k_, r in enumerate(rk[:7]):
        L.issue(r, "km")
        if k_ == 2: A.e(vms[10])
        if k_ == 5: A.e(vms[11])
    sc = []
    for ks in range(4):
        for kt in range(2):
            c = "0" if ks == 0 else f"v[{32+4*kt}:{35+4*kt}]"
            sc.append(f"v_mfma_f32_16x16x32_bf16 v[{32+4*kt}:{35+4*kt}], v[{56+16*kt+4*ks}:{59+16*kt+4*ks}], v[{88+4*ks}:{91+4*ks}], {c}")
    kd = k_dma(110)
    if opts.get("flags"):
        A.e("s_waitcnt vmcnt(2)")
        A.e("v_cmp_eq_u32 vcc, 0, v111")
        A.e("s_and_b32 vcc_lo, vcc_lo, 3")
        A.e("s_cbranch_scc1 L_fkv_slow")
        A.label("L_fkv_ok")
    A.e(L.wait("q0")); A.e(sc[0]); L.issue(rk[7], "km"); A.e(sc[1])
    A.e(L.wait("q1")); A.e(sc[2]); A.e(kd[0]); A.e(kd[1]); A.e(sc[3]); A.e(kd[2])
    A.e(L.wait("q2")); A.e(sc[4]); A.e(kd[3]); A.e(kd[4]); A.e(sc[5]); A.e(kd[5])
    A.e(L.wait("q3")); A.e(sc[6]); A.e(sc[7])
    A.e(L.wait("km"))
    ms = []
    for ks in range(4):
        c = "0" if ks == 0 else "v[40:43]"
        ms.append(f"v_mfma_f32_16x16x32_bf16 v[40:43], v[{4*ks}:{4*ks+3}], v[{88+4*ks}:{91+4*ks}], {c}")
    A.e(ms[0])
    L.issue(f"ds_read_b64_tr_b16 v[56:57], v{V_VXA}", "vx")
    L.issue(f"ds_read_b64_tr_b16 v[58:59], v{V_VXA} offset:1024", "vx")
    A.e(f"v_xor_b32 v110, 32, v{V_VXA}")
    A.e(ms[1])
    L.issue(f"ds_read_b64_tr_b16 v[60:61], v110", "vx")
    L.issue(f"ds_read_b64_tr_b16 v[62:63], v110 offset:1024", "vx")
    A.e(ms[2]); A.e(ms[3])
    for i in range(12, 16):
        A.e(vms[i])
    stamp(A, opts, 3)
    ops = []
    for u in range(4):
        for cc in range(2):
            for tt in range(2):
                ops.append((2 * u + tt, cc))
    slots = [0, 8, 16, 24, 44, 32, 96]
    def wo_load(i):
        t, cc = ops[i]
        b = slots[i % len(slots)]
        L.issue(f"ds_read_b128 v[{b}:{b+3}], v{V_WOL} offset:{cc*16384 + t*2048}", f"w{i}")
        L.issue(f"ds_read_b128 v[{b+4}:{b+7}], v{V_WOL} offset:{cc*16384 + t*2048 + 1024}", f"w{i}")
    A.e("v_max3_f32 v44, v32, v33, v34")
    A.e("v_max3_f32 v45, v35, v36, v37")
    A.e("v_max3_f32 v44, v44, v38, v39")
    A.e("v_max3_f32 v45, v45, v40, v41")
    A.e("v_max_f32 v46, v44, v45")
    A.e("v_max_f32 v47, v44, v45")
    wo_load(0)
    A.e("v_permlane32_swap_b32 v46, v47")
    A.e("v_max_f32 v44, v46, v47")
    A.e("v_max_f32 v45, v46, v47")
    wo_load(1)
    A.e("v_permlane16_swap_b32 v44, v45")
    A.e("v_max_f32 v44, v44, v45")
    A.e(f"v_mul_f32 v44, s{S_C}, v44")
    for j in range(5):
        A.e(f"v_pk_fma_f32 v[{32+2*j}:{33+2*j}], v[{32+2*j}:{33+2*j}], s[{S_C}:{S_C+1}], v[44:45] op_sel_hi:[1,1,0] neg_lo:[0,0,1] neg_hi:[0,0,1]")
    for j in range(10):
        A.e(f"v_exp_f32 v{32+j}, v{32+j}")
    A.e(f"v_cvt_pk_bf16_f32 v{V_PX}, v32, v33")
    A.e(f"v_cvt_pk_bf16_f32 v{V_PX+1}, v34, v35")
    A.e(f"v_cvt_pk_bf16_f32 v{V_PX+2}, v36, v37")
    A.e(f"v_cvt_pk_bf16_f32 v{V_PX+3}, v38, v39")
    A.e(f"v_cvt_pk_bf16_f32 v{V_PM0}, v40, v41")
    A.e(f"v_cvt_pk_bf16_f32 v{V_PM1+1}, v40, v41")
    A.e("v_pk_add_f32 v[48:49], v[48:49], v[50:51]")
    A.e("v_pk_add_f32 v[52:53], v[52:53], v[54:55]")
    A.e(L.wait("vx"))
    A.e("v_mfma_f32_16x16x32_bf16 v[96:99], v[56:59], v[%d:%d], 0" % (V_PX, V_PX + 3))
    A.e(f"v_cvt_pk_bf16_f32 v{V_KV4+2}, v48, v49")
    A.e("v_mfma_f32_16x16x32_bf16 v[100:103], v[60:63], v[%d:%d], 0" % (V_PX, V_PX + 3))
    A.e(f"v_cvt_pk_bf16_f32 v{V_KV4+3}, v52, v53")
    stamp(A, opts, 4)
    vd = v_dma()
    A.e(vd[0]); A.e(vd[1])
    A.e("v_mov_b32 v48, 0")
    A.e(f"v_mfma_f32_16x16x16_bf16 v[96:99], v[{V_KV4+2}:{V_KV4+3}], v[{V_PM0}:{V_PM0+1}], v[96:99]")
    A.e("v_mov_b32 v49, 0")
    A.e(vd[2]); A.e(vd[3])
    A.e(f"v_mfma_f32_16x16x16_bf16 v[100:103], v[{V_KV4+2}:{V_KV4+3}], v[{V_PM1}:{V_PM1+1}], v[100:103]")
    A.e("v_pk_add_f32 v[52:53], v[32:33], v[34:35]")
    A.e(vd[5])
    A.e("v_mfma_f32_32x32x8_bf16 v[64:79], v[48:49], v[48:49], 0")
    A.e("v_pk_add_f32 v[54:55], v[36:37], v[38:39]")
    wo_load(2)
    A.e("v_pk_add_f32 v[52:53], v[52:53], v[40:41]")
    A.e("v_pk_add_f32 v[52:53], v[52:53], v[54:55]")
    A.e("v_add_f32 v54, v52, v53")
    A.e("v_add_f32 v55, v52, v53")
    wo_load(3)
    A.e("v_permlane32_swap_b32 v54, v55")
    A.e("v_add_f32 v52, v54, v55")
    A.e("v_add_f32 v53, v54, v55")
    A.e("v_mfma_f32_32x32x8_bf16 v[80:95], v[48:49], v[48:49], 0")
    A.e("s_lshr_b32 s27, s25, 1")
    A.e("v_permlane16_swap_b32 v52, v53")
    A.e("v_add_f32 v52, v52, v53")
    A.e("v_rcp_f32 v52, v52")
    A.e("s_lshl_b32 s27, s27, 10")
    A.e(f"v_add_u32 v54, s27, v{V_L16}")
    for j in range(4):
        A.e(f"v_pk_mul_f32 v[{96+2*j}:{97+2*j}], v[{96+2*j}:{97+2*j}], v[52:53] op_sel_hi:[1,0]")
    for j in range(4):
        A.e(f"v_cvt_pk_bf16_f32 v{V_PX+j}, v{96+2*j}, v{97+2*j}")
    A.e(f"s_mov_b64 exec, s[{S_OXM}:{S_OXM+1}]")
    L.issue(f"ds_write_b128 v54, v[{V_PX}:{V_PX+3}] offset:{L_OX}", "ow")
    A.e("s_mov_b64 exec, -1")
    wo_load(4)
    wo_load(5)
    A.e(L.wait("ow"))
    A.e("s_barrier")
    stamp(A, opts, 5)
    L.issue(f"ds_read_b128 v[56:59], v{V_L16} offset:{L_OX}", "oa")
    L.issue(f"ds_read_b128 v[60:63], v{V_L16} offset:{L_OX + 1024}", "oa")
    wo_load(6)
    A.e(L.wait("oa"))
    wo_m = []
    for i in range(16):
        t, cc = ops[i]
        b = slots[i % len(slots)]
        acc = 64 + 4 * t
        wo_m.append(f"v_smfmac_f32_16x16x64_bf16 v[{acc}:{acc+3}], v[{56+4*cc}:{59+4*cc}], v[{b}:{b+7}], v{V_IDX}")
    def pair_out(u):
        a, b = 64 + 8 * u, 68 + 8 * u
        o = [f"v_pk_add_f32 v[{a}:{a+1}], v[{a}:{a+1}], v[{a+2}:{a+3}]",
             f"v_pk_add_f32 v[{a+2}:{a+3}], v[{b}:{b+1}], v[{b+2}:{b+3}]",
             f"v_and_or_b32 v{a}, v{a}, -2, s{S_PH}",
             f"buffer_store_dwordx4 v[{a}:{a+3}], v{V_PST}, {WSRD}, s{S_PST} offen"]
        if u < 3: o.append(f"s_add_u32 s{S_PST}, s{S_PST}, 0x8000")
        return o
    outq = []
    nxt = 7
    for i in range(16):
        w = L.wait(f"w{i}")
        if w: A.e(w)
        A.e(wo_m[i])
        if nxt < 16:
            wo_load(nxt); nxt += 1
        if i >= 6 and (i - 6) % 4 == 0 and (i - 6) // 4 < 3:
            outq += pair_out((i - 6) // 4)
        v = False; n = 0
        while outq and n < 2:
            if isvalu(outq[0]):
                if v: break
                v = True
            A.e(outq.pop(0)); n += 1
    flush(A, outq)
    for r in range(32, 40):
        A.e(f"v_mov_b32 v{r}, 0")
    flush(A, pair_out(3))
    stamp(A, opts, 6)
    for r in range(40, 56):
        A.e(f"v_mov_b32 v{r}, 0")
    for _ in range(opts.get("d1", 0)): A.e("s_nop 7")
    A.e(f"s_mov_b32 s{S_SPIN}, 0")
    A.label("L_poll1")
    for t in range(4):
        A.e(f"buffer_load_dwordx4 v[{4*t}:{4*t+3}], v{V_L16}, {WSRD}, s{S_PLD} offen offset:{1024*t} sc1")
    A.e(f"s_add_u32 s{S_SPIN}, s{S_SPIN}, 1")
    A.e(f"s_cmp_gt_u32 s{S_SPIN}, {SPIN_MAX}")
    A.e("s_cbranch_scc1 L_fail")
    A.e("s_waitcnt vmcnt(0)")
    stamp(A, opts, 7)
    A.e("v_pk_add_f32 v[16:17], v[0:1], v[4:5]")
    A.e("v_pk_add_f32 v[18:19], v[2:3], v[6:7]")
    A.e("v_pk_add_f32 v[20:21], v[8:9], v[12:13]")
    A.e("v_pk_add_f32 v[22:23], v[10:11], v[14:15]")
    A.e("v_pk_add_f32 v[16:17], v[16:17], v[20:21]")
    A.e("v_pk_add_f32 v[18:19], v[18:19], v[22:23]")
    A.e("v_bitop3_b32 v24, v0, v4, v8 bitop3:0x7e")
    A.e(f"v_bitop3_b32 v25, v0, v12, s{S_PH} bitop3:0x7e")
    A.e("v_permlane32_swap_b32 v16, v17")
    A.e("v_permlane32_swap_b32 v18, v19")
    A.e("v_add_f32 v16, v16, v17")
    A.e("v_add_f32 v18, v18, v19")
    A.e("v_or_b32 v24, v24, v25")
    A.e("v_and_b32 v24, 1, v24")
    A.e("v_permlane16_swap_b32 v16, v18")
    A.e("v_add_f32 v16, v16, v18")
    A.e("v_cmp_ne_u32 vcc, 0, v24")
    A.e("v_mov_b32 v24, -1")
    A.e("v_add_f32_dpp v16, v16, v16 row_ror:8 row_mask:0xf bank_mask:0xf")
    if not opts.get("nocheck1"): A.e("s_cbranch_vccnz L_poll1")
    if opts.get("total"): A.e(f"s_add_u32 s68, s68, s{S_SPIN}")
    else: A.e("s_nop 0")
    A.e("v_mov_b32_dpp v17, v16 quad_perm:[1,0,3,2] row_mask:0xf bank_mask:0xf")
    A.e("v_cvt_pk_bf16_f32 v18, v16, v17")
    A.e(f"s_mov_b64 exec, s[{S_MSTM}:{S_MSTM+1}]")
    A.e(f"buffer_store_dword v18, v{V_MST}, {WSRD}, s{S_MST} offen")
    A.e(f"buffer_store_dword v24, v{V_MST}, {WSRD}, s{S_MPZ} offen")
    A.e("s_mov_b64 exec, -1")
    stamp(A, opts, 8)
    for r in (S_MEMRD, S_MST, S_MPZ):
        A.e(f"s_xor_b32 s{r}, s{r}, 0x2000")
    for r in (S_PLD, S_PSTB):
        A.e(f"s_xor_b32 s{r}, s{r}, 0x80000")
    A.e("s_add_u32 s26, s26, 1")
    A.e("s_lshr_b32 s27, s26, 1")
    A.e("s_and_b32 s27, s27, 1")
    A.e(f"s_xor_b32 s{S_PH}, s27, 1")
    A.e("s_branch L_step")

    if opts.get("flags"):
        A.label("L_fkv_slow")
        A.e(f"s_mov_b32 s{S_SPIN}, 0")
        A.label("L_fkv_loop")
        A.e(f"v_lshrrev_b32 v110, 2, v{V_L16}")
        A.e(f"buffer_load_dword v111, v110, {WSRD}, s{S_FKV} offen sc1")
        A.e(f"s_add_u32 s{S_SPIN}, s{S_SPIN}, 1")
        A.e(f"s_cmp_gt_u32 s{S_SPIN}, {SPIN_MAX*10}")
        A.e("s_cbranch_scc1 L_fail")
        A.e("s_waitcnt vmcnt(0)")
        A.e("v_cmp_eq_u32 vcc, 0, v111")
        A.e("s_and_b32 vcc_lo, vcc_lo, 3")
        A.e("s_cbranch_scc1 L_fkv_loop")
        A.e("s_branch L_fkv_ok")
    A.label("L_last")
    for m in vms[2:]:
        A.e(m)
    A.e("s_nop 7")
    A.e("v_pk_add_f32 v[48:49], v[48:49], v[50:51]")
    A.e("v_pk_add_f32 v[52:53], v[52:53], v[54:55]")
    A.e(f"v_cvt_pk_bf16_f32 v{V_KV4+2}, v48, v49")
    A.e(f"v_cvt_pk_bf16_f32 v{V_KV4+3}, v52, v53")
    A.e(f"buffer_store_dwordx4 v[{V_KV4}:{V_KV4+3}], v{V_L16}, {WSRD}, s{S_KM} offen sc1")
    A.e("s_waitcnt vmcnt(0)")
    if opts.get("flags"):
        A.e("s_mov_b64 exec, 1")
        A.e(f"buffer_store_dword v{V_IDX}, v{V_PM0+1}, {WSRD}, s{S_FKM} offen sc1")
        A.e(f"s_add_u32 s{S_FKM}, s{S_FKM}, {FL_SEG}")
        A.e(f"buffer_store_dword v{V_IDX}, v{V_PM0+1}, {WSRD}, s{S_FKM} offen sc1")
        A.e("s_mov_b64 exec, -1")
        A.e("s_waitcnt vmcnt(0)")
    if opts.get("total"):
        A.e("s_memtime s[86:87]")
        A.e("s_memrealtime s[88:89]")
        A.e("s_waitcnt lgkmcnt(0)")
        A.e("s_sub_u32 s64, s84, s80")
        A.e("s_sub_u32 s65, s88, s84")
        A.e("s_sub_u32 s66, s86, s82")
    if opts.get("stamps") or opts.get("total"):
        A.e("s_cmp_lg_u32 s24, 0")
        A.e("s_cbranch_scc1 L_exit")
        A.e("s_cmp_lg_u32 s25, 0")
        A.e("s_cbranch_scc1 L_exit")
        A.e(f"s_load_dwordx2 s[36:37], s[0:1], {KA_DBG}")
        A.e("s_waitcnt lgkmcnt(0)")
        A.e("v_mov_b32 v1, 0")
        for i in range(12):
            A.e(f"v_mov_b32 v2, s{64+i}")
            A.e(f"global_store_dword v1, v2, s[36:37] offset:{128 + 4*i}")
        A.e("s_waitcnt vmcnt(0)")
    A.e("s_branch L_exit")
    A.label("L_fail")
    A.e("s_mov_b64 exec, -1")
    A.e(f"s_load_dwordx2 s[36:37], s[0:1], {KA_DBG}")
    A.e("s_waitcnt vmcnt(0) lgkmcnt(0)")
    A.e("v_mov_b32 v1, 0")
    A.e("v_mov_b32 v2, 0xdead")
    A.e("global_store_dword v1, v2, s[36:37] offset:252")
    A.e("s_waitcnt vmcnt(0)")
    A.e("s_branch L_exit")
```

```python
from asm import *
from layout import *
import struct, math

L_KS = 0x0000
L_VS = 0x2000
L_QT = 0x4000
L_KT = 0x5000
L_OX = 0x6000
L_MS = 0x6000
L_WO = 0x8000
SPIN_MAX = 200000

(V_L16, V_IDX, V_QW, V_QR0, V_QR1, V_KXA, V_VXA, V_WOL, V_PST, V_MST, V_DK, V_DV) = range(112, 124)
V_PM0 = 124
V_PM1 = 126
V_KV4 = 104
V_PX = 108
V_T = 110
S_WQ, S_WK, S_WV, S_WO, S_WS = 4, 8, 12, 16, 20
S_H, S_W, S_STEP = 24, 25, 26
S_C = 40
S_SPIN = 45
S_OXM, S_MSTM = 48, 50
S_MEMRD, S_MEMRD4 = 52, 53
S_PST = 54
S_PLD = 55
S_PPZ = 56
S_MST, S_MPZ = 57, 58
S_KM = 59
S_KD, S_VD = 90, 91
S_KL, S_VL = 92, 93
S_TK = 94
S_PSTB = 95
S_FKV = 99
S_FKM = 100
S_PPZ2 = 46
S_LO, S_HI = 42, 43
S_B2M = 38
S_MSW = 47
S_MR = 96
CSCALE = struct.unpack("<I", struct.pack("<f", (128 ** -0.5) * math.log2(math.e)))[0]
WSRD = f"s[{S_WS}:{S_WS+3}]"

def wreg(mat, t, c):
    if mat < 2:
        return ("a", 128 * mat + 64 * t + 8 * c)
    return ("v", 128 + 64 * t + 8 * c)
def rr(kind, base, n):
    return f"{kind}[{base}:{base+n-1}]"

def isvalu(s):
    return s.startswith("v_") and not s.startswith("v_mfma") and not s.startswith("v_smfmac")

def weave(A, mfmas, fillers, nv=1, no=2):
    fillers = list(fillers)
    for m in mfmas:
        A.e(m)
        v = o = 0
        while fillers:
            f = fillers[0]
            if f.endswith(":"):
                A.label(f[:-1]); fillers.pop(0); continue
            if isvalu(f):
                if v >= nv: break
                v += 1
            else:
                if o + v >= 3: break
                o += 1
            A.e(f); fillers.pop(0)
            if v + o >= 3: break
    return fillers

def flush(A, fillers):
    for f in fillers:
        if f.endswith(":"): A.label(f[:-1])
        else: A.e(f)

def stamp(A, opts, idx):
    if opts.get("stamps") and (opts.get("only") is None or idx in opts["only"]):
        A.e("s_waitcnt lgkmcnt(0)")
        A.e("s_memtime s[60:61]")
        A.e("s_waitcnt lgkmcnt(0)")
        A.e(f"s_sub_u32 s62, s60, s63")
        A.e(f"s_add_u32 s{64+idx}, s{64+idx}, s62")
        A.e("s_mov_b32 s63, s60")

def gen_setup(A, opts):
    for s, ka in ((S_WQ, KA_WQ), (S_WK, KA_WK), (S_WV, KA_WV), (S_WO, KA_WO), (S_WS, KA_WS)):
        A.e(f"s_load_dwordx2 s[{s}:{s+1}], s[0:1], {ka}")
    A.e("v_lshrrev_b32 v1, 6, v0")
    A.e("v_and_b32 v2, 63, v0                 ; lane")
    A.e("v_readfirstlane_b32 s25, v1          ; wave")
    A.e("s_waitcnt lgkmcnt(0)")
    for s, n in ((S_WQ, 0x400000), (S_WK, 0x400000), (S_WV, 0x400000), (S_WO, 0x400000), (S_WS, WS_SIZE)):
        A.e(f"s_mov_b32 s{s+2}, {hex(n)}")
        A.e(f"s_mov_b32 s{s+3}, 0x00020000")
    A.e(f"s_mov_b32 s{S_C}, {hex(CSCALE)}")
    A.e(f"s_mov_b32 s{S_C+1}, {hex(CSCALE)}")
    A.e(f"s_mov_b32 s{S_MSTM}, 0x00550055")
    A.e(f"s_mov_b32 s{S_MSTM+1}, 0x00550055")
    A.e("s_and_b32 s27, s25, 1")
    A.e("s_cmp_eq_u32 s27, 0")
    A.e(f"s_mov_b32 s28, 0xcccccccc")
    A.e(f"s_cselect_b32 s{S_OXM}, 0x33333333, s28")
    A.e(f"s_mov_b32 s{S_OXM+1}, s{S_OXM}")
    A.e("v_and_b32 v3, 15, v2")
    A.e("v_lshrrev_b32 v4, 4, v2")
    A.e("v_bfe_u32 v5, v2, 2, 2")
    A.e("v_and_b32 v6, 3, v2")
    A.e("v_and_b32 v9, 1, v4")
    A.e("v_lshrrev_b32 v10, 1, v4")
    A.e(f"v_lshlrev_b32 v{V_L16}, 4, v2")
    A.e(f"v_mov_b32 v{V_IDX}, 0x44444444")
    A.e("v_mov_b32 v7, 0xeeeeeeee")
    A.e("v_and_b32 v8, 2, v2")
    A.e("v_cmp_ne_u32 vcc, 0, v8")
    A.e("s_nop 1")
    A.e(f"v_cndmask_b32 v{V_IDX}, v{V_IDX}, v7, vcc")
    A.e("s_lshl_b32 s27, s25, 5")
    A.e("v_add_u32 v7, s27, v3")
    A.e("v_lshlrev_b32 v7, 5, v7")
    A.e("v_lshrrev_b32 v8, 1, v7")
    A.e("v_and_b32 v8, 128, v8")
    A.e("v_xor_b32 v7, v7, v8")
    A.e("v_lshl_add_u32 v7, v4, 3, v7")
    A.e(f"v_add_u32 v{V_QW}, {hex(L_QT)}, v7")
    A.e("v_lshlrev_b32 v7, 3, v4")
    A.e("v_add_u32 v7, v7, v5")
    A.e("v_lshlrev_b32 v7, 5, v7")
    A.e("v_lshrrev_b32 v8, 1, v7")
    A.e("v_and_b32 v8, 128, v8")
    A.e("v_xor_b32 v7, v7, v8")
    A.e("v_lshl_add_u32 v7, v6, 3, v7")
    A.e(f"v_add_u32 v{V_QR0}, {hex(L_QT)}, v7")
    A.e(f"v_xor_b32 v{V_QR1}, 128, v{V_QR0}")
    A.e("v_xor_b32 v7, v4, v3")
    A.e("v_lshlrev_b32 v7, 4, v7")
    A.e("v_lshl_add_u32 v7, v3, 8, v7")
    A.e(f"v_add_u32 v{V_KXA}, {hex(L_KS)}, v7")
    A.e("v_lshlrev_b32 v7, 2, v4")
    A.e("v_add_u32 v7, v7, v5")
    A.e("v_lshlrev_b32 v7, 6, v7")
    A.e("v_lshl_add_u32 v7, v9, 5, v7")
    A.e("v_lshl_add_u32 v7, v6, 3, v7")
    A.e("s_lshl_b32 s27, s25, 11")
    A.e(f"s_add_u32 s27, s27, {hex(L_VS)}")
    A.e(f"v_add_u32 v{V_VXA}, s27, v7")
    A.e("s_lshl_b32 s27, s25, 15")
    A.e(f"s_add_u32 s27, s27, {hex(L_WO)}")
    A.e(f"v_add_u32 v{V_WOL}, s27, v{V_L16}")
    A.e("v_lshrrev_b32 v7, 2, v3")
    A.e("v_lshlrev_b32 v7, 13, v7")
    A.e("v_lshl_add_u32 v7, v4, 11, v7")
    A.e(f"v_lshl_add_u32 v{V_PST}, v6, 4, v7")
    A.e("v_bfe_u32 v7, v2, 2, 1")
    A.e("v_lshl_add_u32 v7, v7, 1, v10")
    A.e("s_lshl_b32 s27, s25, 2")
    A.e("v_add_u32 v7, s27, v7")
    A.e("v_lshlrev_b32 v7, 4, v7")
    A.e("v_bfe_u32 v8, v2, 1, 1")
    A.e("v_lshl_add_u32 v8, v9, 1, v8")
    A.e(f"v_lshl_add_u32 v{V_MST}, v8, 2, v7")
    A.e("v_xor_b32 v7, v3, v4")
    A.e("v_lshlrev_b32 v7, 4, v7")
    A.e("v_lshl_add_u32 v7, v4, 8, v7")
    A.e("s_lshl_b32 s27, s25, 1")
    A.e("s_and_b32 s27, s27, 3")
    A.e("s_lshl_b32 s27, s27, 6")
    A.e(f"v_xor_b32 v{V_DK}, s27, v7")
    A.e("v_lshlrev_b32 v7, 1, v9")
    A.e("v_xor_b32 v7, v7, v6")
    A.e("v_lshlrev_b32 v7, 4, v7")
    A.e("v_lshrrev_b32 v8, 2, v2")
    A.e(f"v_lshl_add_u32 v{V_DV}, v8, 8, v7")
    A.e(f"v_mov_b32 v{V_PM0+1}, 0")
    A.e(f"v_mov_b32 v{V_PM1}, 0")

def gen_weights(A, opts):
    A.e("v_lshrrev_b32 v7, 2, v2")
    A.e("v_lshlrev_b32 v7, 13, v7")
    A.e("v_lshl_add_u32 v20, v6, 4, v7")
    A.e("v_lshrrev_b32 v8, 1, v5              ; r>>1")
    A.e("v_lshlrev_b32 v7, 5, v8              ; 32*(r>>1)")
    A.e("v_lshl_add_u32 v7, v9, 4, v7         ; + 16*(gb&1)")
    A.e("v_lshl_add_u32 v7, v10, 2, v7        ; + 4*(gb>>1)")
    A.e("v_and_b32 v11, 1, v5                 ; r&1")
    A.e("v_add_u32 v7, v7, v11")
    A.e("v_lshlrev_b32 v7, 6, v7")
    A.e("v_lshl_add_u32 v7, v6, 3, v7")
    A.e("s_lshl_b32 s29, s25, 15")
    A.e(f"s_add_u32 s29, s29, {hex(L_WO)}")
    A.e("v_add_u32 v21, s29, v7")
    A.e("s_lshl_b32 s30, s25, 13")
    A.e("v_add_u32 v22, s30, v7")
    A.e("v_lshrrev_b32 v7, 1, v3")
    A.e("v_xor_b32 v7, v7, v9")
    A.e("v_lshlrev_b32 v7, 5, v7")
    A.e("v_lshl_add_u32 v7, v4, 10, v7")
    A.e("v_and_b32 v12, 1, v2")
    A.e("v_lshl_add_u32 v23, v12, 4, v7")
    A.e("v_lshlrev_b32 v7, 5, v8")
    A.e("v_lshl_add_u32 v7, v9, 4, v7")
    A.e("v_lshl_add_u32 v7, v10, 2, v7")
    A.e("v_add_u32 v7, v7, v11")
    A.e("v_lshlrev_b32 v7, 8, v7")
    A.e("v_lshl_add_u32 v12, v9, 1, v11")
    A.e("v_lshl_add_u32 v12, v8, 2, v12")
    A.e("v_lshl_add_u32 v7, v12, 5, v7")
    A.e("v_lshl_add_u32 v7, v6, 3, v7")
    A.e("v_add_u32 v25, s29, v7")
    A.e("s_lshl_b32 s28, s24, 8")
    A.e("s_lshl_b32 s33, s25, 6")
    A.e("s_add_u32 s28, s28, s33              ; h*256 + w*64")
    A.e("s_lshl_b32 s31, s24, 17")
    A.e("s_lshl_b32 s32, s25, 8")
    A.e("s_add_u32 s31, s31, s32              ; h*128*1024 + w*256")
    def issue_unit(u):
        mat, c = divmod(u, 8)
        slot = u % 10
        srdreg = (S_WQ, S_WK, S_WV)[mat]
        for uu in range(4):
            if slot < 8:
                A.e(f"s_add_u32 m0, s29, {slot*4096 + uu*1024}")
            else:
                A.e(f"s_add_u32 m0, s30, {(slot-8)*4096 + uu*1024}")
            if uu == 0:
                A.e("s_lshl_b32 s34, s25, 1")
                A.e(f"s_add_u32 s34, s34, {c}")
                A.e("s_and_b32 s34, s34, 7")
                A.e("s_lshl_b32 s34, s34, 19")
                A.e("s_add_u32 s34, s34, s28")
            A.e(f"s_add_u32 s33, s34, {(16*uu) * 8192}")
            A.e(f"buffer_load_dwordx4 v20, s[{srdreg}:{srdreg+3}], s33 offen lds")
    def issue_wo(k):
        A.e(f"v_xor_b32 v24, {(k & 3) << 6}, v23")
        for uu in range(4):
            A.e(f"s_add_u32 m0, s29, {k*4096 + uu*1024}")
            A.e(f"s_add_u32 s33, s31, {(16*k + 4*uu) * 1024}")
            A.e(f"buffer_load_dwordx4 v24, s[{S_WO}:{S_WO+3}], s33 offen lds")
    issued = 0
    for u in range(10):
        issue_unit(u); issued += 1
    for u in range(24):
        mat, c = divmod(u, 8)
        slot = u % 10
        A.e(f"s_waitcnt vmcnt({(issued - (u + 1)) * 4})")
        for t in range(2):
            kind, base = wreg(mat, t, c)
            for m in range(4):
                off = 512 * (m >> 1) + 128 * (m & 1) + 32 * t
                if slot < 8:
                    A.e(f"ds_read_b64_tr_b16 {rr(kind, base + 2*m, 2)}, v21 offset:{slot*4096 + off}")
                else:
                    A.e(f"ds_read_b64_tr_b16 {rr(kind, base + 2*m, 2)}, v22 offset:{(slot-8)*4096 + off}")
        A.e("s_waitcnt lgkmcnt(0)")
        if u + 10 < 24:
            issue_unit(u + 10); issued += 1
        elif 14 <= u <= 17:
            issue_wo(u - 10); issued += 1
        elif u >= 20:
            issue_wo(u - 20); issued += 1
    A.e("s_waitcnt vmcnt(0)")
    for cc in range(2):
        for t in range(8):
            if t == 0:
                ad = 25
            else:
                A.e(f"v_xor_b32 v26, {t << 5}, v25")
                ad = 26
            for m in range(4):
                off = (64 * cc + 8 * (m >> 1) + 2 * (m & 1)) * 256
                A.e(f"ds_read_b64_tr_b16 v[{32+8*t+2*m}:{33+8*t+2*m}], v{ad} offset:{off}")
            if t % 2 == 1:
                A.e("s_waitcnt lgkmcnt(0)")
        for t in range(8):
            for half in range(2):
                A.e(f"ds_write_b128 v{V_WOL}, v[{32+8*t+4*half}:{35+8*t+4*half}] offset:{cc*16384 + t*2048 + half*1024}")
            if t % 4 == 3:
                A.e("s_waitcnt lgkmcnt(0)")
    A.e("s_barrier")


def k_dma(T):
    return [f"s_mov_b32 m0, s{S_KL}",
            f"v_xor_b32 v{T}, 64, v{V_DK}",
            f"buffer_load_dwordx4 v{V_DK}, {WSRD}, s{S_KD} offen sc1 lds",
            f"s_add_u32 m0, s{S_KL}, 1024",
            f"s_add_u32 s{S_KD}, s{S_KD}, 1024",
            f"buffer_load_dwordx4 v{T}, {WSRD}, s{S_KD} offen sc1 lds"]
def v_dma():
    return [f"s_mov_b32 m0, s{S_VL}",
            f"s_add_u32 s33, s{S_VD}, 4096",
            f"buffer_load_dwordx4 v{V_DV}, {WSRD}, s{S_VD} offen sc1 lds",
            f"s_add_u32 m0, s{S_VL}, 1024",
            "s_nop 0",
            f"buffer_load_dwordx4 v{V_DV}, {WSRD}, s33 offen sc1 lds"]

class Lds:
    def __init__(self, A): self.A = A; self.q = []
    def issue(self, instr, tag=None):
        self.A.e(instr); self.q.append(tag)
        assert len(self.q) <= 15, "more than 15 LDS operations outstanding"
    def note(self, tag=None):
        self.q.append(tag)
        assert len(self.q) <= 15, "more than 15 LDS operations outstanding"
    def wait(self, tag):
        if tag not in self.q: return None
        i = max(k for k, t in enumerate(self.q) if t == tag)
        n = len(self.q) - 1 - i
        self.q = self.q[i + 1:]
        return f"s_waitcnt lgkmcnt({n})"
    def waitall(self):
        self.q = []
        return "s_waitcnt lgkmcnt(0)"


def gen_chain(A, opts):
    A("; ---------------- chain role: s24 = head ----------------")
    if opts.get("total"):
        A.e("s_memrealtime s[80:81]")
    gen_setup(A, opts)
    gen_weights(A, opts)
    flags = opts.get("flags")
    A.e(f"s_mov_b32 s{S_LO}, 0x00003f80")
    A.e(f"s_mov_b32 s{S_HI}, 0x3f800000")
    A.e(f"s_mov_b32 s{S_B2M}, 0xf0f0f0f0")
    A.e(f"s_mov_b32 s{S_B2M+1}, 0xf0f0f0f0")
    A.e("s_lshl_b32 s27, s25, 11")
    A.e(f"s_add_u32 s{S_KL}, s27, {hex(L_KS)}")
    A.e(f"s_add_u32 s{S_VL}, s27, {hex(L_VS)}")
    A.e(f"s_add_u32 s{S_MSW}, s27, 0                 ; w*2048")
    for p in range(1, 4):
        A.e(f"s_add_u32 s28, s27, {2048*p}")
        A.e(f"s_and_b32 s{S_MR+p-1}, s28, 0x1fff")
    A.e(f"s_add_u32 s{S_MEMRD}, s27, {hex(WS_MEM)}")
    A.e("s_mov_b32 s26, 0")
    flush(A, ["s_lshl_b32 s33, s24, 13",
              f"s_add_u32 s{S_KD}, s33, s27",
              f"s_add_u32 s{S_KD}, s{S_KD}, {hex(WS_KX)}",
              "s_lshl_b32 s34, s25, 6",
              f"s_add_u32 s{S_VD}, s33, s34",
              f"s_add_u32 s{S_VD}, s{S_VD}, {hex(WS_VX)}"])
    if flags:
        A.e("s_lshl_b32 s33, s24, 3")
        A.e(f"s_add_u32 s{S_FKV}, s33, {hex(WS_FLAG)}")
        A.e(f"v_lshrrev_b32 v110, 2, v{V_L16}")
        A.e(f"s_mov_b32 s{S_SPIN}, 0")
        A.label("L_fkv0")
        A.e(f"buffer_load_dword v111, v110, {WSRD}, s{S_FKV} offen sc1")
        A.e(f"s_add_u32 s{S_SPIN}, s{S_SPIN}, 1")
        A.e(f"s_cmp_gt_u32 s{S_SPIN}, {SPIN_MAX*10}")
        A.e("s_cbranch_scc1 L_fail")
        A.e("s_waitcnt vmcnt(0)")
        A.e("v_cmp_eq_u32 vcc, 0, v111")
        A.e("s_and_b32 vcc_lo, vcc_lo, 3")
        A.e("s_cbranch_scc1 L_fkv0")
        A.e("s_lshl_b32 s33, s24, 4")
        A.e("s_lshl_b32 s34, s25, 2")
        A.e("s_add_u32 s33, s33, s34")
        A.e(f"s_add_u32 s{S_FKM}, s33, {hex(WS_FLAG + 4*FL_KM - 2*FL_SEG)}")
    flush(A, k_dma(V_T))
    flush(A, v_dma())
    for r in range(32, 56, 2):
        A.e(f"v_mov_b64 v[{r}:{r+1}], 0")
    flush(A, ["s_lshl_b32 s29, s24, 13",
              "s_lshl_b32 s30, s25, 11",
              "s_add_u32 s29, s29, s30",
              f"s_add_u32 s{S_PLD}, s29, {hex(WS_P)}",
              f"s_xor_b32 s{S_PPZ}, s{S_PLD}, 0x40000",
              "s_lshl_b32 s29, s25, 16              ; 8w*8192",
              "s_lshl_b32 s30, s24, 6",
              "s_add_u32 s29, s29, s30",
              f"s_add_u32 s{S_PSTB}, s29, {hex(WS_P)}",
              "s_lshl_b32 s29, s24, 8",
              f"s_add_u32 s{S_MPZ}, s29, {hex(WS_MEM)}",
              f"s_xor_b32 s{S_MST}, s{S_MPZ}, 0x2000",
              "s_lshl_b32 s27, s24, 12",
              "s_lshl_b32 s28, s25, 10",
              "s_add_u32 s27, s27, s28",
              f"s_add_u32 s{S_KM}, s27, {hex(WS_KMVM - 0x20000)}"])
    def ms_addr():
        return [f"v_add_u32 v88, s{S_MSW}, v{V_L16}"] + [f"v_add_u32 v{89+p}, s{S_MR+p}, v{V_L16}" for p in range(3)]
    flush(A, ms_addr())
    if opts.get("stamps"):
        for i in range(16):
            A.e(f"s_mov_b32 s{64+i}, 0")
        A.e("s_memtime s[60:61]")
        A.e("s_waitcnt lgkmcnt(0)")
        A.e("s_mov_b32 s63, s60")
    if opts.get("total"):
        A.e("s_mov_b32 s67, 0")
        A.e("s_mov_b32 s68, 0")
        A.e("s_waitcnt vmcnt(0)")
        A.e("s_memtime s[82:83]")
        A.e("s_memrealtime s[84:85]")
        A.e("s_waitcnt lgkmcnt(0)")
    A.e("s_waitcnt vmcnt(0)")

    L = Lds(A)
    def qk(c):
        out = []
        for mat in range(2):
            for t in range(2):
                kind, base = wreg(mat, t, c)
                acc = 32 + 8 * mat + 4 * t
                out.append(f"v_smfmac_f32_16x16x64_bf16 v[{acc}:{acc+3}], v[{4*c}:{4*c+3}], {rr(kind, base, 8)}, v{V_IDX}")
        return out
    def vm(c, t):
        kind, base = wreg(2, t, c)
        acc = 48 + 4 * t
        return f"v_smfmac_f32_16x16x64_bf16 v[{acc}:{acc+3}], v[{4*c}:{4*c+3}], {rr(kind, base, 8)}, v{V_IDX}"
    vms = [vm(c, t) for c in range(8) for t in range(2)]
    def em(x, tag=None):
        if x is None: return
        if x.startswith("ds_"): L.issue(x, tag)
        else: A.e(x)
    def slot(m, o=(), v=None):
        A.e(m)
        for x in o:
            if isinstance(x, tuple): em(x[0], x[1])
            else: em(x)
        if v: A.e(v)

    A.label("L_step")
    if opts.get("trace"):
        A.e("s_or_b32 s27, s24, s25")
        A.e("s_cmp_lg_u32 s27, 0")
        A.e("s_cbranch_scc1 L_notrace")
        A.e("s_memrealtime s[60:61]")
        A.e("s_lshl_b32 s27, s26, 2")
        A.e(f"s_add_u32 s27, s27, {hex(WS_TRACE)}")
        A.e("s_waitcnt lgkmcnt(0)")
        A.e("v_mov_b32 v108, s60")
        A.e("s_mov_b64 exec, 1")
        A.e(f"buffer_store_dword v108, v{V_PM0+1}, {WSRD}, s27 offen")
        A.e("s_mov_b64 exec, -1")
        A.label("L_notrace")
    for _ in range(opts.get("d2", 0)): A.e("s_nop 7")
    A.e(f"s_mov_b32 s{S_SPIN}, 0")
    A.label("L_poll2")
    A.e(f"buffer_load_dwordx4 v[0:3], v{V_L16}, {WSRD}, s{S_MEMRD} offen sc1")
    A.e(f"buffer_load_dwordx4 v[4:7], v{V_L16}, {WSRD}, s{S_MEMRD} offen offset:1024 sc1")
    A.e(f"s_add_u32 s{S_SPIN}, s{S_SPIN}, 1")
    A.e(f"s_cmp_gt_u32 s{S_SPIN}, {SPIN_MAX}")
    A.e("s_cbranch_scc1 L_fail")
    A.e("s_waitcnt vmcnt(1)")
    A.e("v_max3_u32 v108, v0, v1, v2")
    A.e("v_max_u32 v108, v108, v3")
    A.e("s_waitcnt vmcnt(0)")
    A.e("v_max3_u32 v109, v4, v5, v6")
    A.e("v_max3_u32 v108, v108, v109, v7")
    A.e("v_cmp_eq_u32 vcc, -1, v108")
    if not opts.get("nocheck2"): A.e("s_cbranch_vccnz L_poll2")
    if opts.get("total"): A.e(f"s_add_u32 s67, s67, s{S_SPIN}")
    stamp(A, opts, 0)
    L.issue(f"ds_write_b128 v88, v[0:3] offset:{L_MS}", "msw")
    L.issue(f"ds_write_b128 v88, v[4:7] offset:{L_MS + 1024}", "msw")
    m01 = qk(0) + qk(1)
    for m in m01[:4]: A.e(m)
    A.e(L.wait("msw"))
    A.e("s_barrier")
    msr = [(f"ds_read_b128 v[{4*c}:{4*c+3}], v{89 + (c-2)//2} offset:{L_MS + 1024*(c%2)}", f"m{c}") for c in range(2, 8)]
    em(*msr[0]); em(*msr[1])
    slot(m01[4], [msr[2], msr[3]])
    slot(m01[5], [msr[4], msr[5]])
    kx = []
    for ks in range(4):
        ad = V_KXA if ks == 0 else 109
        for kt in range(2):
            kx.append((f"ds_read_b128 v[{56+16*kt+4*ks}:{59+16*kt+4*ks}], v{ad} offset:{4096*kt}", "kx"))
    slot(m01[6], [kx[0], kx[1]], f"v_xor_b32 v109, 64, v{V_KXA}")
    slot(m01[7], [kx[2], kx[3]], f"v_xor_b32 v109, 128, v{V_KXA}")
    sched = {}
    sched[0] = ([kx[4], kx[5]], f"v_xor_b32 v109, 192, v{V_KXA}")
    sched[1] = ([kx[6], kx[7]], None)
    sched[2] = ([f"s_mov_b32 s{S_PST}, s{S_PSTB}", f"s_add_u32 s{S_KD}, s{S_KD}, {hex(0x40000 - 1024)}"], "v_mov_b64 v[88:89], -1")
    sched[3] = ([f"s_add_u32 s{S_VD}, s{S_VD}, 0x40000"], "v_mov_b64 v[90:91], -1")
    sched[5] = ([f"buffer_store_dwordx4 v[88:91], v{V_L16}, {WSRD}, s{S_PPZ} offen"], None)
    sched[9] = ([f"buffer_store_dwordx4 v[88:91], v{V_L16}, {WSRD}, s{S_PPZ} offen offset:1024"], None)
    if flags:
        sched[11] = ([f"s_add_u32 s{S_FKV}, s{S_FKV}, {FL_SEG}"], f"v_lshrrev_b32 v110, 2, v{V_L16}")
        sched[12] = ([f"buffer_load_dword v111, v110, {WSRD}, s{S_FKV} offen sc1"], None)
        sched[15] = ([f"s_mov_b64 exec, 1\n    buffer_store_dword v{V_IDX}, v{V_PM0+1}, {WSRD}, s{S_FKM} offen sc1\n    s_mov_b64 exec, -1"], None)
        sched[16] = ([f"s_add_u32 s{S_FKM}, s{S_FKM}, {FL_SEG}"], None)
    sched[19] = ([f"buffer_store_dwordx4 v[{V_KV4}:{V_KV4+3}], v{V_L16}, {WSRD}, s{S_KM} offen sc1"], None)
    sched[20] = ([f"s_add_u32 s{S_KM}, s{S_KM}, 0x20000"], None)
    i = 0
    for c in range(2, 8):
        w = L.wait(f"m{c}")
        if w: A.e(w)
        for m in qk(c):
            o, v = sched.get(i, ((), None))
            slot(m, o, v)
            i += 1
    stamp(A, opts, 1)
    A.e(vms[0]); A.e(vms[1])
    A.e("s_cmp_eq_u32 s26, 63")
    A.e("v_pk_add_f32 v[32:33], v[32:33], v[34:35]")
    A.e("v_pk_add_f32 v[36:37], v[36:37], v[38:39]")
    A.e("v_pk_add_f32 v[40:41], v[40:41], v[42:43]")
    A.e("v_pk_add_f32 v[44:45], v[44:45], v[46:47]")
    A.e("v_cvt_pk_bf16_f32 v108, v32, v33")
    A.e("v_cvt_pk_bf16_f32 v109, v36, v37")
    L.issue(f"ds_write2_b32 v{V_QW}, v108, v108 offset0:0 offset1:1")
    A.e(f"v_cvt_pk_bf16_f32 v{V_KV4}, v40, v41")
    L.issue(f"ds_write2_b32 v{V_QW}, v109, v109 offset0:128 offset1:129")
    A.e(f"v_cvt_pk_bf16_f32 v{V_KV4+1}, v44, v45")
    L.issue(f"ds_write2st64_b32 v{V_QW}, v{V_KV4}, v{V_KV4+1} offset0:16 offset1:18")
    A.e("s_cbranch_scc1 L_last")
    for i in range(2, 8):
        A.e(vms[i])
    A.e(L.waitall())
    A.e("s_barrier")
    stamp(A, opts, 2)
    rd = []
    for ks in range(4):
        rd.append((f"ds_read_b64_tr_b16 v[{88+4*ks}:{89+4*ks}], v{V_QR0} offset:{1024*ks}", f"q{ks}"))
        rd.append((f"ds_read_b64_tr_b16 v[{90+4*ks}:{91+4*ks}], v{V_QR1} offset:{1024*ks}", f"q{ks}"))
    rk = []
    for ks in range(4):
        rk.append((f"ds_read_b64_tr_b16 v[{4*ks}:{4*ks+1}], v{V_QR0} offset:{4096 + 1024*ks}", "km"))
        rk.append((f"ds_read_b64_tr_b16 v[{4*ks+2}:{4*ks+3}], v{V_QR1} offset:{4096 + 1024*ks}", "km"))
    for x in rd[:4]: em(*x)
    slot(vms[8], rd[4:6]); slot(vms[9], rd[6:8]); slot(vms[10], rk[0:2]); slot(vms[11], rk[2:4])
    sc = []
    for ks in range(4):
        for kt in range(2):
            c = "0" if ks == 0 else f"v[{32+4*kt}:{35+4*kt}]"
            sc.append(f"v_mfma_f32_16x16x32_bf16 v[{32+4*kt}:{35+4*kt}], v[{56+16*kt+4*ks}:{59+16*kt+4*ks}], v[{88+4*ks}:{91+4*ks}], {c}")
    kd = k_dma(110)
    if flags:
        A.e("s_waitcnt vmcnt(2)")
        A.e("v_cmp_eq_u32 vcc, 0, v111")
    A.e(L.wait("q0")); slot(sc[0], rk[4:6]); slot(sc[1], rk[6:8])
    if flags:
        A.e("s_and_b32 vcc_lo, vcc_lo, 3")
        A.e("s_cbranch_scc1 L_fkv_slow")
        A.label("L_fkv_ok")
    w = L.wait("q1")
    if w: A.e(w)
    slot(sc[2], [kd[0]], kd[1]); slot(sc[3], [kd[2], kd[3]])
    w = L.wait("q2")
    if w: A.e(w)
    slot(sc[4], [kd[4]]); slot(sc[5], [kd[5]])
    w = L.wait("q3")
    if w: A.e(w)
    slot(sc[6]); slot(sc[7])
    A.e(L.wait("km"))
    ms = []
    for ks in range(4):
        c = "0" if ks == 0 else "v[40:43]"
        ms.append(f"v_mfma_f32_16x16x32_bf16 v[40:43], v[{4*ks}:{4*ks+3}], v[{88+4*ks}:{91+4*ks}], {c}")
    slot(ms[0], [(f"ds_read_b64_tr_b16 v[56:57], v{V_VXA}", "vx"), (f"ds_read_b64_tr_b16 v[58:59], v{V_VXA} offset:1024", "vx")], f"v_xor_b32 v110, 32, v{V_VXA}")
    slot(ms[1], [(f"ds_read_b64_tr_b16 v[60:61], v110", "vx"), (f"ds_read_b64_tr_b16 v[62:63], v110 offset:1024", "vx")])
    slot(ms[2]); slot(ms[3])
    ops = [(t, cc) for t in range(8) for cc in range(2)]
    slots = [0, 8, 16, 24, 44, 32, 96]
    def wo_rd(i):
        t, cc = ops[i]
        b = slots[i % len(slots)]
        return [(f"ds_read_b128 v[{b}:{b+3}], v{V_WOL} offset:{cc*16384 + t*2048}", f"w{i}"),
                (f"ds_read_b128 v[{b+4}:{b+7}], v{V_WOL} offset:{cc*16384 + t*2048 + 1024}", f"w{i}")]
    slot(vms[12], wo_rd(0)); slot(vms[13], wo_rd(1)); slot(vms[14]); slot(vms[15])
    stamp(A, opts, 3)
    A.e("v_max3_f32 v44, v32, v33, v34")
    A.e("v_max3_f32 v45, v35, v36, v37")
    A.e("v_max3_f32 v44, v44, v38, v39")
    A.e("v_max3_f32 v45, v45, v40, v41")
    A.e("v_max_f32 v46, v44, v45")
    A.e("v_max_f32 v47, v44, v45")
    for x in wo_rd(2): em(*x)
    A.e("v_permlane32_swap_b32 v46, v47")
    A.e("v_max_f32 v44, v46, v47")
    A.e("v_max_f32 v45, v46, v47")
    for x in wo_rd(3): em(*x)
    A.e("v_permlane16_swap_b32 v44, v45")
    A.e("v_max_f32 v44, v44, v45")
    A.e(f"v_mul_f32 v44, s{S_C}, v44")
    for j in range(5):
        A.e(f"v_pk_fma_f32 v[{32+2*j}:{33+2*j}], v[{32+2*j}:{33+2*j}], s[{S_C}:{S_C+1}], v[44:45] op_sel_hi:[1,1,0] neg_lo:[0,0,1] neg_hi:[0,0,1]")
    for j in range(10):
        A.e(f"v_exp_f32 v{32+j}, v{32+j}")
    A.e("v_pk_add_f32 v[48:49], v[48:49], v[50:51]")
    A.e(f"v_cvt_pk_bf16_f32 v{V_PX}, v32, v33")
    A.e(f"v_cvt_pk_bf16_f32 v{V_PX+1}, v34, v35")
    A.e(f"v_cvt_pk_bf16_f32 v{V_PX+2}, v36, v37")
    A.e(f"v_cvt_pk_bf16_f32 v{V_PX+3}, v38, v39")
    A.e("v_pk_add_f32 v[52:53], v[52:53], v[54:55]")
    A.e(L.wait("vx"))
    A.e(f"v_cvt_pk_bf16_f32 v{V_KV4+2}, v48, v49")
    A.e("v_mfma_f32_16x16x32_bf16 v[96:99], v[56:59], v[%d:%d], 0" % (V_PX, V_PX + 3))
    A.e(f"v_cvt_pk_bf16_f32 v{V_KV4+3}, v52, v53")
    A.e("v_mfma_f32_16x16x32_bf16 v[100:103], v[60:63], v[%d:%d], 0" % (V_PX, V_PX + 3))
    A.e(f"v_cvt_pk_bf16_f32 v{V_PM0}, v40, v41")
    A.e(f"v_cvt_pk_bf16_f32 v{V_PM1+1}, v40, v41")
    A.e("v_pk_add_f32 v[52:53], v[32:33], v[34:35]")
    stamp(A, opts, 4)
    A.e(f"v_mfma_f32_16x16x16_bf16 v[96:99], v[{V_KV4+2}:{V_KV4+3}], v[{V_PM0}:{V_PM0+1}], v[96:99]")
    A.e("v_pk_add_f32 v[54:55], v[36:37], v[38:39]")
    A.e(f"v_mfma_f32_16x16x16_bf16 v[100:103], v[{V_KV4+2}:{V_KV4+3}], v[{V_PM1}:{V_PM1+1}], v[100:103]")
    A.e("v_pk_add_f32 v[52:53], v[52:53], v[40:41]")
    A.e("v_pk_add_f32 v[52:53], v[52:53], v[54:55]")
    A.e("v_mov_b64 v[48:49], 0")
    A.e("v_add_f32 v54, v52, v53")
    A.e("v_add_f32 v55, v52, v53")
    A.e("s_lshr_b32 s27, s25, 1")
    A.e("s_lshl_b32 s27, s27, 10")
    A.e("v_permlane32_swap_b32 v54, v55")
    A.e("v_add_f32 v52, v54, v55")
    A.e("v_add_f32 v53, v54, v55")
    A.e("v_mfma_f32_32x32x8_bf16 v[64:79], v[48:49], v[48:49], 0")
    A.e("s_nop 0")
    A.e("v_permlane16_swap_b32 v52, v53")
    A.e("v_add_f32 v52, v52, v53")
    A.e("v_rcp_f32 v52, v52")
    A.e(f"v_add_u32 v54, s27, v{V_L16}")
    for j in range(4):
        A.e(f"v_pk_mul_f32 v[{96+2*j}:{97+2*j}], v[{96+2*j}:{97+2*j}], v[52:53] op_sel_hi:[1,0]")
    for j in range(4):
        A.e(f"v_cvt_pk_bf16_f32 v{V_PX+j}, v{96+2*j}, v{97+2*j}")
    A.e(f"s_mov_b64 exec, s[{S_OXM}:{S_OXM+1}]")
    L.issue(f"ds_write_b128 v54, v[{V_PX}:{V_PX+3}] offset:{L_OX}", "ow")
    A.e("s_mov_b64 exec, -1")
    A.e("v_mfma_f32_32x32x8_bf16 v[80:95], v[48:49], v[48:49], 0")
    for x in wo_rd(5): em(*x)
    vd = v_dma()
    flush(A, vd[:3])
    A.e(L.wait("ow"))
    A.e("s_barrier")
    stamp(A, opts, 5)
    L.issue(f"ds_read_b128 v[56:59], v{V_L16} offset:{L_OX}", "oa")
    L.issue(f"ds_read_b128 v[60:63], v{V_L16} offset:{L_OX + 1024}", "oa")
    for x in wo_rd(4): em(*x)
    for x in wo_rd(6): em(*x)
    flush(A, vd[3:])
    A.e(L.wait("oa"))
    wo_m = []
    for i in range(16):
        t, cc = ops[i]
        b = slots[i % len(slots)]
        acc = 64 + 4 * t
        wo_m.append(f"v_smfmac_f32_16x16x64_bf16 v[{acc}:{acc+3}], v[{56+4*cc}:{59+4*cc}], v[{b}:{b+7}], v{V_IDX}")
    def ext(t):
        a = 64 + 4 * t; g = 64 + 16 * (t // 4)
        return [f"v_pk_add_f32 v[{a}:{a+1}], v[{a}:{a+1}], v[{a+2}:{a+3}]", f"v_cvt_pk_bf16_f32 v{g + t % 4}, v{a}, v{a+1}"]
    vq = []
    for i in range(16):
        w = L.wait(f"w{i}")
        if w: A.e(w)
        o = wo_rd(i + 7) if i + 7 < 16 else []
        if i >= 3 and (i - 3) % 2 == 0: vq += ext((i - 3) // 2)
        if i == 12: o = [f"buffer_store_dwordx4 v[64:67], v{V_PST}, {WSRD}, s{S_PST} offen", f"s_add_u32 s{S_PST}, s{S_PST}, 0x8000"]
        slot(wo_m[i], o, vq.pop(0) if vq else None)
    flush(A, vq)
    A.e("v_mov_b64 v[32:33], 0")
    A.e("v_mov_b64 v[34:35], 0")
    A.e("v_mov_b64 v[36:37], 0")
    A.e("v_mov_b64 v[38:39], 0")
    A.e("v_mov_b64 v[40:41], 0")
    A.e("v_mov_b64 v[42:43], 0")
    flush(A, ext(7))
    A.e(f"buffer_store_dwordx4 v[80:83], v{V_PST}, {WSRD}, s{S_PST} offen")
    stamp(A, opts, 6)
    for r in range(44, 56, 2):
        A.e(f"v_mov_b64 v[{r}:{r+1}], 0")
    flush(A, ms_addr())
    for _ in range(opts.get("d1", 0)): A.e("s_nop 7")
    A.e(f"s_mov_b32 s{S_SPIN}, 0")
    A.label("L_poll1")
    A.e(f"buffer_load_dwordx4 v[0:3], v{V_L16}, {WSRD}, s{S_PLD} offen sc1")
    A.e(f"buffer_load_dwordx4 v[4:7], v{V_L16}, {WSRD}, s{S_PLD} offen offset:1024 sc1")
    A.e(f"s_add_u32 s{S_SPIN}, s{S_SPIN}, 1")
    A.e(f"s_cmp_gt_u32 s{S_SPIN}, {SPIN_MAX}")
    A.e("s_cbranch_scc1 L_fail")
    A.e("s_waitcnt vmcnt(1)")
    stamp(A, opts, 7)
    for d in range(4):
        A.e(f"v_dot2_f32_bf16 v{8+2*d}, v{d}, s{S_LO}, 0")
        A.e(f"v_dot2_f32_bf16 v{9+2*d}, v{d}, s{S_HI}, 0")
    A.e("s_waitcnt vmcnt(0)")
    for d in range(4):
        A.e(f"v_dot2_f32_bf16 v{8+2*d}, v{4+d}, s{S_LO}, v{8+2*d}")
        A.e(f"v_dot2_f32_bf16 v{9+2*d}, v{4+d}, s{S_HI}, v{9+2*d}")
    A.e("s_nop 0")
    for d in range(4):
        A.e(f"v_permlane32_swap_b32 v{8+2*d}, v{9+2*d}")
    for d in range(4):
        A.e(f"v_add_f32 v{8+2*d}, v{8+2*d}, v{9+2*d}")
    A.e("v_mov_b32 v24, -1")
    A.e("v_permlane16_swap_b32 v8, v10")
    A.e("v_permlane16_swap_b32 v12, v14")
    A.e("v_add_f32 v8, v8, v10")
    A.e("v_add_f32 v12, v12, v14")
    A.e("s_nop 0")
    A.e("v_add_f32_dpp v8, v8, v8 row_ror:8 row_mask:0xf bank_mask:0xf")
    A.e("v_add_f32_dpp v12, v12, v12 row_ror:8 row_mask:0xf bank_mask:0xf")
    A.e("s_nop 0")
    A.e("v_add_f32_dpp v8, v8, v8 row_ror:4 row_mask:0xf bank_mask:0xf")
    A.e("v_add_f32_dpp v12, v12, v12 row_ror:4 row_mask:0xf bank_mask:0xf")
    A.e("s_nop 0")
    A.e("v_cmp_u_f32 vcc, v8, v12")
    A.e("v_mov_b32_dpp v9, v8 quad_perm:[1,0,3,2] row_mask:0xf bank_mask:0xf")
    A.e("v_mov_b32_dpp v13, v12 quad_perm:[1,0,3,2] row_mask:0xf bank_mask:0xf")
    A.e("v_cvt_pk_bf16_f32 v10, v8, v9")
    A.e("v_cvt_pk_bf16_f32 v14, v12, v13")
    if not opts.get("nocheck1"): A.e("s_cbranch_vccnz L_retry_p")
    A.label("L_ok_p")
    A.e(f"v_cndmask_b32 v10, v10, v14, s[{S_B2M}:{S_B2M+1}]")
    A.e(f"s_mov_b64 exec, s[{S_MSTM}:{S_MSTM+1}]")
    A.e(f"buffer_store_dword v10, v{V_MST}, {WSRD}, s{S_MST} offen")
    A.e(f"buffer_store_dword v24, v{V_MST}, {WSRD}, s{S_MPZ} offen")
    A.e("s_mov_b64 exec, -1")
    if opts.get("total"): A.e(f"s_add_u32 s68, s68, s{S_SPIN}")
    stamp(A, opts, 8)
    for r in (S_MEMRD, S_MST, S_MPZ):
        A.e(f"s_xor_b32 s{r}, s{r}, 0x2000")
    for r in (S_PLD, S_PPZ, S_PSTB):
        A.e(f"s_xor_b32 s{r}, s{r}, 0x40000")
    A.e("s_add_u32 s26, s26, 1")
    A.e("s_branch L_step")

    A.label("L_retry_p")
    A.e("v_max3_u32 v16, v0, v1, v2")
    A.e("v_max3_u32 v17, v3, v4, v5")
    A.e("v_max3_u32 v16, v16, v6, v7")
    A.e("v_max_u32 v16, v16, v17")
    A.e("v_cmp_eq_u32 vcc, -1, v16")
    A.e("s_cbranch_vccnz L_poll1")
    A.e("s_branch L_ok_p")
    if flags:
        A.label("L_fkv_slow")
        A.e(f"s_mov_b32 s{S_SPIN}, 0")
        A.label("L_fkv_loop")
        A.e(f"v_lshrrev_b32 v110, 2, v{V_L16}")
        A.e(f"buffer_load_dword v111, v110, {WSRD}, s{S_FKV} offen sc1")
        A.e(f"s_add_u32 s{S_SPIN}, s{S_SPIN}, 1")
        A.e(f"s_cmp_gt_u32 s{S_SPIN}, {SPIN_MAX*10}")
        A.e("s_cbranch_scc1 L_fail")
        A.e("s_waitcnt vmcnt(0)")
        A.e("v_cmp_eq_u32 vcc, 0, v111")
        A.e("s_and_b32 vcc_lo, vcc_lo, 3")
        A.e("s_cbranch_scc1 L_fkv_loop")
        A.e("s_branch L_fkv_ok")
    A.label("L_last")
    for m in vms[2:]:
        A.e(m)
    A.e("s_nop 7")
    A.e("v_pk_add_f32 v[48:49], v[48:49], v[50:51]")
    A.e("v_pk_add_f32 v[52:53], v[52:53], v[54:55]")
    A.e(f"v_cvt_pk_bf16_f32 v{V_KV4+2}, v48, v49")
    A.e(f"v_cvt_pk_bf16_f32 v{V_KV4+3}, v52, v53")
    A.e(f"buffer_store_dwordx4 v[{V_KV4}:{V_KV4+3}], v{V_L16}, {WSRD}, s{S_KM} offen sc1")
    A.e("s_waitcnt vmcnt(0)")
    if flags:
        A.e("s_mov_b64 exec, 1")
        A.e(f"buffer_store_dword v{V_IDX}, v{V_PM0+1}, {WSRD}, s{S_FKM} offen sc1")
        A.e(f"s_add_u32 s{S_FKM}, s{S_FKM}, {FL_SEG}")
        A.e(f"buffer_store_dword v{V_IDX}, v{V_PM0+1}, {WSRD}, s{S_FKM} offen sc1")
        A.e("s_mov_b64 exec, -1")
        A.e("s_waitcnt vmcnt(0)")
    if opts.get("total"):
        A.e("s_memtime s[86:87]")
        A.e("s_memrealtime s[88:89]")
        A.e("s_waitcnt lgkmcnt(0)")
        A.e("s_sub_u32 s64, s84, s80")
        A.e("s_sub_u32 s65, s88, s84")
        A.e("s_sub_u32 s66, s86, s82")
    if opts.get("stamps") or opts.get("total"):
        A.e("s_cmp_lg_u32 s24, %d" % opts.get("rep", 0))
        A.e("s_cbranch_scc1 L_exit")
        A.e("s_cmp_lg_u32 s25, 0")
        A.e("s_cbranch_scc1 L_exit")
        A.e(f"s_load_dwordx2 s[36:37], s[0:1], {KA_DBG}")
        A.e("s_waitcnt lgkmcnt(0)")
        A.e("v_mov_b32 v1, 0")
        for i in range(12):
            A.e(f"v_mov_b32 v2, s{64+i}")
            A.e(f"global_store_dword v1, v2, s[36:37] offset:{128 + 4*i}")
        A.e("s_waitcnt vmcnt(0)")
    A.e("s_branch L_exit")
    A.label("L_fail")
    A.e("s_mov_b64 exec, -1")
    A.e(f"s_load_dwordx2 s[36:37], s[0:1], {KA_DBG}")
    A.e("s_waitcnt vmcnt(0) lgkmcnt(0)")
    A.e("v_mov_b32 v1, 0")
    A.e("v_mov_b32 v2, 0xdead")
    A.e("global_store_dword v1, v2, s[36:37] offset:252")
    A.e("s_waitcnt vmcnt(0)")
    A.e("s_branch L_exit")
```

```python
from asm import *
from layout import *
import struct, math

L_KS = 0x0000
L_VS = 0x2000
L_QT = 0x4000
L_KT = 0x5000
L_OX = 0x6000
L_MS = 0x6000
L_WO = 0x8000
SPIN_MAX = 200000

(V_L16, V_IDX, V_QW, V_QR0, V_QR1, V_KXA, V_VXA, V_WOL, V_PST, V_MST, V_DK, V_DV) = range(112, 124)
V_PM0 = 124
V_PM1 = 126
V_KV4 = 104
V_PX = 108
V_T = 110
S_WQ, S_WK, S_WV, S_WO, S_WS = 4, 8, 12, 16, 20
S_H, S_W, S_STEP = 24, 25, 26
S_C = 40
S_SPIN = 45
S_OXM, S_MSTM = 48, 50
S_MEMRD, S_MEMRD4 = 52, 53
S_PST = 54
S_PLD = 55
S_PPZ = 56
S_MST, S_MPZ = 57, 58
S_KM = 59
S_KD, S_VD = 90, 91
S_KL, S_VL = 92, 93
S_TK = 94
S_PSTB = 95
S_FKV = 99
S_FKM = 100
S_PPZ2 = 46
S_LO, S_HI = 42, 43
S_B2M = 38
S_MSW = 47
S_MR = 96
CSCALE = struct.unpack("<I", struct.pack("<f", (128 ** -0.5) * math.log2(math.e)))[0]
WSRD = f"s[{S_WS}:{S_WS+3}]"

def wreg(mat, t, c):
    if mat < 2:
        return ("a", 128 * mat + 64 * t + 8 * c)
    return ("v", 128 + 64 * t + 8 * c)
def rr(kind, base, n):
    return f"{kind}[{base}:{base+n-1}]"

def isvalu(s):
    return s.startswith("v_") and not s.startswith("v_mfma") and not s.startswith("v_smfmac")

def weave(A, mfmas, fillers, nv=1, no=2):
    fillers = list(fillers)
    for m in mfmas:
        A.e(m)
        v = o = 0
        while fillers:
            f = fillers[0]
            if f.endswith(":"):
                A.label(f[:-1]); fillers.pop(0); continue
            if isvalu(f):
                if v >= nv: break
                v += 1
            else:
                if o + v >= 3: break
                o += 1
            A.e(f); fillers.pop(0)
            if v + o >= 3: break
    return fillers

def flush(A, fillers):
    for f in fillers:
        if f.endswith(":"): A.label(f[:-1])
        else: A.e(f)

def stamp(A, opts, idx):
    if opts.get("stamps") and (opts.get("only") is None or idx in opts["only"]):
        A.e("s_waitcnt lgkmcnt(0)")
        A.e("s_memtime s[60:61]")
        A.e("s_waitcnt lgkmcnt(0)")
        A.e(f"s_sub_u32 s62, s60, s63")
        A.e(f"s_add_u32 s{64+idx}, s{64+idx}, s62")
        A.e("s_mov_b32 s63, s60")

def gen_setup(A, opts):
    for s, ka in ((S_WQ, KA_WQ), (S_WK, KA_WK), (S_WV, KA_WV), (S_WO, KA_WO), (S_WS, KA_WS)):
        A.e(f"s_load_dwordx2 s[{s}:{s+1}], s[0:1], {ka}")
    A.e("v_lshrrev_b32 v1, 6, v0")
    A.e("v_and_b32 v2, 63, v0                 ; lane")
    A.e("v_readfirstlane_b32 s25, v1          ; wave")
    A.e("s_waitcnt lgkmcnt(0)")
    for s, n in ((S_WQ, 0x400000), (S_WK, 0x400000), (S_WV, 0x400000), (S_WO, 0x400000), (S_WS, WS_SIZE)):
        A.e(f"s_mov_b32 s{s+2}, {hex(n)}")
        A.e(f"s_mov_b32 s{s+3}, 0x00020000")
    A.e(f"s_mov_b32 s{S_C}, {hex(CSCALE)}")
    A.e(f"s_mov_b32 s{S_C+1}, {hex(CSCALE)}")
    A.e(f"s_mov_b32 s{S_MSTM}, 0x00550055")
    A.e(f"s_mov_b32 s{S_MSTM+1}, 0x00550055")
    A.e("s_and_b32 s27, s25, 1")
    A.e("s_cmp_eq_u32 s27, 0")
    A.e(f"s_mov_b32 s28, 0xcccccccc")
    A.e(f"s_cselect_b32 s{S_OXM}, 0x33333333, s28")
    A.e(f"s_mov_b32 s{S_OXM+1}, s{S_OXM}")
    A.e("v_and_b32 v3, 15, v2")
    A.e("v_lshrrev_b32 v4, 4, v2")
    A.e("v_bfe_u32 v5, v2, 2, 2")
    A.e("v_and_b32 v6, 3, v2")
    A.e("v_and_b32 v9, 1, v4")
    A.e("v_lshrrev_b32 v10, 1, v4")
    A.e(f"v_lshlrev_b32 v{V_L16}, 4, v2")
    A.e(f"v_mov_b32 v{V_IDX}, 0x44444444")
    A.e("v_mov_b32 v7, 0xeeeeeeee")
    A.e("v_and_b32 v8, 2, v2")
    A.e("v_cmp_ne_u32 vcc, 0, v8")
    A.e("s_nop 1")
    A.e(f"v_cndmask_b32 v{V_IDX}, v{V_IDX}, v7, vcc")
    A.e("s_lshl_b32 s27, s25, 5")
    A.e("v_add_u32 v7, s27, v3")
    A.e("v_lshlrev_b32 v7, 5, v7")
    A.e("v_lshrrev_b32 v8, 1, v7")
    A.e("v_and_b32 v8, 128, v8")
    A.e("v_xor_b32 v7, v7, v8")
    A.e("v_lshl_add_u32 v7, v4, 3, v7")
    A.e(f"v_add_u32 v{V_QW}, {hex(L_QT)}, v7")
    A.e("v_lshlrev_b32 v7, 3, v4")
    A.e("v_add_u32 v7, v7, v5")
    A.e("v_lshlrev_b32 v7, 5, v7")
    A.e("v_lshrrev_b32 v8, 1, v7")
    A.e("v_and_b32 v8, 128, v8")
    A.e("v_xor_b32 v7, v7, v8")
    A.e("v_lshl_add_u32 v7, v6, 3, v7")
    A.e(f"v_add_u32 v{V_QR0}, {hex(L_QT)}, v7")
    A.e(f"v_xor_b32 v{V_QR1}, 128, v{V_QR0}")
    A.e("v_xor_b32 v7, v4, v3")
    A.e("v_lshlrev_b32 v7, 4, v7")
    A.e("v_lshl_add_u32 v7, v3, 8, v7")
    A.e(f"v_add_u32 v{V_KXA}, {hex(L_KS)}, v7")
    A.e("v_lshlrev_b32 v7, 2, v4")
    A.e("v_add_u32 v7, v7, v5")
    A.e("v_lshlrev_b32 v7, 6, v7")
    A.e("v_lshl_add_u32 v7, v9, 5, v7")
    A.e("v_lshl_add_u32 v7, v6, 3, v7")
    A.e("s_lshl_b32 s27, s25, 11")
    A.e(f"s_add_u32 s27, s27, {hex(L_VS)}")
    A.e(f"v_add_u32 v{V_VXA}, s27, v7")
    A.e("s_lshl_b32 s27, s25, 15")
    A.e(f"s_add_u32 s27, s27, {hex(L_WO)}")
    A.e(f"v_add_u32 v{V_WOL}, s27, v{V_L16}")
    A.e("v_lshrrev_b32 v7, 2, v3")
    A.e("v_lshlrev_b32 v7, 13, v7")
    A.e("v_lshl_add_u32 v7, v4, 11, v7")
    A.e(f"v_lshl_add_u32 v{V_PST}, v6, 4, v7")
    A.e("v_bfe_u32 v7, v2, 2, 1")
    A.e("v_lshl_add_u32 v7, v7, 1, v10")
    A.e("s_lshl_b32 s27, s25, 2")
    A.e("v_add_u32 v7, s27, v7")
    A.e("v_lshlrev_b32 v7, 4, v7")
    A.e("v_bfe_u32 v8, v2, 1, 1")
    A.e("v_lshl_add_u32 v8, v9, 1, v8")
    A.e(f"v_lshl_add_u32 v{V_MST}, v8, 2, v7")
    A.e("v_xor_b32 v7, v3, v4")
    A.e("v_lshlrev_b32 v7, 4, v7")
    A.e("v_lshl_add_u32 v7, v4, 8, v7")
    A.e("s_lshl_b32 s27, s25, 1")
    A.e("s_and_b32 s27, s27, 3")
    A.e("s_lshl_b32 s27, s27, 6")
    A.e(f"v_xor_b32 v{V_DK}, s27, v7")
    A.e("v_lshlrev_b32 v7, 1, v9")
    A.e("v_xor_b32 v7, v7, v6")
    A.e("v_lshlrev_b32 v7, 4, v7")
    A.e("v_lshrrev_b32 v8, 2, v2")
    A.e(f"v_lshl_add_u32 v{V_DV}, v8, 8, v7")
    A.e(f"v_mov_b32 v{V_PM0+1}, 0")
    A.e(f"v_mov_b32 v{V_PM1}, 0")

def gen_weights(A, opts):
    A.e("v_lshrrev_b32 v7, 2, v2")
    A.e("v_lshlrev_b32 v7, 13, v7")
    A.e("v_lshl_add_u32 v20, v6, 4, v7")
    A.e("v_lshrrev_b32 v8, 1, v5              ; r>>1")
    A.e("v_lshlrev_b32 v7, 5, v8              ; 32*(r>>1)")
    A.e("v_lshl_add_u32 v7, v9, 4, v7         ; + 16*(gb&1)")
    A.e("v_lshl_add_u32 v7, v10, 2, v7        ; + 4*(gb>>1)")
    A.e("v_and_b32 v11, 1, v5                 ; r&1")
    A.e("v_add_u32 v7, v7, v11")
    A.e("v_lshlrev_b32 v7, 6, v7")
    A.e("v_lshl_add_u32 v7, v6, 3, v7")
    A.e("s_lshl_b32 s29, s25, 15")
    A.e(f"s_add_u32 s29, s29, {hex(L_WO)}")
    A.e("v_add_u32 v21, s29, v7")
    A.e("s_lshl_b32 s30, s25, 13")
    A.e("v_add_u32 v22, s30, v7")
    A.e("v_lshrrev_b32 v7, 1, v3")
    A.e("v_xor_b32 v7, v7, v9")
    A.e("v_lshlrev_b32 v7, 5, v7")
    A.e("v_lshl_add_u32 v7, v4, 10, v7")
    A.e("v_and_b32 v12, 1, v2")
    A.e("v_lshl_add_u32 v23, v12, 4, v7")
    A.e("v_lshlrev_b32 v7, 5, v8")
    A.e("v_lshl_add_u32 v7, v9, 4, v7")
    A.e("v_lshl_add_u32 v7, v10, 2, v7")
    A.e("v_add_u32 v7, v7, v11")
    A.e("v_lshlrev_b32 v7, 8, v7")
    A.e("v_lshl_add_u32 v12, v9, 1, v11")
    A.e("v_lshl_add_u32 v12, v8, 2, v12")
    A.e("v_lshl_add_u32 v7, v12, 5, v7")
    A.e("v_lshl_add_u32 v7, v6, 3, v7")
    A.e("v_add_u32 v25, s29, v7")
    A.e("s_lshl_b32 s28, s24, 8")
    A.e("s_lshl_b32 s33, s25, 6")
    A.e("s_add_u32 s28, s28, s33              ; h*256 + w*64")
    A.e("s_lshl_b32 s31, s24, 17")
    A.e("s_lshl_b32 s32, s25, 8")
    A.e("s_add_u32 s31, s31, s32              ; h*128*1024 + w*256")
    def issue_unit(u):
        mat, c = divmod(u, 8)
        slot = u % 10
        srdreg = (S_WQ, S_WK, S_WV)[mat]
        for uu in range(4):
            if slot < 8:
                A.e(f"s_add_u32 m0, s29, {slot*4096 + uu*1024}")
            else:
                A.e(f"s_add_u32 m0, s30, {(slot-8)*4096 + uu*1024}")
            if uu == 0:
                A.e("s_lshl_b32 s34, s25, 1")
                A.e(f"s_add_u32 s34, s34, {c}")
                A.e("s_and_b32 s34, s34, 7")
                A.e("s_lshl_b32 s34, s34, 19")
                A.e("s_add_u32 s34, s34, s28")
            A.e(f"s_add_u32 s33, s34, {(16*uu) * 8192}")
            A.e(f"buffer_load_dwordx4 v20, s[{srdreg}:{srdreg+3}], s33 offen lds")
    def issue_wo(k):
        A.e(f"v_xor_b32 v24, {(k & 3) << 6}, v23")
        for uu in range(4):
            A.e(f"s_add_u32 m0, s29, {k*4096 + uu*1024}")
            A.e(f"s_add_u32 s33, s31, {(16*k + 4*uu) * 1024}")
            A.e(f"buffer_load_dwordx4 v24, s[{S_WO}:{S_WO+3}], s33 offen lds")
    issued = 0
    for u in range(10):
        issue_unit(u); issued += 1
    for u in range(24):
        mat, c = divmod(u, 8)
        slot = u % 10
        A.e(f"s_waitcnt vmcnt({(issued - (u + 1)) * 4})")
        for t in range(2):
            kind, base = wreg(mat, t, c)
            for m in range(4):
                off = 512 * (m >> 1) + 128 * (m & 1) + 32 * t
                if slot < 8:
                    A.e(f"ds_read_b64_tr_b16 {rr(kind, base + 2*m, 2)}, v21 offset:{slot*4096 + off}")
                else:
                    A.e(f"ds_read_b64_tr_b16 {rr(kind, base + 2*m, 2)}, v22 offset:{(slot-8)*4096 + off}")
        A.e("s_waitcnt lgkmcnt(0)")
        if u + 10 < 24:
            issue_unit(u + 10); issued += 1
        elif 14 <= u <= 17:
            issue_wo(u - 10); issued += 1
        elif u >= 20:
            issue_wo(u - 20); issued += 1
    A.e("s_waitcnt vmcnt(0)")
    for cc in range(2):
        for t in range(8):
            if t == 0:
                ad = 25
            else:
                A.e(f"v_xor_b32 v26, {t << 5}, v25")
                ad = 26
            for m in range(4):
                off = (64 * cc + 8 * (m >> 1) + 2 * (m & 1)) * 256
                A.e(f"ds_read_b64_tr_b16 v[{32+8*t+2*m}:{33+8*t+2*m}], v{ad} offset:{off}")
            if t % 2 == 1:
                A.e("s_waitcnt lgkmcnt(0)")
        for t in range(8):
            for half in range(2):
                A.e(f"ds_write_b128 v{V_WOL}, v[{32+8*t+4*half}:{35+8*t+4*half}] offset:{cc*16384 + t*2048 + half*1024}")
            if t % 4 == 3:
                A.e("s_waitcnt lgkmcnt(0)")
    A.e("s_barrier")


def k_dma(T):
    return [f"s_mov_b32 m0, s{S_KL}",
            f"v_xor_b32 v{T}, 64, v{V_DK}",
            f"buffer_load_dwordx4 v{V_DK}, {WSRD}, s{S_KD} offen sc1 lds",
            f"s_add_u32 m0, s{S_KL}, 1024",
            f"s_add_u32 s{S_KD}, s{S_KD}, 1024",
            f"buffer_load_dwordx4 v{T}, {WSRD}, s{S_KD} offen sc1 lds"]
def v_dma():
    return [f"s_mov_b32 m0, s{S_VL}",
            f"s_add_u32 s33, s{S_VD}, 4096",
            f"buffer_load_dwordx4 v{V_DV}, {WSRD}, s{S_VD} offen sc1 lds",
            f"s_add_u32 m0, s{S_VL}, 1024",
            "s_nop 0",
            f"buffer_load_dwordx4 v{V_DV}, {WSRD}, s33 offen sc1 lds"]

class Lds:
    def __init__(self, A): self.A = A; self.q = []
    def issue(self, instr, tag=None):
        self.A.e(instr); self.q.append(tag)
        assert len(self.q) <= 15, "more than 15 LDS operations outstanding"
    def note(self, tag=None):
        self.q.append(tag)
        assert len(self.q) <= 15, "more than 15 LDS operations outstanding"
    def wait(self, tag):
        if tag not in self.q: return None
        i = max(k for k, t in enumerate(self.q) if t == tag)
        n = len(self.q) - 1 - i
        self.q = self.q[i + 1:]
        return f"s_waitcnt lgkmcnt({n})"
    def waitall(self):
        self.q = []
        return "s_waitcnt lgkmcnt(0)"


def gen_chain(A, opts):
    A("; ---------------- chain role: s24 = head ----------------")
    if opts.get("total"):
        A.e("s_memrealtime s[80:81]")
    gen_setup(A, opts)
    gen_weights(A, opts)
    flags = opts.get("flags")
    A.e(f"s_mov_b32 s{S_LO}, 0x00003f80")
    A.e(f"s_mov_b32 s{S_HI}, 0x3f800000")
    A.e(f"s_mov_b32 s{S_B2M}, 0xf0f0f0f0")
    A.e(f"s_mov_b32 s{S_B2M+1}, 0xf0f0f0f0")
    A.e("s_lshl_b32 s27, s25, 11")
    A.e(f"s_add_u32 s{S_KL}, s27, {hex(L_KS)}")
    A.e(f"s_add_u32 s{S_VL}, s27, {hex(L_VS)}")
    A.e(f"s_add_u32 s{S_MSW}, s27, 0                 ; w*2048")
    for p in range(1, 4):
        A.e(f"s_add_u32 s28, s27, {2048*p}")
        A.e(f"s_and_b32 s{S_MR+p-1}, s28, 0x1fff")
    A.e(f"s_add_u32 s{S_MEMRD}, s27, {hex(WS_MEM)}")
    A.e("s_mov_b32 s26, 0")
    flush(A, ["s_lshl_b32 s33, s24, 13",
              f"s_add_u32 s{S_KD}, s33, s27",
              f"s_add_u32 s{S_KD}, s{S_KD}, {hex(WS_KX)}",
              "s_lshl_b32 s34, s25, 6",
              f"s_add_u32 s{S_VD}, s33, s34",
              f"s_add_u32 s{S_VD}, s{S_VD}, {hex(WS_VX)}"])
    if flags:
        A.e("s_lshl_b32 s33, s24, 3")
        A.e(f"s_add_u32 s{S_FKV}, s33, {hex(WS_FLAG)}")
        A.e(f"v_lshrrev_b32 v110, 2, v{V_L16}")
        A.e(f"s_mov_b32 s{S_SPIN}, 0")
        A.label("L_fkv0")
        A.e(f"buffer_load_dword v111, v110, {WSRD}, s{S_FKV} offen sc1")
        A.e(f"s_add_u32 s{S_SPIN}, s{S_SPIN}, 1")
        A.e(f"s_cmp_gt_u32 s{S_SPIN}, {SPIN_MAX*10}")
        A.e("s_cbranch_scc1 L_fail")
        A.e("s_waitcnt vmcnt(0)")
        A.e("v_cmp_eq_u32 vcc, 0, v111")
        A.e("s_and_b32 vcc_lo, vcc_lo, 3")
        A.e("s_cbranch_scc1 L_fkv0")
        A.e("s_lshl_b32 s33, s24, 4")
        A.e("s_lshl_b32 s34, s25, 2")
        A.e("s_add_u32 s33, s33, s34")
        A.e(f"s_add_u32 s{S_FKM}, s33, {hex(WS_FLAG + 4*FL_KM - 2*FL_SEG)}")
    flush(A, k_dma(V_T))
    flush(A, v_dma())
    for r in range(32, 56, 2):
        A.e(f"v_mov_b64 v[{r}:{r+1}], 0")
    flush(A, ["s_lshl_b32 s29, s24, 13",
              "s_lshl_b32 s30, s25, 11",
              "s_add_u32 s29, s29, s30",
              f"s_add_u32 s{S_PLD}, s29, {hex(WS_P)}",
              f"s_xor_b32 s{S_PPZ}, s{S_PLD}, 0x40000",
              "s_lshl_b32 s29, s25, 16              ; 8w*8192",
              "s_lshl_b32 s30, s24, 6",
              "s_add_u32 s29, s29, s30",
              f"s_add_u32 s{S_PSTB}, s29, {hex(WS_P)}",
              "s_lshl_b32 s29, s24, 8",
              f"s_add_u32 s{S_MPZ}, s29, {hex(WS_MEM)}",
              f"s_xor_b32 s{S_MST}, s{S_MPZ}, 0x2000",
              "s_lshl_b32 s27, s24, 12",
              "s_lshl_b32 s28, s25, 10",
              "s_add_u32 s27, s27, s28",
              f"s_add_u32 s{S_KM}, s27, {hex(WS_KMVM - 0x20000)}"])
    def ms_addr():
        return [f"v_add_u32 v88, s{S_MSW}, v{V_L16}"] + [f"v_add_u32 v{89+p}, s{S_MR+p}, v{V_L16}" for p in range(3)]
    flush(A, ms_addr())
    if opts.get("stamps"):
        for i in range(16):
            A.e(f"s_mov_b32 s{64+i}, 0")
        A.e("s_memtime s[60:61]")
        A.e("s_waitcnt lgkmcnt(0)")
        A.e("s_mov_b32 s63, s60")
    if opts.get("total"):
        A.e("s_mov_b32 s67, 0")
        A.e("s_mov_b32 s68, 0")
        A.e("s_waitcnt vmcnt(0)")
        A.e("s_memtime s[82:83]")
        A.e("s_memrealtime s[84:85]")
        A.e("s_waitcnt lgkmcnt(0)")
    A.e("s_waitcnt vmcnt(0)")

    L = Lds(A)
    def qk(c):
        out = []
        for mat in range(2):
            for t in range(2):
                kind, base = wreg(mat, t, c)
                acc = 32 + 8 * mat + 4 * t
                out.append(f"v_smfmac_f32_16x16x64_bf16 v[{acc}:{acc+3}], v[{4*c}:{4*c+3}], {rr(kind, base, 8)}, v{V_IDX}")
        return out
    def vm(c, t):
        kind, base = wreg(2, t, c)
        acc = 48 + 4 * t
        return f"v_smfmac_f32_16x16x64_bf16 v[{acc}:{acc+3}], v[{4*c}:{4*c+3}], {rr(kind, base, 8)}, v{V_IDX}"
    vms = [vm(c, t) for c in range(8) for t in range(2)]
    def em(x, tag=None):
        if x is None: return
        if x.startswith("ds_"): L.issue(x, tag)
        else: A.e(x)
    def slot(m, o=(), v=None):
        A.e(m)
        for x in o:
            if isinstance(x, tuple): em(x[0], x[1])
            else: em(x)
        if v: A.e(v)

    A.label("L_step")
    if opts.get("trace"):
        A.e("s_or_b32 s27, s24, s25")
        A.e("s_cmp_lg_u32 s27, 0")
        A.e("s_cbranch_scc1 L_notrace")
        A.e("s_memrealtime s[60:61]")
        A.e("s_lshl_b32 s27, s26, 2")
        A.e(f"s_add_u32 s27, s27, {hex(WS_TRACE)}")
        A.e("s_waitcnt lgkmcnt(0)")
        A.e("v_mov_b32 v108, s60")
        A.e("s_mov_b64 exec, 1")
        A.e(f"buffer_store_dword v108, v{V_PM0+1}, {WSRD}, s27 offen")
        A.e("s_mov_b64 exec, -1")
        A.label("L_notrace")
    def mem_ld(b):
        return [f"buffer_load_dwordx4 v[{b}:{b+3}], v{V_L16}, {WSRD}, s{S_MEMRD} offen sc1",
                f"buffer_load_dwordx4 v[{b+4}:{b+7}], v{V_L16}, {WSRD}, s{S_MEMRD} offen offset:1024 sc1"]
    def chk8(b, t):
        return [f"v_max3_u32 v{t}, v{b}, v{b+1}, v{b+2}",
                f"v_max3_u32 v{t+1}, v{b+3}, v{b+4}, v{b+5}",
                f"v_max3_u32 v{t}, v{t}, v{b+6}, v{b+7}",
                f"v_max_u32 v{t}, v{t}, v{t+1}",
                f"v_cmp_eq_u32 vcc, -1, v{t}"]
    BSET = 96
    flush(A, mem_ld(0))
    for _ in range(opts.get("d2", 3)): A.e("s_nop 7")
    A.e(f"s_mov_b32 s{S_SPIN}, 0")
    flush(A, mem_ld(BSET))
    A.label("L_poll2")
    A.e("s_waitcnt vmcnt(2)")
    flush(A, chk8(0, 108))
    A.e("s_cbranch_vccz L_h2_A")
    flush(A, mem_ld(0))
    A.e("s_waitcnt vmcnt(2)")
    flush(A, chk8(BSET, 108))
    A.e("s_cbranch_vccz L_h2_B")
    flush(A, mem_ld(BSET))
    A.e(f"s_add_u32 s{S_SPIN}, s{S_SPIN}, 1")
    A.e(f"s_cmp_gt_u32 s{S_SPIN}, {SPIN_MAX}")
    A.e("s_cbranch_scc0 L_poll2")
    A.e("s_branch L_fail")
    def qk_at(c, areg):
        out = []
        for mat in range(2):
            for t in range(2):
                kind, base = wreg(mat, t, c)
                acc = 32 + 8 * mat + 4 * t
                out.append(f"v_smfmac_f32_16x16x64_bf16 v[{acc}:{acc+3}], v[{areg}:{areg+3}], {rr(kind, base, 8)}, v{V_IDX}")
        return out
    A.label("L_h2_B")
    A.e(f"ds_write_b128 v88, v[{BSET}:{BSET+3}] offset:{L_MS}")
    A.e(f"ds_write_b128 v88, v[{BSET+4}:{BSET+7}] offset:{L_MS + 1024}")
    for m in qk_at(0, BSET) + qk_at(1, BSET + 4): A.e(m)
    A.e("s_branch L_h2_join")
    A.label("L_h2_A")
    if opts.get("total"): A.e(f"s_add_u32 s67, s67, s{S_SPIN}")
    stamp(A, opts, 0)
    L.issue(f"ds_write_b128 v88, v[0:3] offset:{L_MS}", "msw")
    L.issue(f"ds_write_b128 v88, v[4:7] offset:{L_MS + 1024}", "msw")
    for m in qk(0) + qk(1): A.e(m)
    A.label("L_h2_join")
    A.e(L.wait("msw"))
    A.e("s_barrier")
    msr = [(f"ds_read_b128 v[{4*c}:{4*c+3}], v{89 + (c-2)//2} offset:{L_MS + 1024*(c%2)}", f"m{c}") for c in range(2, 8)]
    for x in msr: em(*x)
    kx = []
    for ks in range(4):
        ad = V_KXA if ks == 0 else 109
        for kt in range(2):
            kx.append((f"ds_read_b128 v[{56+16*kt+4*ks}:{59+16*kt+4*ks}], v{ad} offset:{4096*kt}", "kx"))
    sched = {}
    sched[0] = ([kx[0], kx[1]], f"v_xor_b32 v109, 64, v{V_KXA}")
    sched[1] = ([kx[2], kx[3]], f"v_xor_b32 v109, 128, v{V_KXA}")
    sched[2] = ([kx[4], kx[5]], f"v_xor_b32 v109, 192, v{V_KXA}")
    sched[3] = ([kx[6], kx[7]], "v_mov_b64 v[88:89], -1")
    sched[4] = ([f"s_mov_b32 s{S_PST}, s{S_PSTB}", f"s_add_u32 s{S_KD}, s{S_KD}, {hex(0x40000 - 1024)}"], "v_mov_b64 v[90:91], -1")
    sched[5] = ([f"s_add_u32 s{S_VD}, s{S_VD}, 0x40000"], None)
    sched[6] = ([f"buffer_store_dwordx4 v[88:91], v{V_L16}, {WSRD}, s{S_PPZ} offen"], None)
    sched[10] = ([f"buffer_store_dwordx4 v[88:91], v{V_L16}, {WSRD}, s{S_PPZ} offen offset:1024"], None)
    nvm = 3
    if flags:
        sched[12] = ([f"s_add_u32 s{S_FKV}, s{S_FKV}, {FL_SEG}"], f"v_lshrrev_b32 v110, 2, v{V_L16}")
        sched[13] = ([f"buffer_load_dword v111, v110, {WSRD}, s{S_FKV} offen sc1"], None)
        sched[16] = ([f"s_mov_b64 exec, 1\n    buffer_store_dword v{V_IDX}, v{V_PM0+1}, {WSRD}, s{S_FKM} offen sc1\n    s_mov_b64 exec, -1"], None)
        sched[17] = ([f"s_add_u32 s{S_FKM}, s{S_FKM}, {FL_SEG}"], None)
        nvm = 5
    sched[20] = ([f"buffer_store_dwordx4 v[{V_KV4}:{V_KV4+3}], v{V_L16}, {WSRD}, s{S_KM} offen sc1"], None)
    sched[21] = ([f"s_add_u32 s{S_KM}, s{S_KM}, 0x20000"], None)
    i = 0
    for c in range(2, 8):
        w = L.wait(f"m{c}")
        if w: A.e(w)
        for m in qk(c):
            o, v = sched.get(i, ((), None))
            slot(m, o, v)
            i += 1
    stamp(A, opts, 1)
    A.e(f"s_waitcnt vmcnt({nvm})")
    A.e(vms[0]); A.e(vms[1])
    A.e("s_cmp_eq_u32 s26, 63")
    A.e("v_pk_add_f32 v[32:33], v[32:33], v[34:35]")
    A.e("v_pk_add_f32 v[36:37], v[36:37], v[38:39]")
    A.e("v_pk_add_f32 v[40:41], v[40:41], v[42:43]")
    A.e("v_pk_add_f32 v[44:45], v[44:45], v[46:47]")
    A.e("v_cvt_pk_bf16_f32 v108, v32, v33")
    A.e("v_cvt_pk_bf16_f32 v109, v36, v37")
    L.issue(f"ds_write2_b32 v{V_QW}, v108, v108 offset0:0 offset1:1")
    A.e(f"v_cvt_pk_bf16_f32 v{V_KV4}, v40, v41")
    L.issue(f"ds_write2_b32 v{V_QW}, v109, v109 offset0:128 offset1:129")
    A.e(f"v_cvt_pk_bf16_f32 v{V_KV4+1}, v44, v45")
    L.issue(f"ds_write2st64_b32 v{V_QW}, v{V_KV4}, v{V_KV4+1} offset0:16 offset1:18")
    A.e("s_cbranch_scc1 L_last")
    for i in range(2, 8):
        A.e(vms[i])
    A.e(L.waitall())
    A.e("s_barrier")
    stamp(A, opts, 2)
    rd = []
    for ks in range(4):
        rd.append((f"ds_read_b64_tr_b16 v[{88+4*ks}:{89+4*ks}], v{V_QR0} offset:{1024*ks}", f"q{ks}"))
        rd.append((f"ds_read_b64_tr_b16 v[{90+4*ks}:{91+4*ks}], v{V_QR1} offset:{1024*ks}", f"q{ks}"))
    rk = []
    for ks in range(4):
        rk.append((f"ds_read_b64_tr_b16 v[{4*ks}:{4*ks+1}], v{V_QR0} offset:{4096 + 1024*ks}", "km"))
        rk.append((f"ds_read_b64_tr_b16 v[{4*ks+2}:{4*ks+3}], v{V_QR1} offset:{4096 + 1024*ks}", "km"))
    for x in rd[:4]: em(*x)
    slot(vms[8], rd[4:6]); slot(vms[9], rd[6:8]); slot(vms[10], rk[0:2]); slot(vms[11], rk[2:4])
    sc = []
    for ks in range(4):
        for kt in range(2):
            c = "0" if ks == 0 else f"v[{32+4*kt}:{35+4*kt}]"
            sc.append(f"v_mfma_f32_16x16x32_bf16 v[{32+4*kt}:{35+4*kt}], v[{56+16*kt+4*ks}:{59+16*kt+4*ks}], v[{88+4*ks}:{91+4*ks}], {c}")
    kd = k_dma(110)
    if flags:
        A.e("s_waitcnt vmcnt(2)")
        A.e("v_cmp_eq_u32 vcc, 0, v111")
    A.e(L.wait("q0")); slot(sc[0], rk[4:6]); slot(sc[1], rk[6:8])
    if flags:
        A.e("s_and_b32 vcc_lo, vcc_lo, 3")
        A.e("s_cbranch_scc1 L_fkv_slow")
        A.label("L_fkv_ok")
    w = L.wait("q1")
    if w: A.e(w)
    slot(sc[2], [kd[0]], kd[1]); slot(sc[3], [kd[2], kd[3]])
    w = L.wait("q2")
    if w: A.e(w)
    slot(sc[4], [kd[4]]); slot(sc[5], [kd[5]])
    w = L.wait("q3")
    if w: A.e(w)
    slot(sc[6]); slot(sc[7])
    A.e(L.wait("km"))
    ms = []
    for ks in range(4):
        c = "0" if ks == 0 else "v[40:43]"
        ms.append(f"v_mfma_f32_16x16x32_bf16 v[40:43], v[{4*ks}:{4*ks+3}], v[{88+4*ks}:{91+4*ks}], {c}")
    slot(ms[0], [(f"ds_read_b64_tr_b16 v[56:57], v{V_VXA}", "vx"), (f"ds_read_b64_tr_b16 v[58:59], v{V_VXA} offset:1024", "vx")], f"v_xor_b32 v110, 32, v{V_VXA}")
    slot(ms[1], [(f"ds_read_b64_tr_b16 v[60:61], v110", "vx"), (f"ds_read_b64_tr_b16 v[62:63], v110 offset:1024", "vx")])
    slot(ms[2]); slot(ms[3])
    ops = [(t, cc) for t in range(8) for cc in range(2)]
    slots = [0, 8, 16, 24, 44, 32, 96]
    def wo_rd(i):
        t, cc = ops[i]
        b = slots[i % len(slots)]
        return [(f"ds_read_b128 v[{b}:{b+3}], v{V_WOL} offset:{cc*16384 + t*2048}", f"w{i}"),
                (f"ds_read_b128 v[{b+4}:{b+7}], v{V_WOL} offset:{cc*16384 + t*2048 + 1024}", f"w{i}")]
    slot(vms[12], wo_rd(0)); slot(vms[13], wo_rd(1)); slot(vms[14]); slot(vms[15])
    stamp(A, opts, 3)
    A.e("v_max3_f32 v44, v32, v33, v34")
    A.e("v_max3_f32 v45, v35, v36, v37")
    A.e("v_max3_f32 v44, v44, v38, v39")
    A.e("v_max3_f32 v45, v45, v40, v41")
    A.e("v_max_f32 v46, v44, v45")
    A.e("v_max_f32 v47, v44, v45")
    for x in wo_rd(2): em(*x)
    A.e("v_permlane32_swap_b32 v46, v47")
    A.e("v_max_f32 v44, v46, v47")
    A.e("v_max_f32 v45, v46, v47")
    for x in wo_rd(3): em(*x)
    A.e("v_permlane16_swap_b32 v44, v45")
    A.e("v_max_f32 v44, v44, v45")
    A.e(f"v_mul_f32 v44, s{S_C}, v44")
    for j in range(5):
        A.e(f"v_pk_fma_f32 v[{32+2*j}:{33+2*j}], v[{32+2*j}:{33+2*j}], s[{S_C}:{S_C+1}], v[44:45] op_sel_hi:[1,1,0] neg_lo:[0,0,1] neg_hi:[0,0,1]")
    for j in range(10):
        A.e(f"v_exp_f32 v{32+j}, v{32+j}")
    A.e("v_pk_add_f32 v[48:49], v[48:49], v[50:51]")
    A.e(f"v_cvt_pk_bf16_f32 v{V_PX}, v32, v33")
    A.e(f"v_cvt_pk_bf16_f32 v{V_PX+1}, v34, v35")
    A.e(f"v_cvt_pk_bf16_f32 v{V_PX+2}, v36, v37")
    A.e(f"v_cvt_pk_bf16_f32 v{V_PX+3}, v38, v39")
    A.e("v_pk_add_f32 v[52:53], v[52:53], v[54:55]")
    A.e(L.wait("vx"))
    A.e(f"v_cvt_pk_bf16_f32 v{V_KV4+2}, v48, v49")
    A.e("v_mfma_f32_16x16x32_bf16 v[96:99], v[56:59], v[%d:%d], 0" % (V_PX, V_PX + 3))
    A.e(f"v_cvt_pk_bf16_f32 v{V_KV4+3}, v52, v53")
    A.e("v_mfma_f32_16x16x32_bf16 v[100:103], v[60:63], v[%d:%d], 0" % (V_PX, V_PX + 3))
    A.e(f"v_cvt_pk_bf16_f32 v{V_PM0}, v40, v41")
    A.e(f"v_cvt_pk_bf16_f32 v{V_PM1+1}, v40, v41")
    A.e("v_pk_add_f32 v[52:53], v[32:33], v[34:35]")
    stamp(A, opts, 4)
    A.e(f"v_mfma_f32_16x16x16_bf16 v[96:99], v[{V_KV4+2}:{V_KV4+3}], v[{V_PM0}:{V_PM0+1}], v[96:99]")
    A.e("v_pk_add_f32 v[54:55], v[36:37], v[38:39]")
    A.e(f"v_mfma_f32_16x16x16_bf16 v[100:103], v[{V_KV4+2}:{V_KV4+3}], v[{V_PM1}:{V_PM1+1}], v[100:103]")
    A.e("v_pk_add_f32 v[52:53], v[52:53], v[40:41]")
    A.e("v_pk_add_f32 v[52:53], v[52:53], v[54:55]")
    A.e("v_mov_b64 v[48:49], 0")
    A.e("v_add_f32 v54, v52, v53")
    A.e("v_add_f32 v55, v52, v53")
    A.e("s_lshr_b32 s27, s25, 1")
    A.e("s_lshl_b32 s27, s27, 10")
    A.e("v_permlane32_swap_b32 v54, v55")
    A.e("v_add_f32 v52, v54, v55")
    A.e("v_add_f32 v53, v54, v55")
    A.e("v_mfma_f32_32x32x8_bf16 v[64:79], v[48:49], v[48:49], 0")
    A.e("s_nop 0")
    A.e("v_permlane16_swap_b32 v52, v53")
    A.e("v_add_f32 v52, v52, v53")
    A.e("v_rcp_f32 v52, v52")
    A.e(f"v_add_u32 v54, s27, v{V_L16}")
    for j in range(4):
        A.e(f"v_pk_mul_f32 v[{96+2*j}:{97+2*j}], v[{96+2*j}:{97+2*j}], v[52:53] op_sel_hi:[1,0]")
    for j in range(4):
        A.e(f"v_cvt_pk_bf16_f32 v{V_PX+j}, v{96+2*j}, v{97+2*j}")
    A.e(f"s_mov_b64 exec, s[{S_OXM}:{S_OXM+1}]")
    L.issue(f"ds_write_b128 v54, v[{V_PX}:{V_PX+3}] offset:{L_OX}", "ow")
    A.e("s_mov_b64 exec, -1")
    A.e("v_mfma_f32_32x32x8_bf16 v[80:95], v[48:49], v[48:49], 0")
    for x in wo_rd(5): em(*x)
    vd = v_dma()
    flush(A, vd[:3])
    A.e(L.wait("ow"))
    A.e("s_barrier")
    stamp(A, opts, 5)
    L.issue(f"ds_read_b128 v[56:59], v{V_L16} offset:{L_OX}", "oa")
    L.issue(f"ds_read_b128 v[60:63], v{V_L16} offset:{L_OX + 1024}", "oa")
    for x in wo_rd(4): em(*x)
    for x in wo_rd(6): em(*x)
    flush(A, vd[3:])
    A.e(L.wait("oa"))
    wo_m = []
    for i in range(16):
        t, cc = ops[i]
        b = slots[i % len(slots)]
        acc = 64 + 4 * t
        wo_m.append(f"v_smfmac_f32_16x16x64_bf16 v[{acc}:{acc+3}], v[{56+4*cc}:{59+4*cc}], v[{b}:{b+7}], v{V_IDX}")
    def ext(t):
        a = 64 + 4 * t; g = 64 + 16 * (t // 4)
        return [f"v_pk_add_f32 v[{a}:{a+1}], v[{a}:{a+1}], v[{a+2}:{a+3}]", f"v_cvt_pk_bf16_f32 v{g + t % 4}, v{a}, v{a+1}"]
    vq = []
    for i in range(16):
        w = L.wait(f"w{i}")
        if w: A.e(w)
        o = wo_rd(i + 7) if i + 7 < 16 else []
        if i >= 3 and (i - 3) % 2 == 0: vq += ext((i - 3) // 2)
        if i == 12: o = [f"buffer_store_dwordx4 v[64:67], v{V_PST}, {WSRD}, s{S_PST} offen", f"s_add_u32 s{S_PST}, s{S_PST}, 0x8000"]
        slot(wo_m[i], o, vq.pop(0) if vq else None)
    flush(A, vq)
    A.e("v_mov_b64 v[32:33], 0")
    A.e("v_mov_b64 v[34:35], 0")
    A.e("v_mov_b64 v[36:37], 0")
    A.e("v_mov_b64 v[38:39], 0")
    A.e("v_mov_b64 v[40:41], 0")
    A.e("v_mov_b64 v[42:43], 0")
    flush(A, ext(7))
    A.e(f"buffer_store_dwordx4 v[80:83], v{V_PST}, {WSRD}, s{S_PST} offen")
    stamp(A, opts, 6)
    for r in range(44, 56, 2):
        A.e(f"v_mov_b64 v[{r}:{r+1}], 0")
    flush(A, ms_addr())
    def p_ld(b):
        return [f"buffer_load_dwordx4 v[{b}:{b+3}], v{V_L16}, {WSRD}, s{S_PLD} offen sc1",
                f"buffer_load_dwordx4 v[{b+4}:{b+7}], v{V_L16}, {WSRD}, s{S_PLD} offen offset:1024 sc1"]
    for _ in range(opts.get("d1", 0)): A.e("s_nop 7")
    flush(A, p_ld(0))
    for _ in range(opts.get("d1b", 3)): A.e("s_nop 7")
    A.e(f"s_mov_b32 s{S_SPIN}, 0")
    flush(A, p_ld(16))
    A.label("L_poll1")
    A.e("s_waitcnt vmcnt(2)")
    flush(A, chk8(0, 108))
    A.e("s_cbranch_vccz L_h1_A")
    flush(A, p_ld(0))
    A.e("s_waitcnt vmcnt(2)")
    flush(A, chk8(16, 108))
    A.e("s_cbranch_vccz L_h1_B")
    flush(A, p_ld(16))
    A.e(f"s_add_u32 s{S_SPIN}, s{S_SPIN}, 1")
    A.e(f"s_cmp_gt_u32 s{S_SPIN}, {SPIN_MAX}")
    A.e("s_cbranch_scc0 L_poll1")
    A.e("s_branch L_fail")
    def unpack(b):
        for d in range(4):
            A.e(f"v_dot2_f32_bf16 v{8+2*d}, v{b+d}, s{S_LO}, 0")
            A.e(f"v_dot2_f32_bf16 v{9+2*d}, v{b+d}, s{S_HI}, 0")
        for d in range(4):
            A.e(f"v_dot2_f32_bf16 v{8+2*d}, v{b+4+d}, s{S_LO}, v{8+2*d}")
            A.e(f"v_dot2_f32_bf16 v{9+2*d}, v{b+4+d}, s{S_HI}, v{9+2*d}")
    A.label("L_h1_B")
    unpack(16)
    A.e("s_branch L_h1_join")
    A.label("L_h1_A")
    stamp(A, opts, 7)
    unpack(0)
    A.label("L_h1_join")
    A.e("s_nop 0")
    for d in range(4):
        A.e(f"v_permlane32_swap_b32 v{8+2*d}, v{9+2*d}")
    for d in range(4):
        A.e(f"v_add_f32 v{8+2*d}, v{8+2*d}, v{9+2*d}")
    A.e("v_mov_b32 v24, -1")
    A.e("v_permlane16_swap_b32 v8, v10")
    A.e("v_permlane16_swap_b32 v12, v14")
    A.e("v_add_f32 v8, v8, v10")
    A.e("v_add_f32 v12, v12, v14")
    A.e("s_nop 0")
    A.e("v_add_f32_dpp v8, v8, v8 row_ror:8 row_mask:0xf bank_mask:0xf")
    A.e("v_add_f32_dpp v12, v12, v12 row_ror:8 row_mask:0xf bank_mask:0xf")
    A.e("s_nop 0")
    A.e("v_add_f32_dpp v8, v8, v8 row_ror:4 row_mask:0xf bank_mask:0xf")
    A.e("v_add_f32_dpp v12, v12, v12 row_ror:4 row_mask:0xf bank_mask:0xf")
    A.e("s_nop 1")
    A.e("v_mov_b32_dpp v9, v8 quad_perm:[1,0,3,2] row_mask:0xf bank_mask:0xf")
    A.e("v_mov_b32_dpp v13, v12 quad_perm:[1,0,3,2] row_mask:0xf bank_mask:0xf")
    A.e("v_cvt_pk_bf16_f32 v10, v8, v9")
    A.e("v_cvt_pk_bf16_f32 v14, v12, v13")
    A.e(f"v_cndmask_b32 v10, v10, v14, s[{S_B2M}:{S_B2M+1}]")
    A.e(f"s_mov_b64 exec, s[{S_MSTM}:{S_MSTM+1}]")
    A.e(f"buffer_store_dword v10, v{V_MST}, {WSRD}, s{S_MST} offen")
    A.e(f"buffer_store_dword v24, v{V_MST}, {WSRD}, s{S_MPZ} offen")
    A.e("s_mov_b64 exec, -1")
    if opts.get("total"): A.e(f"s_add_u32 s68, s68, s{S_SPIN}")
    stamp(A, opts, 8)
    for r in (S_MEMRD, S_MST, S_MPZ):
        A.e(f"s_xor_b32 s{r}, s{r}, 0x2000")
    for r in (S_PLD, S_PPZ, S_PSTB):
        A.e(f"s_xor_b32 s{r}, s{r}, 0x40000")
    A.e("s_add_u32 s26, s26, 1")
    A.e("s_branch L_step")

    if flags:
        A.label("L_fkv_slow")
        A.e(f"s_mov_b32 s{S_SPIN}, 0")
        A.label("L_fkv_loop")
        A.e(f"v_lshrrev_b32 v110, 2, v{V_L16}")
        A.e(f"buffer_load_dword v111, v110, {WSRD}, s{S_FKV} offen sc1")
        A.e(f"s_add_u32 s{S_SPIN}, s{S_SPIN}, 1")
        A.e(f"s_cmp_gt_u32 s{S_SPIN}, {SPIN_MAX*10}")
        A.e("s_cbranch_scc1 L_fail")
        A.e("s_waitcnt vmcnt(0)")
        A.e("v_cmp_eq_u32 vcc, 0, v111")
        A.e("s_and_b32 vcc_lo, vcc_lo, 3")
        A.e("s_cbranch_scc1 L_fkv_loop")
        A.e("s_branch L_fkv_ok")
    A.label("L_last")
    for m in vms[2:]:
        A.e(m)
    A.e("s_nop 7")
    A.e("v_pk_add_f32 v[48:49], v[48:49], v[50:51]")
    A.e("v_pk_add_f32 v[52:53], v[52:53], v[54:55]")
    A.e(f"v_cvt_pk_bf16_f32 v{V_KV4+2}, v48, v49")
    A.e(f"v_cvt_pk_bf16_f32 v{V_KV4+3}, v52, v53")
    A.e(f"buffer_store_dwordx4 v[{V_KV4}:{V_KV4+3}], v{V_L16}, {WSRD}, s{S_KM} offen sc1")
    A.e("s_waitcnt vmcnt(0)")
    if flags:
        A.e("s_mov_b64 exec, 1")
        A.e(f"buffer_store_dword v{V_IDX}, v{V_PM0+1}, {WSRD}, s{S_FKM} offen sc1")
        A.e(f"s_add_u32 s{S_FKM}, s{S_FKM}, {FL_SEG}")
        A.e(f"buffer_store_dword v{V_IDX}, v{V_PM0+1}, {WSRD}, s{S_FKM} offen sc1")
        A.e("s_mov_b64 exec, -1")
        A.e("s_waitcnt vmcnt(0)")
    if opts.get("total"):
        A.e("s_memtime s[86:87]")
        A.e("s_memrealtime s[88:89]")
        A.e("s_waitcnt lgkmcnt(0)")
        A.e("s_sub_u32 s64, s84, s80")
        A.e("s_sub_u32 s65, s88, s84")
        A.e("s_sub_u32 s66, s86, s82")
    if opts.get("stamps") or opts.get("total"):
        A.e("s_cmp_lg_u32 s24, %d" % opts.get("rep", 0))
        A.e("s_cbranch_scc1 L_exit")
        A.e("s_cmp_lg_u32 s25, 0")
        A.e("s_cbranch_scc1 L_exit")
        A.e(f"s_load_dwordx2 s[36:37], s[0:1], {KA_DBG}")
        A.e("s_waitcnt lgkmcnt(0)")
        A.e("v_mov_b32 v1, 0")
        for i in range(12):
            A.e(f"v_mov_b32 v2, s{64+i}")
            A.e(f"global_store_dword v1, v2, s[36:37] offset:{128 + 4*i}")
        A.e("s_waitcnt vmcnt(0)")
    A.e("s_branch L_exit")
    A.label("L_fail")
    A.e("s_mov_b64 exec, -1")
    A.e(f"s_load_dwordx2 s[36:37], s[0:1], {KA_DBG}")
    A.e("s_waitcnt vmcnt(0) lgkmcnt(0)")
    A.e("v_mov_b32 v1, 0")
    A.e("v_mov_b32 v2, 0xdead")
    A.e("global_store_dword v1, v2, s[36:37] offset:252")
    A.e("s_waitcnt vmcnt(0)")
    A.e("s_branch L_exit")
```

```python
import sys
from asm import *
from layout import *
import chain, chain2, chain3, chain4, chain5

def header(A, launches):
    A("; generated by gen/main.py")
    for l in launches:
        A(l)
    A('.amdgcn_target "amdgcn-amd-amdhsa--gfx950"')
    A(".text")

def kstart(A, name):
    A(f".globl {name}")
    A(".p2align 8")
    A(f".type {name},@function")
    A(f"{name}:")

def kdesc(A, name, vgpr, sgpr, accum):
    A('.section .rodata,"a"')
    A(".p2align 6")
    A(f".amdhsa_kernel {name}")
    A(f"  .amdhsa_next_free_vgpr {vgpr}")
    A(f"  .amdhsa_next_free_sgpr {sgpr}")
    A(f"  .amdhsa_accum_offset {accum}")
    A("  .amdhsa_group_segment_fixed_size 0")
    A("  .amdhsa_kernarg_size 104")
    A("  .amdhsa_user_sgpr_count 2")
    A("  .amdhsa_user_sgpr_kernarg_segment_ptr 1")
    A("  .amdhsa_system_sgpr_workgroup_id_x 1")
    A(".end_amdhsa_kernel")
    A(".text")

def role_select(A):
    A.e("s_cmp_ge_u32 s2, 256")
    A.e("s_cbranch_scc1 L_exit")
    A.e(f"s_load_dwordx2 s[36:37], s[0:1], {KA_DBG}")
    A.e("s_getreg_b32 s38, hwreg(HW_REG_XCC_ID, 0, 4)")
    A.e("s_waitcnt lgkmcnt(0)")
    A.e("v_mov_b32 v1, 0")
    A.e("v_mov_b32 v2, 1")
    A.e("s_lshl_b32 s39, s38, 2")
    A.e("v_mov_b32 v3, s39")
    A.e("v_cmp_eq_u32 vcc, 0, v0")
    A.e("s_and_saveexec_b64 s[30:31], vcc")
    A.e("s_cbranch_execz L_noat")
    A.e("global_atomic_add v4, v3, v2, s[36:37] sc0")
    A.e("s_waitcnt vmcnt(0)")
    A.e("ds_write_b32 v1, v4")
    A.e("s_waitcnt lgkmcnt(0)")
    A.label("L_noat")
    A.e("s_mov_b64 exec, s[30:31]")
    A.e("s_barrier")
    A.e("ds_read_b32 v4, v1")
    A.e("s_waitcnt lgkmcnt(0)")
    A.e("s_nop 1")
    A.e("v_readfirstlane_b32 s24, v4")
    A.e("s_nop 3")
    A.e("s_barrier")
    A.e("s_cmp_lg_u32 s38, 0")
    A.e("s_cbranch_scc1 L_exit")
    A.e("s_cmp_ge_u32 s24, 32")
    A.e("s_cbranch_scc1 L_exit")

def build_chain_only(path, opts, mod=None):
    A = Asm()
    k = "chain_kernel"
    header(A, [f"; @launch grid=(256,1,1) block=(256,1,1) lds=163840"])
    kstart(A, k)
    role_select(A)
    (mod or chain).gen_chain(A, opts)
    A.label("L_exit")
    A.e("s_endpgm")
    kdesc(A, k, 512, 102, 256)
    open(path, "w").write(A.text())

if __name__ == "__main__":
    build_chain_only("chain_only.s", dict(stamps=False))
    build_chain_only("chain_stamps.s", dict(stamps=True))
    build_chain_only("chain_dump.s", dict(dump=True))
    build_chain_only("chain_total.s", dict(total=True))
    build_chain_only("chain2_only.s", dict(), chain2)
    build_chain_only("chain2_stamps.s", dict(stamps=True), chain2)
    build_chain_only("chain2_total.s", dict(total=True), chain2)
    build_chain_only("chain3_only.s", dict(), chain3)
    build_chain_only("chain3_stamps.s", dict(stamps=True), chain3)
    build_chain_only("chain3_total.s", dict(total=True), chain3)
    build_chain_only("chain3_nc12.s", dict(total=True, nocheck1=True, nocheck2=True), chain3)
    for a in range(9):
        build_chain_only(f"chain3_st{a}.s", dict(stamps=True, nocheck1=True, nocheck2=True, only={a, (a+1) % 9}), chain3)
    for d1, d2 in ((0,0),(4,0),(8,0),(0,4),(0,8),(4,4),(8,4),(8,8),(12,8)):
        build_chain_only(f"chain3_d{d1}_{d2}.s", dict(total=True, d1=d1, d2=d2), chain3)
    build_chain_only("chain4_total.s", dict(total=True), chain4)
    build_chain_only("chain4_nc12.s", dict(total=True, nocheck1=True, nocheck2=True), chain4)
    build_chain_only("chain4_r7.s", dict(total=True, rep=7), chain4)
    for a in range(9):
        build_chain_only(f"chain4_st{a}.s", dict(stamps=True, nocheck1=True, nocheck2=True, only={a, (a+1) % 9}), chain4)
    for d1, d2 in ((2,0),(4,0),(6,0),(0,2),(0,4),(2,2),(4,2),(4,4),(6,4),(6,6),(8,4)):
        build_chain_only(f"chain4_d{d1}_{d2}.s", dict(total=True, d1=d1, d2=d2, rep=7), chain4)
    for d1, d1b, d2 in ((0,3,3),(0,4,4),(4,3,3),(4,4,3),(8,3,3),(0,2,2),(4,3,2),(6,3,4)):
        build_chain_only(f"chain5_d{d1}_{d1b}_{d2}.s", dict(total=True, d1=d1, d1b=d1b, d2=d2, rep=7), chain5)
```

```python
from asm import *
from layout import *
import struct, math

S_WS = 20
WSRD = f"s[{S_WS}:{S_WS+3}]"
FORMAT = "0x00020000"

def fbits(x):
    return hex(struct.unpack("<I", struct.pack("<f", x))[0])

def load_srd(A, s, ka, nbytes):
    A.e(f"s_load_dwordx2 s[{s}:{s+1}], s[0:1], {ka}")
def finish_srd(A, s, nbytes):
    A.e(f"s_mov_b32 s{s+2}, {hex(nbytes)}")
    A.e(f"s_mov_b32 s{s+3}, {FORMAT}")

def wave_lane(A):
    A.e("v_lshrrev_b32 v1, 6, v0")
    A.e("v_and_b32 v2, 63, v0")
    A.e("v_readfirstlane_b32 s25, v1")

def xlane_sum(A, v, t):
    for ctl in ("quad_perm:[1,0,3,2]", "quad_perm:[2,3,0,1]", "row_half_mirror", "row_mirror"):
        A.e("s_nop 1")
        A.e(f"v_add_f32_dpp v{v}, v{v}, v{v} {ctl} row_mask:0xf bank_mask:0xf")
    A.e(f"v_mov_b32 v{t}, v{v}")
    A.e("s_nop 1")
    A.e(f"v_permlane16_swap_b32 v{v}, v{t}")
    A.e(f"v_add_f32 v{v}, v{v}, v{t}")
    A.e(f"v_mov_b32 v{t}, v{v}")
    A.e("s_nop 1")
    A.e(f"v_permlane32_swap_b32 v{v}, v{t}")
    A.e(f"v_add_f32 v{v}, v{v}, v{t}")

def round_bf16(A, v):
    A.e(f"v_cvt_pk_bf16_f32 v{v}, v{v}, v{v}")
    A.e(f"v_lshlrev_b32 v{v}, 16, v{v}")

def unpack8(A, src, dst):
    for j in range(4):
        A.e(f"v_lshlrev_b32 v{dst+2*j}, 16, v{src+j}")
        A.e(f"v_and_b32 v{dst+2*j+1}, 0xffff0000, v{src+j}")

def layernorm8(A, x, out, t):
    A.e(f"v_pk_add_f32 v[{t}:{t+1}], v[{x}:{x+1}], v[{x+2}:{x+3}]")
    A.e(f"v_pk_add_f32 v[{t+2}:{t+3}], v[{x+4}:{x+5}], v[{x+6}:{x+7}]")
    A.e(f"v_pk_add_f32 v[{t}:{t+1}], v[{t}:{t+1}], v[{t+2}:{t+3}]")
    A.e(f"v_add_f32 v{t}, v{t}, v{t+1}")
    xlane_sum(A, t, t + 1)
    A.e(f"v_mul_f32 v{t}, {fbits(1.0/512)}, v{t}          ; mean")
    for j in range(8):
        A.e(f"v_sub_f32 v{t+4+j}, v{x+j}, v{t}")
    A.e(f"v_mul_f32 v{t+2}, v{t+4}, v{t+4}")
    for j in range(1, 8):
        A.e(f"v_fmac_f32 v{t+2}, v{t+4+j}, v{t+4+j}")
    xlane_sum(A, t + 2, t + 3)
    A.e(f"v_mul_f32 v{t+2}, {fbits(1.0/512)}, v{t+2}      ; variance")
    round_bf16(A, t + 2)
    A.e(f"v_add_f32 v{t+2}, {fbits(1e-5)}, v{t+2}")
    round_bf16(A, t + 2)
    A.e(f"v_sqrt_f32 v{t+2}, v{t+2}")
    A.e("s_nop 0")
    round_bf16(A, t + 2)
    A.e(f"v_rcp_f32 v{t+2}, v{t+2}")
    round_bf16(A, t)
    for j in range(8):
        A.e(f"v_sub_f32 v{t+4+j}, v{x+j}, v{t}")
    for j in range(4):
        A.e(f"v_cvt_pk_bf16_f32 v{t+1}, v{t+4+2*j}, v{t+5+2*j}")
        A.e(f"v_lshlrev_b32 v{t+4+2*j}, 16, v{t+1}")
        A.e(f"v_and_b32 v{t+5+2*j}, 0xffff0000, v{t+1}")
    for j in range(8):
        A.e(f"v_mul_f32 v{t+4+j}, v{t+4+j}, v{t+2}")
    for j in range(4):
        A.e(f"v_cvt_pk_bf16_f32 v{out+j}, v{t+4+2*j}, v{t+5+2*j}")

def gen_init(A):
    A.e("s_cmp_ge_u32 s2, 256")
    A.e("s_cbranch_scc1 L0_exit")
    load_srd(A, 4, KA_X, 0); load_srd(A, 8, KA_MEM0, 0); load_srd(A, S_WS, KA_WS, 0)
    wave_lane(A)
    A.e("s_waitcnt lgkmcnt(0)")
    finish_srd(A, 4, 0x200000); finish_srd(A, 8, 0x2000); finish_srd(A, S_WS, WS_SIZE)
    A.e("v_lshlrev_b32 v3, 4, v2                 ; lane*16")
    A.e("s_lshl_b32 s27, s2, 3")
    A.e("s_lshl_b32 s28, s25, 1")
    A.e("s_add_u32 s27, s27, s28")
    A.e("s_lshl_b32 s27, s27, 10                 ; row*1024")
    A.e("buffer_load_dwordx4 v[8:11], v3, s[4:7], s27 offen")
    A.e("buffer_load_dwordx4 v[12:15], v3, s[4:7], s27 offen offset:1024")
    A.e("v_lshlrev_b32 v4, 4, v0                 ; tid*16")
    for r in range(16, 20): A.e(f"v_mov_b32 v{r}, 0")
    for r in range(20, 24): A.e(f"v_mov_b32 v{r}, -1")
    A.e("s_lshl_b32 s28, s2, 12")
    A.e("s_cmp_ge_u32 s2, 128")
    A.e("s_cbranch_scc1 L0_nop")
    A.e(f"s_add_u32 s29, s28, {hex(WS_P)}")
    A.e(f"buffer_store_dwordx4 v[20:23], v4, {WSRD}, s29 offen")
    A.label("L0_nop")
    A.e("s_cmp_ge_u32 s2, 32")
    A.e("s_cbranch_scc1 L0_noflag")
    A.e(f"s_add_u32 s29, s28, {hex(WS_FLAG)}")
    A.e(f"buffer_store_dwordx4 v[16:19], v4, {WSRD}, s29 offen")
    A.label("L0_noflag")
    A.e("s_cmp_lg_u32 s2, 40")
    A.e("s_cbranch_scc1 L0_nopz")
    for r in range(20, 24): A.e(f"v_mov_b32 v{r}, -1")
    A.e(f"s_mov_b32 s29, {hex(WS_MEM + 8192)}")
    A.e(f"buffer_store_dwordx4 v[20:23], v4, {WSRD}, s29 offen")
    A.e(f"s_mov_b32 s29, {hex(WS_MEM + 8192 + 4096)}")
    A.e(f"buffer_store_dwordx4 v[20:23], v4, {WSRD}, s29 offen")
    A.label("L0_nopz")
    A.e("s_cmp_lg_u32 s2, 41")
    A.e("s_cbranch_scc1 L0_nomem")
    A.e("v_and_b32 v5, 15, v0                    ; rho")
    A.e("v_lshrrev_b32 v6, 2, v5")
    A.e("v_lshlrev_b32 v6, 1, v6")
    A.e("v_and_b32 v7, 1, v5")
    A.e("v_add_u32 v6, v6, v7                    ; i")
    A.e("v_lshlrev_b32 v6, 10, v6                ; i*1024")
    A.e("v_bfe_u32 v7, v5, 1, 1                  ; hf")
    A.e("v_lshl_add_u32 v6, v7, 6, v6            ; + hf*32*2")
    A.e("v_bfe_u32 v7, v0, 4, 2                  ; ga")
    A.e("v_lshl_add_u32 v6, v7, 3, v6            ; + 4*ga*2")
    A.e("v_lshrrev_b32 v7, 6, v0                 ; c (0..3)")
    A.e("v_lshl_add_u32 v6, v7, 7, v6            ; + 64*2*c")
    A.e("buffer_load_dwordx2 v[20:21], v6, s[8:11], 0 offen")
    A.e("buffer_load_dwordx2 v[22:23], v6, s[8:11], 0 offen offset:32")
    A.e("buffer_load_dwordx2 v[24:25], v6, s[8:11], 0 offen offset:512")
    A.e("buffer_load_dwordx2 v[26:27], v6, s[8:11], 0 offen offset:544")
    A.e("s_waitcnt vmcnt(0)")
    A.e(f"s_mov_b32 s29, {hex(WS_MEM)}")
    A.e(f"buffer_store_dwordx4 v[20:23], v4, {WSRD}, s29 offen")
    A.e(f"s_mov_b32 s29, {hex(WS_MEM + 4096)}")
    A.e(f"buffer_store_dwordx4 v[24:27], v4, {WSRD}, s29 offen")
    A.label("L0_nomem")
    A.e("s_waitcnt vmcnt(0)")
    A.e(f"s_add_u32 s27, s27, {hex(WS_XN)}")
    for k in range(2):
        unpack8(A, 8 + 4 * k, 32)
        layernorm8(A, 32, 28, 40)
        A.e(f"buffer_store_dwordx4 v[28:31], v3, {WSRD}, s27 offen offset:{1024*k}")
        A.e("s_nop 1")
    A.e("s_waitcnt vmcnt(0)")
    A.label("L0_exit")
    A.e("s_endpgm")

def load_weights_32col(A, srd, s_off, rowstride, nks, stage_base_s, areg0, vtmp):
    assert nks % 1 == 0
    A.e(f"v_lshrrev_b32 v{vtmp}, 2, v2")
    A.e(f"s_mov_b32 s33, {rowstride}")
    A.e(f"v_mul_lo_u32 v{vtmp}, v{vtmp}, s33")
    A.e(f"v_and_b32 v{vtmp+1}, 3, v2")
    A.e(f"v_lshl_add_u32 v{vtmp}, v{vtmp+1}, 4, v{vtmp}")
    for ks in range(nks):
        A.e(f"s_add_u32 m0, s{stage_base_s}, {ks*1024}")
        if ks: A.e(f"s_add_u32 s{s_off}, s{s_off}, {16*rowstride}")
        else: A.e("s_nop 0")
        A.e(f"buffer_load_dwordx4 v{vtmp}, s[{srd}:{srd+3}], s{s_off} offen lds")
    A.e(f"v_lshrrev_b32 v{vtmp}, 5, v2")
    A.e(f"v_lshlrev_b32 v{vtmp}, 3, v{vtmp}")
    A.e(f"v_bfe_u32 v{vtmp+1}, v2, 2, 2")
    A.e(f"v_add_u32 v{vtmp}, v{vtmp}, v{vtmp+1}")
    A.e(f"v_lshlrev_b32 v{vtmp}, 6, v{vtmp}")
    A.e(f"v_bfe_u32 v{vtmp+1}, v2, 4, 1")
    A.e(f"v_lshl_add_u32 v{vtmp}, v{vtmp+1}, 5, v{vtmp}")
    A.e(f"v_and_b32 v{vtmp+1}, 3, v2")
    A.e(f"v_lshl_add_u32 v{vtmp}, v{vtmp+1}, 3, v{vtmp}")
    A.e(f"v_add_u32 v{vtmp}, s{stage_base_s}, v{vtmp}")
    for ks in range(nks):
        if ks % 4 == 0:
            rem = nks - min(nks, ks + 4)
            A.e(f"s_waitcnt vmcnt({rem})")
        for m in range(2):
            A.e(f"ds_read_b64_tr_b16 a[{areg0+4*ks+2*m}:{areg0+4*ks+2*m+1}], v{vtmp} offset:{ks*1024 + m*256}")
        if ks % 4 == 3 or ks == nks - 1:
            A.e("s_waitcnt lgkmcnt(0)")

def gen_proj(A, L, cfg):
    BUF = [0, 33280]; OST = 66560; ORS = 272
    ws, seg_stride = cfg["wstride"], cfg["seg_stride"]
    BUFX = BUF[1]
    A.e(f"s_cmp_ge_u32 s26, 64")
    A.e(f"s_cbranch_scc1 {L}_exit")
    A.e("s_lshl_b32 s29, s25, 6")
    A.e("s_add_u32 s29, s29, s24")
    A.e("s_lshl_b32 s30, s25, 15")
    load_weights_32col(A, 4, 29, ws, 32, 30, 0, 8)
    A.e("s_barrier")
    A.e("v_lshlrev_b32 v3, 4, v2                 ; lane*16")
    A.e("v_and_b32 v4, 31, v2")
    A.e("s_movk_i32 s33, 1040")
    A.e("v_mul_lo_u32 v4, v4, s33")
    A.e("v_lshrrev_b32 v5, 5, v2                 ; hi")
    A.e("v_lshl_add_u32 v4, v5, 4, v4")
    A.e("v_and_b32 v6, 31, v2")
    A.e(f"s_movk_i32 s33, {ORS}")
    A.e("v_mul_lo_u32 v6, v6, s33")
    A.e("v_lshl_add_u32 v6, v5, 3, v6")
    A.e("s_lshl_b32 s33, s25, 6")
    A.e(f"s_add_u32 s33, s33, {OST}")
    A.e("v_add_u32 v6, s33, v6")
    A.e("v_lshrrev_b32 v7, 4, v2")
    A.e("s_lshl_b32 s33, s25, 3")
    A.e("v_add_u32 v7, s33, v7                   ; row")
    A.e("v_and_b32 v8, 15, v2")
    A.e(f"s_movk_i32 s33, {ORS}")
    A.e("v_mul_lo_u32 v9, v7, s33")
    A.e("v_lshl_add_u32 v9, v8, 4, v9")
    A.e(f"v_add_u32 v9, {OST}, v9")
    A.e(f"s_mov_b32 s33, {cfg['out_row']}")
    A.e("v_mul_lo_u32 v10, v7, s33")
    A.e("v_lshl_add_u32 v10, v8, 4, v10")
    def dma(buf_s):
        A.e("s_lshl_b32 s33, s31, 5")
        A.e("s_lshl_b32 s34, s25, 3")
        A.e("s_add_u32 s33, s33, s34")
        A.e("s_lshl_b32 s33, s33, 10")
        A.e(f"s_add_u32 s33, s33, {hex(cfg['a_base'])}")
        A.e("s_mul_i32 s34, s34, 1040")
        A.e(f"s_add_u32 s34, s34, s{buf_s}")
        for r in range(8):
            A.e(f"s_add_u32 m0, s34, {r*1040}")
            if r: A.e("s_add_u32 s33, s33, 1024")
            else: A.e("s_nop 0")
            A.e(f"buffer_load_dwordx4 v3, {WSRD}, s33 offen sc1 lds")
    A.e("s_mov_b32 s35, 0")
    A.e("s_mov_b32 s31, s26")
    if cfg.get("wait_in"): cfg["wait_in"](A, 31)
    dma(35)
    A.e("s_mov_b32 s57, 1")
    A.label(f"{L}_loop")
    A.e("s_cmp_eq_u32 s57, 1")
    A.e(f"s_cbranch_scc1 {L}_have")
    A.e("s_mov_b32 s31, s26")
    if cfg.get("wait_in"): cfg["wait_in"](A, 31)
    dma(35)
    A.label(f"{L}_have")
    A.e("s_waitcnt vmcnt(0)")
    A.e("s_barrier")
    A.e(f"s_xor_b32 s36, s35, {BUFX}")
    A.e(f"s_add_u32 s31, s26, {seg_stride}")
    A.e("s_mov_b32 s57, 0")
    A.e("s_cmp_ge_u32 s31, 64")
    A.e(f"s_cbranch_scc1 {L}_nodma")
    if cfg.get("try_in"):
        cfg["try_in"](A, 31)
        A.e(f"s_cbranch_scc0 {L}_nodma")
    A.e("s_mov_b32 s57, 1")
    dma(36)
    A.label(f"{L}_nodma")
    A.e("v_add_u32 v11, s35, v4")
    for ks in range(4):
        A.e(f"ds_read_b128 v[{32+4*ks}:{35+4*ks}], v11 offset:{ks*32}")
    for ks in range(32):
        A.e(f"s_waitcnt lgkmcnt({min(3, 31-ks)})")
        c = "0" if ks == 0 else "v[16:31]"
        b = 32 + 4 * (ks % 5)
        A.e(f"v_mfma_f32_32x32x16_bf16 v[16:31], a[{4*ks}:{4*ks+3}], v[{b}:{b+3}], {c}")
        if ks + 4 < 32:
            b2 = 32 + 4 * ((ks + 4) % 5)
            A.e(f"ds_read_b128 v[{b2}:{b2+3}], v11 offset:{(ks+4)*32}")
    A.e("s_nop 7")
    A.e("s_nop 4")
    for j in range(8):
        A.e(f"v_cvt_pk_bf16_f32 v{52+j}, v{16+2*j}, v{17+2*j}")
    if cfg.get("relu"):
        for j in range(8):
            A.e(f"v_pk_max_i16 v{52+j}, v{52+j}, 0")
    for q in range(4):
        A.e(f"ds_write_b64 v6, v[{52+2*q}:{53+2*q}] offset:{16*q}")
    A.e("s_waitcnt lgkmcnt(0)")
    A.e("s_barrier")
    A.e("ds_read_b128 v[32:35], v9")
    A.e(f"ds_read_b128 v[36:39], v9 offset:{4*ORS}")
    A.e(f"s_mul_i32 s33, s26, {cfg['out_seg']}")
    A.e("s_add_u32 s33, s33, s28")
    A.e(f"s_add_u32 s34, s33, {4*cfg['out_row']}")
    A.e("s_waitcnt lgkmcnt(0)")
    A.e(f"buffer_store_dwordx4 v[32:35], v10, {WSRD}, s33 offen sc1")
    A.e(f"buffer_store_dwordx4 v[36:39], v10, {WSRD}, s34 offen sc1")
    if cfg.get("signal"): cfg["signal"](A, L)
    A.e("s_mov_b32 s35, s36")
    A.e(f"s_add_u32 s26, s26, {seg_stride}")
    A.e("s_cmp_lt_u32 s26, 64")
    A.e(f"s_cbranch_scc1 {L}_loop")
    A.e("s_waitcnt vmcnt(0)")

CSCALE = struct.unpack("<I", struct.pack("<f", (128 ** -0.5) * math.log2(math.e)))[0]

def gen_attn(A, L, cfg):
    seg_stride = cfg["seg_stride"]
    VS = 0; KT = 0x2000; OST = 0x3000; ORS = 272
    A.e("s_cmp_ge_u32 s26, 64")
    A.e(f"s_cbranch_scc1 {L}_exit")
    A.e("s_and_b32 s27, s25, 1                   ; qt")
    A.e("s_lshr_b32 s28, s25, 1                  ; dhh")
    A.e("v_and_b32 v3, 15, v2                    ; n")
    A.e("v_lshrrev_b32 v4, 4, v2                 ; g")
    A.e("v_bfe_u32 v5, v2, 2, 2                  ; r")
    A.e("v_and_b32 v6, 3, v2                     ; cq")
    A.e("v_lshlrev_b32 v7, 4, v2                 ; l*16")
    A.e("v_lshlrev_b32 v8, 8, v3")
    A.e("v_lshl_add_u32 v8, v4, 4, v8")
    A.e("s_lshl_b32 s33, s25, 5")
    A.e("v_add_u32 v9, s33, v3")
    A.e("v_lshlrev_b32 v9, 5, v9")
    A.e("v_lshrrev_b32 v10, 1, v9")
    A.e("v_and_b32 v10, 128, v10")
    A.e("v_xor_b32 v9, v9, v10")
    A.e("v_lshl_add_u32 v9, v4, 3, v9")
    A.e(f"v_add_u32 v9, {KT}, v9")
    A.e("v_lshlrev_b32 v10, 3, v4")
    A.e("v_add_u32 v10, v10, v5")
    A.e("v_lshlrev_b32 v10, 5, v10")
    A.e("v_lshrrev_b32 v11, 1, v10")
    A.e("v_and_b32 v11, 128, v11")
    A.e("v_xor_b32 v10, v10, v11")
    A.e("v_lshl_add_u32 v10, v6, 3, v10")
    A.e(f"v_add_u32 v10, {KT}, v10")
    A.e("v_xor_b32 v11, 128, v10")
    A.e("v_lshlrev_b32 v12, 2, v4")
    A.e("v_add_u32 v12, v12, v5")
    A.e("v_and_b32 v13, 7, v12")
    A.e("s_lshl_b32 s33, s28, 2")
    A.e("v_xor_b32 v13, s33, v13")
    A.e("v_lshlrev_b32 v13, 5, v13")
    A.e("v_lshl_add_u32 v12, v12, 8, v13")
    A.e("v_lshl_add_u32 v12, v6, 3, v12")
    A.e(f"v_add_u32 v12, {VS}, v12")
    A.e("v_lshrrev_b32 v13, 1, v3")
    A.e("v_xor_b32 v13, v13, v4")
    A.e("v_lshlrev_b32 v13, 5, v13")
    A.e("v_lshl_add_u32 v13, v4, 8, v13")
    A.e("v_and_b32 v14, 1, v2")
    A.e("v_lshl_add_u32 v13, v14, 4, v13")
    A.e("v_xor_b32 v14, 128, v13")
    A.e("s_lshl_b32 s33, s27, 4")
    A.e("v_add_u32 v15, s33, v3")
    A.e(f"s_movk_i32 s33, {ORS}")
    A.e("v_mul_lo_u32 v15, v15, s33")
    A.e("v_lshl_add_u32 v15, v4, 3, v15")
    A.e("s_lshl_b32 s33, s28, 7")
    A.e(f"s_add_u32 s33, s33, {OST}")
    A.e("v_add_u32 v15, s33, v15")
    A.e("s_lshl_b32 s33, s25, 3")
    A.e("v_add_u32 v17, s33, v4                  ; row = 8w + (l>>4)")
    A.e(f"s_movk_i32 s33, {ORS}")
    A.e("v_mul_lo_u32 v16, v17, s33")
    A.e("v_lshl_add_u32 v16, v3, 4, v16")
    A.e(f"v_add_u32 v16, {OST}, v16")
    A.e("v_lshlrev_b32 v17, 13, v17")
    A.e("v_lshl_add_u32 v17, v3, 4, v17")
    A.e("s_lshl_b32 s33, s27, 4")
    A.e("v_add_u32 v18, s33, v3")
    A.e("v_lshlrev_b32 v19, 2, v4")
    A.e("v_sub_u32 v18, v18, v19")
    for kt in range(2):
        for r in range(4):
            A.e(f"v_cmp_le_i32 s[{40+2*(4*kt+r)}:{41+2*(4*kt+r)}], {16*kt+r}, v18")
    A.e(f"s_mov_b32 s56, {hex(CSCALE)}")
    A.e(f"s_mov_b32 s57, {hex(CSCALE)}")
    A.e(f"v_mov_b32 v18, {fbits(-1e30)}")
    A.e("v_mov_b32 v21, 0                        ; [PM,0] = v[20:21]")
    A.e("v_mov_b32 v22, 0                        ; [0,PM] = v[22:23]")
    A.label(f"{L}_loop")
    if cfg.get("wait_in"): cfg["wait_in"](A, 26)
    A.e("s_lshl_b32 s33, s26, 5")
    A.e("s_add_u32 s33, s33, s24                 ; s*32+h")
    A.e("s_lshl_b32 s34, s33, 13")
    A.e(f"s_add_u32 s35, s34, {hex(WS_KX)}")
    A.e("s_add_u32 s36, s35, 4096")
    for kt in range(2):
        for ks in range(4):
            A.e(f"buffer_load_dwordx4 v[{32+16*kt+4*ks}:{35+16*kt+4*ks}], v8, {WSRD}, s{35+kt} offen offset:{64*ks} sc1")
    A.e("s_lshl_b32 s37, s27, 12")
    A.e("s_add_u32 s37, s37, s34")
    A.e(f"s_add_u32 s37, s37, {hex(WS_QX)}")
    for ks in range(4):
        A.e(f"buffer_load_dwordx4 v[{64+4*ks}:{67+4*ks}], v8, {WSRD}, s37 offen offset:{64*ks} sc1")
    A.e("s_lshl_b32 s38, s33, 12")
    A.e(f"s_add_u32 s38, s38, {hex(WS_KMVM)}")
    A.e("s_lshl_b32 s39, s25, 10")
    A.e("s_add_u32 s39, s39, s38")
    A.e(f"buffer_load_dwordx2 v[24:25], v7, {WSRD}, s39 offen sc1")
    A.e("s_lshl_b32 s39, s28, 11")
    A.e("s_add_u32 s39, s39, s38")
    A.e(f"buffer_load_dwordx2 v[26:27], v7, {WSRD}, s39 offen offset:8 sc1")
    A.e(f"buffer_load_dwordx2 v[28:29], v7, {WSRD}, s39 offen offset:1032 sc1")
    A.e("s_lshl_b32 s39, s25, 11")
    A.e("s_add_u32 s35, s34, s39")
    A.e(f"s_add_u32 s35, s35, {hex(WS_VX)}")
    A.e(f"s_add_u32 m0, s39, {VS}")
    A.e("s_nop 0")
    A.e(f"buffer_load_dwordx4 v13, {WSRD}, s35 offen sc1 lds")
    A.e("s_add_u32 s35, s35, 1024")
    A.e(f"s_add_u32 m0, s39, {VS + 1024}")
    A.e("s_nop 0")
    A.e(f"buffer_load_dwordx4 v14, {WSRD}, s35 offen sc1 lds")
    A.e("s_waitcnt vmcnt(0)")
    A.e("ds_write2st64_b32 v9, v24, v25 offset0:0 offset1:2")
    A.e("s_waitcnt lgkmcnt(0)")
    A.e("s_barrier")
    for ks in range(4):
        A.e(f"ds_read_b64_tr_b16 v[{80+4*ks}:{81+4*ks}], v10 offset:{1024*ks}")
        A.e(f"ds_read_b64_tr_b16 v[{82+4*ks}:{83+4*ks}], v11 offset:{1024*ks}")
    for ks in range(4):
        for kt in range(2):
            c = "0" if ks == 0 else f"v[{96+4*kt}:{99+4*kt}]"
            A.e(f"v_mfma_f32_16x16x32_bf16 v[{96+4*kt}:{99+4*kt}], v[{32+16*kt+4*ks}:{35+16*kt+4*ks}], v[{64+4*ks}:{67+4*ks}], {c}")
    A.e("s_waitcnt lgkmcnt(0)")
    for ks in range(4):
        c = "0" if ks == 0 else "v[104:107]"
        A.e(f"v_mfma_f32_16x16x32_bf16 v[104:107], v[{80+4*ks}:{83+4*ks}], v[{64+4*ks}:{67+4*ks}], {c}")
    for tp in range(4):
        if tp == 0:
            ad = 12
        else:
            A.e(f"v_xor_b32 v19, {tp << 5}, v12")
            ad = 19
        for kt in range(2):
            A.e(f"ds_read_b64_tr_b16 v[{32+4*tp+2*kt}:{33+4*tp+2*kt}], v{ad} offset:{4096*kt}")
    A.e("s_nop 3")
    for kt in range(2):
        for r in range(4):
            A.e(f"v_cndmask_b32 v{96+4*kt+r}, v18, v{96+4*kt+r}, s[{40+2*(4*kt+r)}:{41+2*(4*kt+r)}]")
    A.e("v_max3_f32 v48, v96, v97, v98")
    A.e("v_max3_f32 v49, v99, v100, v101")
    A.e("v_max3_f32 v48, v48, v102, v103")
    A.e("v_max3_f32 v49, v49, v104, v105")
    A.e("v_max_f32 v50, v48, v49")
    A.e("v_max_f32 v51, v48, v49")
    A.e("s_nop 1")
    A.e("v_permlane32_swap_b32 v50, v51")
    A.e("v_max_f32 v48, v50, v51")
    A.e("v_max_f32 v49, v50, v51")
    A.e("s_nop 1")
    A.e("v_permlane16_swap_b32 v48, v49")
    A.e("v_max_f32 v48, v48, v49")
    A.e("v_mul_f32 v48, s56, v48")
    for j in range(5):
        A.e(f"v_pk_fma_f32 v[{96+2*j}:{97+2*j}], v[{96+2*j}:{97+2*j}], s[56:57], v[48:49] op_sel_hi:[1,1,0] neg_lo:[0,0,1] neg_hi:[0,0,1]")
    for j in range(10):
        A.e(f"v_exp_f32 v{96+j}, v{96+j}")
    A.e("s_nop 0")
    for j in range(4):
        A.e(f"v_cvt_pk_bf16_f32 v{48+j}, v{96+2*j}, v{97+2*j}")
    A.e("v_cvt_pk_bf16_f32 v20, v104, v105")
    A.e("v_cvt_pk_bf16_f32 v23, v104, v105")
    A.e("s_waitcnt lgkmcnt(0)")
    A.e("s_nop 0")
    for tp in range(4):
        A.e(f"v_mfma_f32_16x16x32_bf16 v[{64+4*tp}:{67+4*tp}], v[{32+4*tp}:{35+4*tp}], v[48:51], 0")
    for tp in range(4):
        vp = 26 + 2 * (tp >> 1)
        pm = 20 if tp % 2 == 0 else 22
        A.e(f"v_mfma_f32_16x16x16_bf16 v[{64+4*tp}:{67+4*tp}], v[{vp}:{vp+1}], v[{pm}:{pm+1}], v[{64+4*tp}:{67+4*tp}]")
    A.e("v_pk_add_f32 v[52:53], v[96:97], v[98:99]")
    A.e("v_pk_add_f32 v[54:55], v[100:101], v[102:103]")
    A.e("v_pk_add_f32 v[52:53], v[52:53], v[104:105]")
    A.e("v_pk_add_f32 v[52:53], v[52:53], v[54:55]")
    A.e("v_add_f32 v54, v52, v53")
    A.e("v_add_f32 v55, v52, v53")
    A.e("s_nop 1")
    A.e("v_permlane32_swap_b32 v54, v55")
    A.e("v_add_f32 v52, v54, v55")
    A.e("v_add_f32 v53, v54, v55")
    A.e("s_nop 1")
    A.e("v_permlane16_swap_b32 v52, v53")
    A.e("v_add_f32 v52, v52, v53")
    A.e("v_rcp_f32 v52, v52")
    A.e("s_nop 3")
    for j in range(8):
        A.e(f"v_pk_mul_f32 v[{64+2*j}:{65+2*j}], v[{64+2*j}:{65+2*j}], v[52:53] op_sel_hi:[1,0]")
    for j in range(8):
        A.e(f"v_cvt_pk_bf16_f32 v{80+j}, v{64+2*j}, v{65+2*j}")
    for tp in range(4):
        A.e(f"ds_write_b64 v15, v[{80+2*tp}:{81+2*tp}] offset:{32*tp}")
    A.e("s_waitcnt lgkmcnt(0)")
    A.e("s_barrier")
    A.e("ds_read_b128 v[32:35], v16")
    A.e(f"ds_read_b128 v[36:39], v16 offset:{4*ORS}")
    A.e("s_lshl_b32 s33, s26, 18                 ; s*32 rows*8192")
    A.e("s_lshl_b32 s34, s24, 8")
    A.e("s_add_u32 s33, s33, s34")
    A.e(f"s_add_u32 s33, s33, {hex(WS_O)}")
    A.e("s_add_u32 s34, s33, 0x8000")
    A.e("s_waitcnt lgkmcnt(0)")
    A.e(f"buffer_store_dwordx4 v[32:35], v17, {WSRD}, s33 offen sc1")
    A.e(f"buffer_store_dwordx4 v[36:39], v17, {WSRD}, s34 offen sc1")
    if cfg.get("signal"): cfg["signal"](A, L)
    A.e("s_barrier")
    A.e(f"s_add_u32 s26, s26, {seg_stride}")
    A.e("s_cmp_lt_u32 s26, 64")
    A.e(f"s_cbranch_scc1 {L}_loop")
    A.e("s_waitcnt vmcnt(0)")

def gen_attn2(A, L, cfg):
    seg_stride = cfg["seg_stride"]
    VS = 0; VS1 = 0x2000; KT = 0x4000; OST = 0x5000; ORS = 272
    A.e("s_cmp_ge_u32 s26, 64")
    A.e(f"s_cbranch_scc1 {L}_exit")
    A.e("s_and_b32 s27, s25, 1                   ; qt")
    A.e("s_lshr_b32 s28, s25, 1                  ; dhh")
    A.e("v_and_b32 v3, 15, v2                    ; n")
    A.e("v_lshrrev_b32 v4, 4, v2                 ; g")
    A.e("v_bfe_u32 v5, v2, 2, 2                  ; r")
    A.e("v_and_b32 v6, 3, v2                     ; cq")
    A.e("v_lshlrev_b32 v7, 4, v2                 ; l*16")
    A.e("v_lshlrev_b32 v8, 8, v3")
    A.e("v_lshl_add_u32 v8, v4, 4, v8")
    A.e("s_lshl_b32 s33, s25, 5")
    A.e("v_add_u32 v9, s33, v3")
    A.e("v_lshlrev_b32 v9, 5, v9")
    A.e("v_lshrrev_b32 v10, 1, v9")
    A.e("v_and_b32 v10, 128, v10")
    A.e("v_xor_b32 v9, v9, v10")
    A.e("v_lshl_add_u32 v9, v4, 3, v9")
    A.e(f"v_add_u32 v9, {KT}, v9")
    A.e("v_lshlrev_b32 v10, 3, v4")
    A.e("v_add_u32 v10, v10, v5")
    A.e("v_lshlrev_b32 v10, 5, v10")
    A.e("v_lshrrev_b32 v11, 1, v10")
    A.e("v_and_b32 v11, 128, v11")
    A.e("v_xor_b32 v10, v10, v11")
    A.e("v_lshl_add_u32 v10, v6, 3, v10")
    A.e(f"v_add_u32 v10, {KT}, v10")
    A.e("v_xor_b32 v11, 128, v10")
    A.e("v_lshlrev_b32 v12, 2, v4")
    A.e("v_add_u32 v12, v12, v5")
    A.e("v_and_b32 v13, 7, v12")
    A.e("s_lshl_b32 s33, s28, 2")
    A.e("v_xor_b32 v13, s33, v13")
    A.e("v_lshlrev_b32 v13, 5, v13")
    A.e("v_lshl_add_u32 v12, v12, 8, v13")
    A.e("v_lshl_add_u32 v12, v6, 3, v12")
    A.e(f"v_add_u32 v12, {VS}, v12")
    A.e("v_lshrrev_b32 v13, 1, v3")
    A.e("v_xor_b32 v13, v13, v4")
    A.e("v_lshlrev_b32 v13, 5, v13")
    A.e("v_lshl_add_u32 v13, v4, 8, v13")
    A.e("v_and_b32 v14, 1, v2")
    A.e("v_lshl_add_u32 v13, v14, 4, v13")
    A.e("v_xor_b32 v14, 128, v13")
    A.e("s_lshl_b32 s33, s27, 4")
    A.e("v_add_u32 v15, s33, v3")
    A.e(f"s_movk_i32 s33, {ORS}")
    A.e("v_mul_lo_u32 v15, v15, s33")
    A.e("v_lshl_add_u32 v15, v4, 3, v15")
    A.e("s_lshl_b32 s33, s28, 7")
    A.e(f"s_add_u32 s33, s33, {OST}")
    A.e("v_add_u32 v15, s33, v15")
    A.e("s_lshl_b32 s33, s25, 3")
    A.e("v_add_u32 v17, s33, v4                  ; row = 8w + (l>>4)")
    A.e(f"s_movk_i32 s33, {ORS}")
    A.e("v_mul_lo_u32 v16, v17, s33")
    A.e("v_lshl_add_u32 v16, v3, 4, v16")
    A.e(f"v_add_u32 v16, {OST}, v16")
    A.e("v_lshlrev_b32 v17, 13, v17")
    A.e("v_lshl_add_u32 v17, v3, 4, v17")
    A.e("s_lshl_b32 s33, s27, 4")
    A.e("v_add_u32 v18, s33, v3")
    A.e("v_lshlrev_b32 v19, 2, v4")
    A.e("v_sub_u32 v18, v18, v19")
    for kt in range(2):
        for r in range(4):
            A.e(f"v_cmp_le_i32 s[{40+2*(4*kt+r)}:{41+2*(4*kt+r)}], {16*kt+r}, v18")
    A.e(f"s_mov_b32 s56, {hex(CSCALE)}")
    A.e(f"s_mov_b32 s57, {hex(CSCALE)}")
    A.e(f"v_mov_b32 v18, {fbits(-1e30)}")
    A.e("v_mov_b32 v21, 0                        ; [PM,0] = v[20:21]")
    A.e("v_mov_b32 v22, 0                        ; [0,PM] = v[22:23]")
    wait_qkv, wait_km = cfg["wait_qkv"], cfg["wait_km"]
    def issue_qkv(seg, vsbuf):
        A.e(f"s_lshl_b32 s33, s{seg}, 5")
        A.e("s_add_u32 s33, s33, s24")
        A.e("s_lshl_b32 s34, s33, 13")
        A.e(f"s_add_u32 s35, s34, {hex(WS_KX)}")
        A.e("s_add_u32 s36, s35, 4096")
        for kt in range(2):
            for ks in range(4):
                A.e(f"buffer_load_dwordx4 v[{128+16*kt+4*ks}:{131+16*kt+4*ks}], v8, {WSRD}, s{35+kt} offen offset:{64*ks} sc1")
        A.e("s_lshl_b32 s37, s27, 12")
        A.e("s_add_u32 s37, s37, s34")
        A.e(f"s_add_u32 s37, s37, {hex(WS_QX)}")
        for ks in range(4):
            A.e(f"buffer_load_dwordx4 v[{160+4*ks}:{163+4*ks}], v8, {WSRD}, s37 offen offset:{64*ks} sc1")
        A.e("s_lshl_b32 s39, s25, 11")
        A.e("s_add_u32 s35, s34, s39")
        A.e(f"s_add_u32 s35, s35, {hex(WS_VX)}")
        A.e(f"s_add_u32 s39, s39, s{vsbuf}")
        A.e("s_mov_b32 m0, s39")
        A.e("s_nop 0")
        A.e(f"buffer_load_dwordx4 v13, {WSRD}, s35 offen sc1 lds")
        A.e("s_add_u32 s35, s35, 1024")
        A.e("s_add_u32 m0, s39, 1024")
        A.e("s_nop 0")
        A.e(f"buffer_load_dwordx4 v14, {WSRD}, s35 offen sc1 lds")
    A.e(f"s_mov_b32 s29, {VS}")
    wait_qkv(A, 26)
    issue_qkv(26, 29)
    A.label(f"{L}_loop")
    A.e("s_waitcnt vmcnt(0)")
    for ks in range(4):
        for kt in range(2):
            c = "0" if ks == 0 else f"v[{96+4*kt}:{99+4*kt}]"
            A.e(f"v_mfma_f32_16x16x32_bf16 v[{96+4*kt}:{99+4*kt}], v[{128+16*kt+4*ks}:{131+16*kt+4*ks}], v[{160+4*ks}:{163+4*ks}], {c}")
    for j in range(8):
        A.e(f"v_mov_b64 v[{64+2*j}:{65+2*j}], v[{160+2*j}:{161+2*j}]")
    wait_km(A, 26)
    A.e("s_lshl_b32 s33, s26, 5")
    A.e("s_add_u32 s33, s33, s24")
    A.e("s_lshl_b32 s38, s33, 12")
    A.e(f"s_add_u32 s38, s38, {hex(WS_KMVM)}")
    A.e("s_lshl_b32 s39, s25, 10")
    A.e("s_add_u32 s39, s39, s38")
    A.e(f"buffer_load_dwordx2 v[24:25], v7, {WSRD}, s39 offen sc1")
    A.e("s_lshl_b32 s39, s28, 11")
    A.e("s_add_u32 s39, s39, s38")
    A.e(f"buffer_load_dwordx2 v[26:27], v7, {WSRD}, s39 offen offset:8 sc1")
    A.e(f"buffer_load_dwordx2 v[28:29], v7, {WSRD}, s39 offen offset:1032 sc1")
    for kt in range(2):
        for r in range(4):
            A.e(f"v_cndmask_b32 v{96+4*kt+r}, v18, v{96+4*kt+r}, s[{40+2*(4*kt+r)}:{41+2*(4*kt+r)}]")
    A.e("s_waitcnt vmcnt(2)")
    A.e("ds_write2st64_b32 v9, v24, v25 offset0:0 offset1:2")
    A.e("s_waitcnt lgkmcnt(0)")
    A.e("s_barrier")
    for ks in range(4):
        A.e(f"ds_read_b64_tr_b16 v[{80+4*ks}:{81+4*ks}], v10 offset:{1024*ks}")
        A.e(f"ds_read_b64_tr_b16 v[{82+4*ks}:{83+4*ks}], v11 offset:{1024*ks}")
    A.e("v_add_u32 v19, s29, v12")
    for tp in range(4):
        if tp: A.e(f"v_xor_b32 v30, {tp << 5}, v19")
        ad = 19 if tp == 0 else 30
        if tp == 3: A.e("s_waitcnt lgkmcnt(6)")
        for kt in range(2):
            A.e(f"ds_read_b64_tr_b16 v[{32+4*tp+2*kt}:{33+4*tp+2*kt}], v{ad} offset:{4096*kt}")
    A.e("s_waitcnt lgkmcnt(8)")
    for ks in range(4):
        c = "0" if ks == 0 else "v[104:107]"
        A.e(f"v_mfma_f32_16x16x32_bf16 v[104:107], v[{80+4*ks}:{83+4*ks}], v[{64+4*ks}:{67+4*ks}], {c}")
    A.e(f"s_add_u32 s31, s26, {seg_stride}")
    A.e("s_cmp_ge_u32 s31, 64")
    A.e(f"s_cbranch_scc1 {L}_nopre")
    A.e("s_waitcnt vmcnt(0)")
    wait_qkv(A, 31)
    A.e(f"s_xor_b32 s30, s29, {VS1}")
    issue_qkv(31, 30)
    A.label(f"{L}_nopre")
    A.e("s_nop 3")
    A.e("v_max3_f32 v48, v96, v97, v98")
    A.e("v_max3_f32 v49, v99, v100, v101")
    A.e("v_max3_f32 v48, v48, v102, v103")
    A.e("v_max3_f32 v49, v49, v104, v105")
    A.e("v_max_f32 v50, v48, v49")
    A.e("v_max_f32 v51, v48, v49")
    A.e("s_nop 1")
    A.e("v_permlane32_swap_b32 v50, v51")
    A.e("v_max_f32 v48, v50, v51")
    A.e("v_max_f32 v49, v50, v51")
    A.e("s_nop 1")
    A.e("v_permlane16_swap_b32 v48, v49")
    A.e("v_max_f32 v48, v48, v49")
    A.e("v_mul_f32 v48, s56, v48")
    for j in range(5):
        A.e(f"v_pk_fma_f32 v[{96+2*j}:{97+2*j}], v[{96+2*j}:{97+2*j}], s[56:57], v[48:49] op_sel_hi:[1,1,0] neg_lo:[0,0,1] neg_hi:[0,0,1]")
    for j in range(10):
        A.e(f"v_exp_f32 v{96+j}, v{96+j}")
    A.e("s_nop 0")
    for j in range(4):
        A.e(f"v_cvt_pk_bf16_f32 v{48+j}, v{96+2*j}, v{97+2*j}")
    A.e("v_cvt_pk_bf16_f32 v20, v104, v105")
    A.e("v_cvt_pk_bf16_f32 v23, v104, v105")
    A.e("s_waitcnt lgkmcnt(0)")
    A.e("s_nop 0")
    for tp in range(4):
        A.e(f"v_mfma_f32_16x16x32_bf16 v[{64+4*tp}:{67+4*tp}], v[{32+4*tp}:{35+4*tp}], v[48:51], 0")
    for tp in range(4):
        vp = 26 + 2 * (tp >> 1)
        pm = 20 if tp % 2 == 0 else 22
        A.e(f"v_mfma_f32_16x16x16_bf16 v[{64+4*tp}:{67+4*tp}], v[{vp}:{vp+1}], v[{pm}:{pm+1}], v[{64+4*tp}:{67+4*tp}]")
    A.e("v_pk_add_f32 v[52:53], v[96:97], v[98:99]")
    A.e("v_pk_add_f32 v[54:55], v[100:101], v[102:103]")
    A.e("v_pk_add_f32 v[52:53], v[52:53], v[104:105]")
    A.e("v_pk_add_f32 v[52:53], v[52:53], v[54:55]")
    A.e("v_add_f32 v54, v52, v53")
    A.e("v_add_f32 v55, v52, v53")
    A.e("s_nop 1")
    A.e("v_permlane32_swap_b32 v54, v55")
    A.e("v_add_f32 v52, v54, v55")
    A.e("v_add_f32 v53, v54, v55")
    A.e("s_nop 1")
    A.e("v_permlane16_swap_b32 v52, v53")
    A.e("v_add_f32 v52, v52, v53")
    A.e("v_rcp_f32 v52, v52")
    A.e("s_nop 3")
    for j in range(8):
        A.e(f"v_pk_mul_f32 v[{64+2*j}:{65+2*j}], v[{64+2*j}:{65+2*j}], v[52:53] op_sel_hi:[1,0]")
    for j in range(8):
        A.e(f"v_cvt_pk_bf16_f32 v{80+j}, v{64+2*j}, v{65+2*j}")
    for tp in range(4):
        A.e(f"ds_write_b64 v15, v[{80+2*tp}:{81+2*tp}] offset:{32*tp}")
    A.e("s_waitcnt lgkmcnt(0)")
    A.e("s_barrier")
    A.e("ds_read_b128 v[32:35], v16")
    A.e(f"ds_read_b128 v[36:39], v16 offset:{4*ORS}")
    A.e("s_lshl_b32 s33, s26, 18                 ; s*32 rows*8192")
    A.e("s_lshl_b32 s34, s24, 8")
    A.e("s_add_u32 s33, s33, s34")
    A.e(f"s_add_u32 s33, s33, {hex(WS_O)}")
    A.e("s_add_u32 s34, s33, 0x8000")
    A.e("s_waitcnt lgkmcnt(0)")
    A.e(f"buffer_store_dwordx4 v[32:35], v17, {WSRD}, s33 offen sc1")
    A.e(f"buffer_store_dwordx4 v[36:39], v17, {WSRD}, s34 offen sc1")
    if cfg.get("signal"): cfg["signal"](A, L)
    A.e(f"s_xor_b32 s29, s29, {VS1}")
    A.e(f"s_add_u32 s26, s26, {seg_stride}")
    A.e("s_cmp_lt_u32 s26, 64")
    A.e(f"s_cbranch_scc1 {L}_loop")
    A.e("s_waitcnt vmcnt(0)")

def gen_wo(A, L, cfg):
    seg_stride = cfg["seg_stride"]
    RS = 2064; BUF1 = 32 * RS; OST = 2 * BUF1; ORS = 272; BUFX = BUF1
    A.e("s_cmp_ge_u32 s26, 64")
    A.e(f"s_cbranch_scc1 {L}_exit")
    A.e("s_lshr_b32 s27, s24, 3                  ; kq")
    A.e("s_and_b32 s28, s24, 7                   ; nb")
    A.e("s_and_b32 s37, s25, 1                   ; nh")
    A.e("s_lshr_b32 s38, s25, 1                  ; kh")
    A.e("s_lshl_b32 s29, s27, 20")
    A.e("s_lshl_b32 s33, s38, 19")
    A.e("s_add_u32 s29, s29, s33")
    A.e("s_lshl_b32 s33, s28, 7")
    A.e("s_add_u32 s29, s29, s33")
    A.e("s_lshl_b32 s33, s37, 6")
    A.e("s_add_u32 s29, s29, s33")
    A.e("s_lshl_b32 s30, s25, 15")
    load_weights_32col(A, 4, 29, 1024, 32, 30, 0, 8)
    A.e("s_barrier")
    A.e("v_lshlrev_b32 v3, 4, v2")
    A.e("v_and_b32 v4, 31, v2")
    A.e(f"s_movk_i32 s33, {RS}")
    A.e("v_mul_lo_u32 v4, v4, s33")
    A.e("v_lshrrev_b32 v5, 5, v2                 ; hi")
    A.e("v_lshl_add_u32 v4, v5, 4, v4")
    A.e("s_lshl_b32 s33, s38, 10")
    A.e("v_add_u32 v4, s33, v4")
    A.e("v_and_b32 v6, 31, v2")
    A.e(f"s_movk_i32 s33, {ORS}")
    A.e("v_mul_lo_u32 v6, v6, s33")
    A.e("v_lshl_add_u32 v6, v5, 4, v6")
    A.e(f"s_mul_i32 s33, s38, {32*ORS}")
    A.e("s_lshl_b32 s34, s37, 7")
    A.e("s_add_u32 s33, s33, s34")
    A.e(f"s_add_u32 s33, s33, {OST}")
    A.e("v_add_u32 v6, s33, v6")
    A.e("v_lshrrev_b32 v7, 4, v2")
    A.e("s_lshl_b32 s33, s25, 3")
    A.e("v_add_u32 v7, s33, v7")
    A.e("v_and_b32 v8, 15, v2")
    A.e(f"s_movk_i32 s33, {ORS}")
    A.e("v_mul_lo_u32 v9, v7, s33")
    A.e("v_lshl_add_u32 v9, v8, 4, v9")
    A.e(f"v_add_u32 v9, {OST}, v9")
    A.e("v_lshlrev_b32 v10, 11, v7               ; row*2048")
    A.e("v_lshl_add_u32 v10, v8, 4, v10")
    def dma(buf_s):
        A.e("s_lshl_b32 s33, s31, 5")
        A.e("s_lshl_b32 s34, s25, 3")
        A.e("s_add_u32 s33, s33, s34")
        A.e("s_lshl_b32 s33, s33, 13             ; row*8192")
        A.e("s_lshl_b32 s39, s27, 11")
        A.e("s_add_u32 s33, s33, s39")
        A.e(f"s_add_u32 s33, s33, {hex(WS_O)}")
        A.e(f"s_mul_i32 s34, s34, {RS}")
        A.e(f"s_add_u32 s34, s34, s{buf_s}")
        for r in range(8):
            for hh in range(2):
                A.e(f"s_add_u32 m0, s34, {r*RS + hh*1024}")
                A.e(f"s_add_u32 s39, s33, {r*8192 + hh*1024}")
                A.e(f"buffer_load_dwordx4 v3, {WSRD}, s39 offen sc1 lds")
    A.e("s_mov_b32 s35, 0")
    A.e("s_mov_b32 s31, s26")
    if cfg.get("wait_in"): cfg["wait_in"](A, 31)
    dma(35)
    A.e("s_mov_b32 s57, 1")
    A.label(f"{L}_loop")
    A.e("s_cmp_eq_u32 s57, 1")
    A.e(f"s_cbranch_scc1 {L}_have")
    A.e("s_mov_b32 s31, s26")
    if cfg.get("wait_in"): cfg["wait_in"](A, 31)
    dma(35)
    A.label(f"{L}_have")
    A.e("s_waitcnt vmcnt(0)")
    A.e("s_barrier")
    A.e(f"s_xor_b32 s36, s35, {BUFX}")
    A.e(f"s_add_u32 s31, s26, {seg_stride}")
    A.e("s_mov_b32 s57, 0")
    A.e("s_cmp_ge_u32 s31, 64")
    A.e(f"s_cbranch_scc1 {L}_nodma")
    if cfg.get("try_in"):
        cfg["try_in"](A, 31)
        A.e(f"s_cbranch_scc0 {L}_nodma")
    A.e("s_mov_b32 s57, 1")
    dma(36)
    A.label(f"{L}_nodma")
    A.e("v_add_u32 v11, s35, v4")
    for ks in range(4):
        A.e(f"ds_read_b128 v[{32+4*ks}:{35+4*ks}], v11 offset:{ks*32}")
    for ks in range(32):
        A.e(f"s_waitcnt lgkmcnt({min(3, 31-ks)})")
        c = "0" if ks == 0 else "v[16:31]"
        b = 32 + 4 * (ks % 5)
        A.e(f"v_mfma_f32_32x32x16_bf16 v[16:31], a[{4*ks}:{4*ks+3}], v[{b}:{b+3}], {c}")
        if ks + 4 < 32:
            b2 = 32 + 4 * ((ks + 4) % 5)
            A.e(f"ds_read_b128 v[{b2}:{b2+3}], v11 offset:{(ks+4)*32}")
    A.e("s_nop 7")
    A.e("s_nop 4")
    for q in range(4):
        A.e(f"ds_write_b128 v6, v[{16+4*q}:{19+4*q}] offset:{32*q}")
    A.e("s_waitcnt lgkmcnt(0)")
    A.e("s_barrier")
    A.e("ds_read_b128 v[32:35], v9")
    A.e(f"ds_read_b128 v[36:39], v9 offset:{32*ORS}")
    A.e(f"ds_read_b128 v[40:43], v9 offset:{4*ORS}")
    A.e(f"ds_read_b128 v[44:47], v9 offset:{36*ORS}")
    A.e("s_lshl_b32 s33, s27, 22")
    A.e("s_lshl_b32 s34, s26, 16")
    A.e("s_add_u32 s33, s33, s34")
    A.e("s_lshl_b32 s34, s28, 8")
    A.e("s_add_u32 s33, s33, s34")
    A.e(f"s_add_u32 s33, s33, {hex(WS_PART)}")
    A.e("s_add_u32 s34, s33, 8192")
    A.e("s_waitcnt lgkmcnt(0)")
    A.e("v_pk_add_f32 v[32:33], v[32:33], v[36:37]")
    A.e("v_pk_add_f32 v[34:35], v[34:35], v[38:39]")
    A.e("v_pk_add_f32 v[40:41], v[40:41], v[44:45]")
    A.e("v_pk_add_f32 v[42:43], v[42:43], v[46:47]")
    A.e(f"buffer_store_dwordx4 v[32:35], v10, {WSRD}, s33 offen sc1")
    A.e(f"buffer_store_dwordx4 v[40:43], v10, {WSRD}, s34 offen sc1")
    if cfg.get("signal"): cfg["signal"](A, L)
    A.e("s_mov_b32 s35, s36")
    A.e(f"s_add_u32 s26, s26, {seg_stride}")
    A.e("s_cmp_lt_u32 s26, 64")
    A.e(f"s_cbranch_scc1 {L}_loop")
    A.e("s_waitcnt vmcnt(0)")

def gen_red(A, L, cfg):
    st = cfg["grp_stride"]
    A.e("s_cmp_ge_u32 s26, 512")
    A.e(f"s_cbranch_scc1 {L}_exit")
    A.e("v_lshlrev_b32 v3, 4, v2                 ; l*16")
    A.e("v_lshlrev_b32 v4, 5, v2                 ; l*32")
    A.label(f"{L}_loop")
    if cfg.get("wait_in"): cfg["wait_in"](A, 26)
    A.e("s_lshl_b32 s27, s26, 2")
    A.e("s_add_u32 s27, s27, s25                 ; row")
    A.e("s_lshl_b32 s28, s27, 10")
    A.e("buffer_load_dwordx4 v[8:11], v3, s[4:7], s28 offen")
    A.e("s_lshl_b32 s29, s27, 11")
    A.e(f"s_add_u32 s29, s29, {hex(WS_PART)}")
    for kq in range(4):
        A.e(f"buffer_load_dwordx4 v[{16+8*kq}:{19+8*kq}], v4, {WSRD}, s29 offen sc1")
        A.e(f"buffer_load_dwordx4 v[{20+8*kq}:{23+8*kq}], v4, {WSRD}, s29 offen offset:16 sc1")
        if kq < 3: A.e("s_add_u32 s29, s29, 0x400000")
    A.e("s_waitcnt vmcnt(0)")
    for j in range(4):
        A.e(f"v_pk_add_f32 v[{16+2*j}:{17+2*j}], v[{16+2*j}:{17+2*j}], v[{24+2*j}:{25+2*j}]")
        A.e(f"v_pk_add_f32 v[{32+2*j}:{33+2*j}], v[{32+2*j}:{33+2*j}], v[{40+2*j}:{41+2*j}]")
    for j in range(4):
        A.e(f"v_pk_add_f32 v[{16+2*j}:{17+2*j}], v[{16+2*j}:{17+2*j}], v[{32+2*j}:{33+2*j}]")
    for j in range(4):
        A.e(f"v_cvt_pk_bf16_f32 v{24+j}, v{16+2*j}, v{17+2*j}")
    unpack8(A, 24, 32)
    unpack8(A, 8, 40)
    for j in range(4):
        A.e(f"v_pk_add_f32 v[{32+2*j}:{33+2*j}], v[{32+2*j}:{33+2*j}], v[{40+2*j}:{41+2*j}]")
    for j in range(4):
        A.e(f"v_cvt_pk_bf16_f32 v{24+j}, v{32+2*j}, v{33+2*j}")
    A.e(f"s_add_u32 s29, s28, {hex(WS_H)}")
    A.e(f"buffer_store_dwordx4 v[24:27], v3, {WSRD}, s29 offen sc1")
    unpack8(A, 24, 32)
    layernorm8(A, 32, 12, 48)
    A.e(f"s_add_u32 s29, s28, {hex(WS_HN)}")
    A.e(f"buffer_store_dwordx4 v[12:15], v3, {WSRD}, s29 offen sc1")
    if cfg.get("signal"): cfg["signal"](A, L)
    A.e(f"s_add_u32 s26, s26, {st}")
    A.e("s_cmp_lt_u32 s26, 512")
    A.e(f"s_cbranch_scc1 {L}_loop")
    A.e("s_waitcnt vmcnt(0)")

def gen_ffn2(A, L, cfg):
    seg_stride = cfg["seg_stride"]
    RS = 912; WB = 32 * RS; OST = 4 * WB; ORS = 144
    A.e("s_cmp_ge_u32 s26, 64")
    A.e(f"s_cbranch_scc1 {L}_exit")
    A.e("s_mul_i32 s29, s25, %d" % (448 * 1024))
    A.e("s_lshl_b32 s33, s24, 6")
    A.e("s_add_u32 s29, s29, s33")
    A.e("s_mul_i32 s30, s25, %d" % WB)
    load_weights_32col(A, 4, 29, 1024, 28, 30, 0, 8)
    A.e("s_barrier")
    A.e("v_lshlrev_b32 v3, 4, v2")
    A.e("v_and_b32 v4, 31, v2")
    A.e(f"s_movk_i32 s33, {RS}")
    A.e("v_mul_lo_u32 v4, v4, s33")
    A.e("v_lshrrev_b32 v5, 5, v2")
    A.e("v_lshl_add_u32 v4, v5, 4, v4")
    A.e("v_add_u32 v4, s30, v4")
    A.e("v_and_b32 v6, 31, v2")
    A.e(f"s_movk_i32 s33, {ORS}")
    A.e("v_mul_lo_u32 v6, v6, s33")
    A.e("v_lshl_add_u32 v6, v5, 4, v6")
    A.e(f"s_mul_i32 s33, s25, {32*ORS}")
    A.e(f"s_add_u32 s33, s33, {OST}")
    A.e("v_add_u32 v6, s33, v6")
    A.e("v_lshrrev_b32 v7, 3, v0")
    A.e("v_and_b32 v8, 7, v0")
    A.e(f"s_movk_i32 s33, {ORS}")
    A.e("v_mul_lo_u32 v9, v7, s33")
    A.e("v_lshl_add_u32 v9, v8, 4, v9")
    A.e(f"v_add_u32 v9, {OST}, v9")
    A.e("v_lshlrev_b32 v10, 10, v7")
    A.e("v_lshl_add_u32 v10, v8, 3, v10")
    A.label(f"{L}_loop")
    if cfg.get("wait_in"): cfg["wait_in"](A, 26)
    A.e("s_mul_i32 s33, s26, %d" % (32 * 3584))
    A.e("s_mul_i32 s34, s25, 896")
    A.e("s_add_u32 s33, s33, s34")
    A.e(f"s_add_u32 s33, s33, {hex(WS_A1)}")
    A.e("s_mov_b32 exec_hi, 0x00ffffff")
    for r in range(32):
        A.e(f"s_add_u32 m0, s30, {r*RS}")
        if r: A.e("s_add_u32 s33, s33, 3584")
        else: A.e("s_nop 0")
        A.e(f"buffer_load_dwordx4 v3, {WSRD}, s33 offen sc1 lds")
    A.e("s_mov_b32 exec_hi, -1")
    A.e("s_lshl_b32 s34, s26, 15")
    A.e("s_lshl_b32 s35, s24, 6")
    A.e("s_add_u32 s34, s34, s35")
    A.e(f"s_add_u32 s35, s34, {hex(WS_H)}")
    A.e(f"buffer_load_dwordx2 v[12:13], v10, {WSRD}, s35 offen sc1")
    A.e("s_waitcnt vmcnt(0)")
    for ks in range(4):
        A.e(f"ds_read_b128 v[{32+4*ks}:{35+4*ks}], v4 offset:{ks*32}")
    for ks in range(28):
        A.e(f"s_waitcnt lgkmcnt({min(3, 27-ks)})")
        c = "0" if ks == 0 else "v[16:31]"
        b = 32 + 4 * (ks % 5)
        A.e(f"v_mfma_f32_32x32x16_bf16 v[16:31], a[{4*ks}:{4*ks+3}], v[{b}:{b+3}], {c}")
        if ks + 4 < 28:
            b2 = 32 + 4 * ((ks + 4) % 5)
            A.e(f"ds_read_b128 v[{b2}:{b2+3}], v4 offset:{(ks+4)*32}")
    A.e("s_nop 7")
    A.e("s_nop 4")
    for q in range(4):
        A.e(f"ds_write_b128 v6, v[{16+4*q}:{19+4*q}] offset:{32*q}")
    A.e("s_waitcnt lgkmcnt(0)")
    A.e("s_barrier")
    for w in range(4):
        A.e(f"ds_read_b128 v[{32+4*w}:{35+4*w}], v9 offset:{w*32*ORS}")
    A.e("s_waitcnt lgkmcnt(0)")
    for j in range(2):
        A.e(f"v_pk_add_f32 v[{32+2*j}:{33+2*j}], v[{32+2*j}:{33+2*j}], v[{36+2*j}:{37+2*j}]")
        A.e(f"v_pk_add_f32 v[{40+2*j}:{41+2*j}], v[{40+2*j}:{41+2*j}], v[{44+2*j}:{45+2*j}]")
    for j in range(2):
        A.e(f"v_pk_add_f32 v[{32+2*j}:{33+2*j}], v[{32+2*j}:{33+2*j}], v[{40+2*j}:{41+2*j}]")
    A.e("v_cvt_pk_bf16_f32 v36, v32, v33")
    A.e("v_cvt_pk_bf16_f32 v37, v34, v35")
    for j in range(2):
        A.e(f"v_lshlrev_b32 v{32+2*j}, 16, v{36+j}")
        A.e(f"v_and_b32 v{33+2*j}, 0xffff0000, v{36+j}")
        A.e(f"v_lshlrev_b32 v{40+2*j}, 16, v{12+j}")
        A.e(f"v_and_b32 v{41+2*j}, 0xffff0000, v{12+j}")
    A.e("v_pk_add_f32 v[32:33], v[32:33], v[40:41]")
    A.e("v_pk_add_f32 v[34:35], v[34:35], v[42:43]")
    A.e("v_cvt_pk_bf16_f32 v36, v32, v33")
    A.e("v_cvt_pk_bf16_f32 v37, v34, v35")
    A.e("buffer_store_dwordx2 v[36:37], v10, s[8:11], s34 offen")
    if cfg.get("signal"): cfg["signal"](A, L)
    A.e("s_barrier")
    A.e(f"s_add_u32 s26, s26, {seg_stride}")
    A.e("s_cmp_lt_u32 s26, 64")
    A.e(f"s_cbranch_scc1 {L}_loop")
    A.e("s_waitcnt vmcnt(0)")

SPIN_W = 3000000
def make_wait(voff, nlanes, shift=0, vtmp=126):
    def w(A, sreg):
        lab = A.new_label("Lw")
        if shift: A.e(f"s_lshr_b32 s60, s{sreg}, {shift}")
        else: A.e(f"s_mov_b32 s60, s{sreg}")
        A.e("s_lshl_b32 s60, s60, 11")
        A.e(f"s_add_u32 s60, s60, {hex(WS_FLAG)}")
        A.e("s_mov_b32 s61, 0")
        A.label(lab)
        A.e(f"buffer_load_dword v{vtmp}, v{voff}, {WSRD}, s60 offen sc1")
        A.e("s_add_u32 s61, s61, 1")
        A.e(f"s_cmp_gt_u32 s61, {SPIN_W}")
        A.e("s_cbranch_scc1 L_fail")
        A.e("s_waitcnt vmcnt(0)")
        A.e(f"v_cmp_eq_u32 vcc, 0, v{vtmp}")
        mask = (1 << nlanes) - 1
        A.e(f"s_and_b32 vcc_lo, vcc_lo, {hex(mask)}")
        A.e(f"s_cbranch_scc0 {lab}_ok")
        A.e("s_sleep 1")
        A.e(f"s_branch {lab}")
        A.label(f"{lab}_ok")
    return w

def make_signal(seg_sreg, word_sreg, word_base, shift=0, vzero=127, barrier_after=False):
    def sig(A, L):
        lab = A.new_label("Ls")
        A.e("s_waitcnt vmcnt(0)")
        A.e("s_barrier")
        A.e("s_cmp_lg_u32 s25, 0")
        A.e(f"s_cbranch_scc1 {lab}")
        if shift: A.e(f"s_lshr_b32 s60, s{seg_sreg}, {shift}")
        else: A.e(f"s_mov_b32 s60, s{seg_sreg}")
        A.e("s_lshl_b32 s60, s60, 11")
        A.e(f"s_lshl_b32 s61, s{word_sreg}, 2")
        A.e("s_add_u32 s60, s60, s61")
        A.e(f"s_add_u32 s60, s60, {hex(WS_FLAG + 4*word_base)}")
        A.e(f"v_mov_b32 v{vzero}, 0")
        A.e(f"v_mov_b32 v{vzero-2}, 1")
        A.e("s_mov_b64 exec, 1")
        A.e(f"buffer_store_dword v{vzero-2}, v{vzero}, {WSRD}, s60 offen sc1")
        A.e("s_mov_b64 exec, -1")
        A.label(lab)
    return sig

def trace(A, slot, seg_sreg, cond_sreg=None):
    lab = A.new_label("Lt")
    A.e("s_cmp_lg_u32 s25, 0")
    A.e(f"s_cbranch_scc1 {lab}")
    if cond_sreg is not None:
        A.e(f"s_cmp_lg_u32 s{cond_sreg}, 0")
        A.e(f"s_cbranch_scc1 {lab}")
    A.e("s_memrealtime s[60:61]")
    A.e(f"s_lshl_b32 s58, s{seg_sreg}, 2")
    A.e(f"s_add_u32 s58, s58, {hex(WS_TRACE + slot * 4096)}")
    A.e("s_waitcnt lgkmcnt(0)")
    A.e("v_mov_b32 v125, s60")
    A.e("v_mov_b32 v127, 0")
    A.e("s_mov_b64 exec, 1")
    A.e(f"buffer_store_dword v125, v127, {WSRD}, s58 offen")
    A.e("s_mov_b64 exec, -1")
    A.label(lab)

def make_try(voff, nlanes, vtmp=126):
    def t(A, sreg):
        A.e(f"s_lshl_b32 s60, s{sreg}, 11")
        A.e(f"s_add_u32 s60, s60, {hex(WS_FLAG)}")
        A.e(f"buffer_load_dword v{vtmp}, v{voff}, {WSRD}, s60 offen sc1")
        A.e("s_waitcnt vmcnt(0)")
        A.e(f"v_cmp_eq_u32 vcc, 0, v{vtmp}")
        A.e(f"s_and_b32 vcc_lo, vcc_lo, {hex((1 << nlanes) - 1)}")
        A.e("s_cselect_b32 s61, 0, 1")
        A.e("s_cmp_eq_u32 s61, 1")
    return t

def flag_store(A, seg_expr_sreg, word_sreg, word_base, shift=0, add=0):
    lab = A.new_label("Lf")
    A.e("s_cmp_lg_u32 s25, 0")
    A.e(f"s_cbranch_scc1 {lab}")
    if shift: A.e(f"s_lshr_b32 s60, s{seg_expr_sreg}, {shift}")
    else: A.e(f"s_mov_b32 s60, s{seg_expr_sreg}")
    A.e("s_lshl_b32 s60, s60, 11")
    A.e(f"s_lshl_b32 s61, s{word_sreg}, 2")
    A.e("s_add_u32 s60, s60, s61")
    A.e(f"s_add_u32 s60, s60, {hex(WS_FLAG + 4*(word_base + add))}")
    A.e("v_mov_b32 v127, 0")
    A.e("v_mov_b32 v125, 1")
    A.e("s_mov_b64 exec, 1")
    A.e(f"buffer_store_dword v125, v127, {WSRD}, s60 offen sc1")
    A.e("s_mov_b64 exec, -1")
    A.label(lab)

def gen_proj2(A, L, cfg):
    BUF1 = 33280; OST = 66560; ORS = 272; OST1 = OST + 32 * ORS
    seg_stride = cfg["seg_stride"]; ws = cfg["wstride"]
    A.e("s_cmp_ge_u32 s26, 64")
    A.e(f"s_cbranch_scc1 {L}_exit")
    for t in range(2):
        A.e("s_lshl_b32 s29, s25, 6")
        A.e(f"s_add_u32 s29, s29, s{cfg['col'][t]}")
        A.e("s_lshl_b32 s30, s25, 15")
        load_weights_32col(A, 4 + 4 * t, 29, ws, 32, 30, 128 * t, 8)
    A.e("s_barrier")
    A.e("v_lshlrev_b32 v3, 4, v2")
    A.e("v_and_b32 v4, 31, v2")
    A.e("s_movk_i32 s33, 1040")
    A.e("v_mul_lo_u32 v4, v4, s33")
    A.e("v_lshrrev_b32 v5, 5, v2")
    A.e("v_lshl_add_u32 v4, v5, 4, v4")
    A.e("v_and_b32 v6, 31, v2")
    A.e(f"s_movk_i32 s33, {ORS}")
    A.e("v_mul_lo_u32 v6, v6, s33")
    A.e("v_lshl_add_u32 v6, v5, 3, v6")
    A.e("s_lshl_b32 s33, s25, 6")
    A.e(f"s_add_u32 s33, s33, {OST}")
    A.e("v_add_u32 v6, s33, v6")
    A.e("v_lshrrev_b32 v7, 4, v2")
    A.e("s_lshl_b32 s33, s25, 3")
    A.e("v_add_u32 v7, s33, v7")
    A.e("v_and_b32 v8, 15, v2")
    A.e(f"s_movk_i32 s33, {ORS}")
    A.e("v_mul_lo_u32 v9, v7, s33")
    A.e("v_lshl_add_u32 v9, v8, 4, v9")
    A.e(f"v_add_u32 v9, {OST}, v9")
    A.e(f"s_mov_b32 s33, {cfg['out_row']}")
    A.e("v_mul_lo_u32 v10, v7, s33")
    A.e("v_lshl_add_u32 v10, v8, 4, v10")
    def dma(buf_s):
        A.e("s_lshl_b32 s33, s31, 5")
        A.e("s_lshl_b32 s34, s25, 3")
        A.e("s_add_u32 s33, s33, s34")
        A.e("s_lshl_b32 s33, s33, 10")
        A.e(f"s_add_u32 s33, s33, {hex(cfg['a_base'])}")
        A.e("s_mul_i32 s34, s34, 1040")
        A.e(f"s_add_u32 s34, s34, s{buf_s}")
        for r in range(8):
            A.e(f"s_add_u32 m0, s34, {r*1040}")
            if r: A.e("s_add_u32 s33, s33, 1024")
            else: A.e("s_nop 0")
            A.e(f"buffer_load_dwordx4 v3, {WSRD}, s33 offen lds")
    A.e("s_mov_b32 s35, 0")
    A.e("s_mov_b32 s31, s26")
    A.e("s_mov_b32 s37, -1")
    dma(35)
    A.e("s_waitcnt vmcnt(0)")
    A.label(f"{L}_loop")
    A.e("s_waitcnt vmcnt(4)")
    A.e("s_barrier")
    A.e(f"s_xor_b32 s36, s35, {BUF1}")
    A.e(f"s_add_u32 s31, s26, {seg_stride}")
    A.e("s_min_u32 s31, s31, 63")
    dma(36)
    A.e("v_add_u32 v11, s35, v4")
    for ks in range(4):
        A.e(f"ds_read_b128 v[{32+4*ks}:{35+4*ks}], v11 offset:{ks*32}")
    for ks in range(32):
        A.e(f"s_waitcnt lgkmcnt({min(3, 31-ks)})")
        b = 32 + 4 * (ks % 5)
        for t in range(2):
            c = "0" if ks == 0 else f"v[{64+16*t}:{79+16*t}]"
            A.e(f"v_mfma_f32_32x32x16_bf16 v[{64+16*t}:{79+16*t}], a[{128*t+4*ks}:{128*t+4*ks+3}], v[{b}:{b+3}], {c}")
            if t == 0 and ks + 4 < 32:
                b2 = 32 + 4 * ((ks + 4) % 5)
                A.e(f"ds_read_b128 v[{b2}:{b2+3}], v11 offset:{(ks+4)*32}")
    A.e("s_waitcnt vmcnt(8)")
    A.e("s_nop 7")
    A.e("s_nop 3")
    for t in range(2):
        pk = 96 + 8 * t
        for j in range(8):
            A.e(f"v_cvt_pk_bf16_f32 v{pk+j}, v{64+16*t+2*j}, v{65+16*t+2*j}")
        for q in range(4):
            A.e(f"ds_write_b64 v6, v[{pk+2*q}:{pk+1+2*q}] offset:{16*q + t*32*ORS}")
    A.e("s_waitcnt lgkmcnt(0)")
    A.e("s_barrier")
    lab = A.new_label("Lp")
    A.e("s_cmp_eq_u32 s37, -1")
    A.e(f"s_cbranch_scc1 {lab}")
    for t in range(2): flag_store(A, 37, cfg['word'][t], cfg['wbase'][t])
    if cfg.get("trace"): cfg["trace"](A, 37)
    A.label(lab)
    for t in range(2):
        A.e(f"ds_read_b128 v[{32+8*t}:{35+8*t}], v9 offset:{t*32*ORS}")
        A.e(f"ds_read_b128 v[{36+8*t}:{39+8*t}], v9 offset:{4*ORS + t*32*ORS}")
    A.e("s_waitcnt lgkmcnt(0)")
    for t in range(2):
        A.e(f"s_mul_i32 s33, s26, {cfg['out_seg']}")
        A.e(f"s_add_u32 s33, s33, s{cfg['out'][t]}")
        A.e(f"s_add_u32 s34, s33, {4*cfg['out_row']}")
        A.e(f"buffer_store_dwordx4 v[{32+8*t}:{35+8*t}], v10, {WSRD}, s33 offen sc1")
        A.e(f"buffer_store_dwordx4 v[{36+8*t}:{39+8*t}], v10, {WSRD}, s34 offen sc1")
    A.e("s_mov_b32 s37, s26")
    A.e("s_mov_b32 s35, s36")
    A.e(f"s_add_u32 s26, s26, {seg_stride}")
    A.e("s_cmp_lt_u32 s26, 64")
    A.e(f"s_cbranch_scc1 {L}_loop")
    A.e("s_waitcnt vmcnt(0)")
    A.e("s_barrier")
    for t in range(2): flag_store(A, 37, cfg['word'][t], cfg['wbase'][t])
    A.e("s_waitcnt vmcnt(0)")
```

```python
import sys
from asm import *
from layout import *
import roles, chain3, chain5
from main import header, kstart, kdesc, role_select

def bulk_kernel(A, name, L, pre, body, vgpr=512, accum=256):
    kstart(A, name)
    pre()
    body()
    A.label(f"{L}_exit")
    A.e("s_endpgm")

def common_pre(A, L, nwg, srds):
    A.e(f"s_cmp_ge_u32 s2, {nwg}")
    A.e(f"s_cbranch_scc1 {L}_exit")
    for s, ka, n in srds: roles.load_srd(A, s, ka, n)
    roles.load_srd(A, roles.S_WS, KA_WS, 0)
    roles.wave_lane(A)
    A.e("s_waitcnt lgkmcnt(0)")
    for s, ka, n in srds: roles.finish_srd(A, s, n)
    roles.finish_srd(A, roles.S_WS, WS_SIZE)

def build_bulk(path, opts):
    A = Asm()
    launches = [
        "; @launch kernel=k0_init_kernel grid=(256,1,1) block=(256,1,1) lds=0",
        "; @launch kernel=k1_proj_kernel grid=(192,1,1) block=(256,1,1) lds=131072",
        "; @launch kernel=k2_chain_kernel grid=(256,1,1) block=(256,1,1) lds=163840",
        "; @launch kernel=k3_attn_kernel grid=(256,1,1) block=(256,1,1) lds=24576",
        "; @launch kernel=k4_wo_kernel grid=(256,1,1) block=(256,1,1) lds=163840",
        "; @launch kernel=k5_red_kernel grid=(256,1,1) block=(256,1,1) lds=0",
        "; @launch kernel=k6_ffn1_kernel grid=(224,1,1) block=(256,1,1) lds=131072",
        "; @launch kernel=k7_ffn2_kernel grid=(256,1,1) block=(256,1,1) lds=163840",
    ]
    header(A, launches)
    descs = []
    kstart(A, "k0_init_kernel"); roles.gen_init(A); descs.append(("k0_init_kernel", 64, 64, 64))
    kstart(A, "k1_proj_kernel")
    L = "L1"
    A.e("s_cmp_ge_u32 s2, 192"); A.e(f"s_cbranch_scc1 {L}_exit")
    A.e("s_cmp_ge_u32 s2, 96"); A.e("s_cselect_b32 s26, 1, 0"); A.e("s_mul_i32 s27, s26, 96"); A.e("s_sub_u32 s27, s2, s27")
    A.e("s_lshr_b32 s30, s27, 5                  ; matrix")
    A.e("s_lshl_b32 s31, s30, 3")
    A.e(f"s_add_u32 s31, s31, {KA_WQ}")
    A.e("s_load_dwordx2 s[4:5], s[0:1], s31")
    roles.load_srd(A, roles.S_WS, KA_WS, 0)
    roles.wave_lane(A)
    A.e("s_waitcnt lgkmcnt(0)")
    roles.finish_srd(A, 4, 0x400000); roles.finish_srd(A, roles.S_WS, WS_SIZE)
    A.e("s_and_b32 s27, s27, 31                  ; head")
    A.e("s_lshl_b32 s24, s27, 8")
    A.e(f"s_mov_b32 s28, {hex(WS_QX)}")
    A.e("s_cmp_eq_u32 s30, 1"); A.e(f"s_cselect_b32 s28, {hex(WS_KX)}, s28")
    A.e("s_cmp_eq_u32 s30, 2"); A.e(f"s_cselect_b32 s28, {hex(WS_VX)}, s28")
    A.e("s_lshl_b32 s27, s27, 13"); A.e("s_add_u32 s28, s28, s27")
    roles.gen_proj(A, L, dict(wstride=8192, a_base=WS_XN, out_seg=0x40000, out_row=256, seg_stride=2))
    A.label(f"{L}_exit"); A.e("s_endpgm"); descs.append(("k1_proj_kernel", 384, 102, 256))
    kstart(A, "k2_chain_kernel")
    role_select(A)
    chain3.gen_chain(A, opts)
    A.label("L_exit"); A.e("s_endpgm"); descs.append(("k2_chain_kernel", 512, 102, 256))
    kstart(A, "k3_attn_kernel"); L = "L3"
    common_pre(A, L, 256, [])
    A.e("s_and_b32 s24, s2, 31"); A.e("s_lshr_b32 s26, s2, 5")
    roles.gen_attn(A, L, dict(seg_stride=8))
    A.label(f"{L}_exit"); A.e("s_endpgm"); descs.append(("k3_attn_kernel", 128, 102, 128))
    kstart(A, "k4_wo_kernel"); L = "L4"
    common_pre(A, L, 256, [(4, KA_WO, 0x400000)])
    A.e("s_and_b32 s24, s2, 31"); A.e("s_lshr_b32 s26, s2, 5")
    roles.gen_wo(A, L, dict(seg_stride=8))
    A.label(f"{L}_exit"); A.e("s_endpgm"); descs.append(("k4_wo_kernel", 384, 102, 256))
    kstart(A, "k5_red_kernel"); L = "L5"
    common_pre(A, L, 256, [(4, KA_X, 0x200000)])
    A.e("s_mov_b32 s26, s2")
    roles.gen_red(A, L, dict(grp_stride=256))
    A.label(f"{L}_exit"); A.e("s_endpgm"); descs.append(("k5_red_kernel", 64, 102, 64))
    kstart(A, "k6_ffn1_kernel"); L = "L6"
    common_pre(A, L, 224, [(4, KA_W1, 512 * 3584)])
    A.e(f"s_mov_b32 s27, {hex(-(-(1 << 32) // 14))}")
    A.e("s_mul_hi_u32 s26, s2, s27"); A.e("s_mul_i32 s27, s26, 14"); A.e("s_sub_u32 s27, s2, s27")
    A.e("s_lshl_b32 s24, s27, 8")
    A.e(f"s_add_u32 s28, s24, {hex(WS_A1)}")
    roles.gen_proj(A, L, dict(wstride=3584, a_base=WS_HN, out_seg=32 * 3584, out_row=3584, seg_stride=16, relu=True))
    A.label(f"{L}_exit"); A.e("s_endpgm"); descs.append(("k6_ffn1_kernel", 384, 102, 256))
    kstart(A, "k7_ffn2_kernel"); L = "L7"
    common_pre(A, L, 256, [(4, KA_W2, 1792 * 1024), (8, KA_OUT, 0x200000)])
    A.e("s_and_b32 s24, s2, 15"); A.e("s_lshr_b32 s26, s2, 4")
    roles.gen_ffn2(A, L, dict(seg_stride=16))
    A.label(f"{L}_exit"); A.e("s_endpgm"); descs.append(("k7_ffn2_kernel", 384, 102, 256))
    for d in descs: kdesc(A, *d)
    open(path, "w").write(A.text())

def role_select_merged(A):
    A.e("s_cmp_ge_u32 s2, 256")
    A.e("s_cbranch_scc1 L_exit")
    A.e(f"s_load_dwordx2 s[36:37], s[0:1], {KA_DBG}")
    A.e("s_getreg_b32 s38, hwreg(HW_REG_XCC_ID, 0, 4)")
    A.e("s_waitcnt lgkmcnt(0)")
    A.e("v_mov_b32 v2, 1")
    A.e("v_mov_b32 v1, 0")
    A.e("v_cmp_eq_u32 vcc, 0, v0")
    A.e("s_and_saveexec_b64 s[30:31], vcc")
    A.e("s_cbranch_execz L_noat")
    A.e("s_cmp_lg_u32 s38, 0")
    A.e("s_cbranch_scc1 L_wtick")
    A.e("global_atomic_add v4, v1, v2, s[36:37] sc0")
    A.e("s_waitcnt vmcnt(0)")
    A.e("v_cmp_gt_u32 vcc, 32, v4")
    A.e("s_cbranch_vccz L_wtick")
    A.e("v_or_b32 v4, 0x1000, v4")
    A.e("s_branch L_tickdone")
    A.label("L_wtick")
    A.e("global_atomic_add v4, v1, v2, s[36:37] offset:4 sc0")
    A.e("s_waitcnt vmcnt(0)")
    A.label("L_tickdone")
    A.e("ds_write_b32 v1, v4")
    A.e("s_waitcnt lgkmcnt(0)")
    A.label("L_noat")
    A.e("s_mov_b64 exec, s[30:31]")
    A.e("s_barrier")
    A.e("v_mov_b32 v1, 0")
    A.e("ds_read_b32 v4, v1")
    A.e("s_waitcnt lgkmcnt(0)")
    A.e("s_nop 1")
    A.e("v_readfirstlane_b32 s24, v4")
    A.e("s_nop 3")
    A.e("s_barrier")
    A.e("s_bitcmp1_b32 s24, 12")
    A.e("s_cbranch_scc0 L_worker")
    A.e("s_and_b32 s24, s24, 31")

def traced(sig, slot, seg, on):
    if not on: return sig
    def f(A, L):
        if sig: sig(A, L)
        roles.trace(A, slot, seg, 63)
    return f

def build_merged(path, opts, asg):
    A = Asm()
    launches = [
        "; @launch kernel=k0_init_kernel grid=(256,1,1) block=(256,1,1) lds=0",
        "; @launch kernel=k1_main_kernel grid=(256,1,1) block=(256,1,1) lds=163840",
    ]
    header(A, launches)
    descs = []
    kstart(A, "k0_init_kernel"); roles.gen_init(A); descs.append(("k0_init_kernel", 64, 64, 64))
    kstart(A, "k1_main_kernel")
    role_select_merged(A)
    o = dict(opts); o["flags"] = True
    chain5.gen_chain(A, o)
    A.label("L_worker")
    A.e("s_mov_b32 s62, s24                      ; worker index")
    roles.load_srd(A, roles.S_WS, KA_WS, 0)
    roles.wave_lane(A)
    A.e("s_waitcnt lgkmcnt(0)")
    roles.finish_srd(A, roles.S_WS, WS_SIZE)
    base = 0
    names = []
    for i, (role, cnt, kw) in enumerate(asg):
        A.e(f"s_cmp_lt_u32 s62, {base + cnt}")
        A.e(f"s_cbranch_scc1 LR{i}")
        base += cnt
    A.e("s_branch L_exit")
    base = 0
    for i, (role, cnt, kw) in enumerate(asg):
        L = f"LR{i}"
        A.label(L)
        A.e(f"s_sub_u32 s63, s62, {base}")
        base += cnt
        if role in ("kv2", "q2"):
            nt = 32 if role == "kv2" else 16
            parts = cnt // nt
            A.e(f"s_and_b32 s27, s63, {nt-1}")
            A.e(f"s_lshr_b32 s26, s63, {nt.bit_length()-1}")
            if role == "kv2":
                A.e(f"s_load_dwordx2 s[4:5], s[0:1], {KA_WK}"); A.e(f"s_load_dwordx2 s[8:9], s[0:1], {KA_WV}")
                A.e("s_waitcnt lgkmcnt(0)")
                A.e("s_lshl_b32 s40, s27, 8"); A.e("s_mov_b32 s41, s40")
                A.e("s_lshl_b32 s29, s27, 13")
                A.e(f"s_add_u32 s42, s29, {hex(WS_KX)}"); A.e(f"s_add_u32 s43, s29, {hex(WS_VX)}")
                A.e("s_lshl_b32 s44, s27, 1"); A.e("s_add_u32 s45, s44, 1")
                wb = (FL_KV, FL_KV)
            else:
                A.e(f"s_load_dwordx2 s[4:5], s[0:1], {KA_WQ}"); A.e(f"s_load_dwordx2 s[8:9], s[0:1], {KA_WQ}")
                A.e("s_waitcnt lgkmcnt(0)")
                A.e("s_lshl_b32 s44, s27, 1"); A.e("s_add_u32 s45, s44, 1")
                A.e("s_lshl_b32 s40, s44, 8"); A.e("s_lshl_b32 s41, s45, 8")
                A.e("s_lshl_b32 s42, s44, 13"); A.e(f"s_add_u32 s42, s42, {hex(WS_QX)}")
                A.e("s_lshl_b32 s43, s45, 13"); A.e(f"s_add_u32 s43, s43, {hex(WS_QX)}")
                wb = (FL_Q, FL_Q)
            roles.finish_srd(A, 4, 0x400000); roles.finish_srd(A, 8, 0x400000)
            tr = (lambda A_, sreg, _slot=(1 if role == "kv2" else 2): roles.trace(A_, _slot, sreg, 63)) if opts.get("trace") else None
            roles.gen_proj2(A, L, dict(wstride=8192, a_base=WS_XN, out_seg=0x40000, out_row=256, seg_stride=parts,
                                       col=(40, 41), out=(42, 43), word=(44, 45), wbase=wb, trace=tr))
        elif role == "attn":
            parts = cnt // 32
            A.e("s_and_b32 s24, s63, 31"); A.e("s_lshr_b32 s26, s63, 5")
            A.e("s_lshl_b32 s33, s24, 3")
            A.e("v_lshlrev_b32 v124, 2, v2")
            A.e("v_add_u32 v124, s33, v124")
            A.e("s_lshl_b32 s33, s24, 2")
            A.e(f"s_add_u32 s33, s33, {4*FL_Q}")
            A.e("v_mov_b32 v123, s33")
            A.e("v_cmp_eq_u32 vcc, 2, v2")
            A.e("s_nop 1")
            A.e("v_cndmask_b32 v124, v124, v123, vcc")
            A.e("s_lshl_b32 s33, s24, 4")
            A.e(f"s_add_u32 s33, s33, {4*FL_KM}")
            A.e("v_lshlrev_b32 v123, 2, v2")
            A.e("v_add_u32 v123, s33, v123")
            A.e("s_mov_b32 s59, s24")
            roles.gen_attn2(A, L, dict(seg_stride=parts, wait_qkv=roles.make_wait(124, 3), wait_km=roles.make_wait(123, 4),
                                       signal=traced(roles.make_signal(26, 59, FL_O), 3, 26, opts.get('trace'))))
        elif role == "wo":
            parts = cnt // 32
            A.e(f"s_load_dwordx2 s[4:5], s[0:1], {KA_WO}"); A.e("s_waitcnt lgkmcnt(0)")
            roles.finish_srd(A, 4, 0x400000)
            A.e("s_and_b32 s24, s63, 31"); A.e("s_lshr_b32 s26, s63, 5")
            A.e("s_lshr_b32 s33, s24, 3"); A.e("s_lshl_b32 s33, s33, 5")
            A.e(f"s_add_u32 s33, s33, {4*FL_O}")
            A.e("v_lshlrev_b32 v124, 2, v2"); A.e("v_add_u32 v124, s33, v124")
            A.e("s_mov_b32 s59, s24")
            roles.gen_wo(A, L, dict(seg_stride=parts, wait_in=roles.make_wait(124, 8), try_in=roles.make_try(124, 8),
                                    signal=traced(roles.make_signal(26, 59, FL_P), 4, 26, opts.get('trace'))))
        elif role == "red":
            A.e(f"s_load_dwordx2 s[4:5], s[0:1], {KA_X}"); A.e("s_waitcnt lgkmcnt(0)")
            roles.finish_srd(A, 4, 0x200000)
            A.e("s_mov_b32 s26, s63")
            A.e("v_lshlrev_b32 v124, 2, v2"); A.e(f"v_add_u32 v124, {4*FL_P}, v124")
            def sig(A, L, _s=roles.make_signal(26, 59, FL_H, shift=3)):
                A.e("s_and_b32 s59, s26, 7")
                _s(A, L)
            roles.gen_red(A, L, dict(grp_stride=cnt, wait_in=roles.make_wait(124, 32, shift=3), signal=traced(sig, 5, 26, opts.get('trace'))))
        elif role == "ffn1":
            parts = cnt // 14
            A.e(f"s_load_dwordx2 s[4:5], s[0:1], {KA_W1}"); A.e("s_waitcnt lgkmcnt(0)")
            roles.finish_srd(A, 4, 512 * 3584)
            A.e(f"s_mov_b32 s27, {hex(-(-(1 << 32) // 14))}")
            A.e("s_mul_hi_u32 s26, s63, s27"); A.e("s_mul_i32 s27, s26, 14"); A.e("s_sub_u32 s27, s63, s27")
            A.e("s_lshl_b32 s24, s27, 8")
            A.e(f"s_add_u32 s28, s24, {hex(WS_A1)}")
            A.e("s_mov_b32 s59, s27")
            A.e("v_lshlrev_b32 v124, 2, v2"); A.e(f"v_add_u32 v124, {4*FL_H}, v124")
            roles.gen_proj(A, L, dict(wstride=3584, a_base=WS_HN, out_seg=32 * 3584, out_row=3584, seg_stride=parts, relu=True,
                                      wait_in=roles.make_wait(124, 8), try_in=roles.make_try(124, 8), signal=traced(roles.make_signal(26, 59, FL_A1), 6, 26, opts.get('trace'))))
        elif role == "ffn2":
            parts = cnt // 16
            A.e(f"s_load_dwordx2 s[4:5], s[0:1], {KA_W2}"); A.e(f"s_load_dwordx2 s[8:9], s[0:1], {KA_OUT}"); A.e("s_waitcnt lgkmcnt(0)")
            roles.finish_srd(A, 4, 1792 * 1024); roles.finish_srd(A, 8, 0x200000)
            A.e("s_and_b32 s24, s63, 15"); A.e("s_lshr_b32 s26, s63, 4")
            A.e("v_lshlrev_b32 v124, 2, v2"); A.e(f"v_add_u32 v124, {4*FL_A1}, v124")
            roles.gen_ffn2(A, L, dict(seg_stride=parts, wait_in=roles.make_wait(124, 14), signal=traced(None, 7, 26, True) if opts.get('trace') else None))
        A.label(f"{L}_exit")
        A.e("s_branch L_exit")
    A.label("L_exit"); A.e("s_endpgm"); descs.append(("k1_main_kernel", 512, 102, 256))
    for d in descs: kdesc(A, *d)
    open(path, "w").write(A.text())

ASG1 = [("kv2", 32, {}), ("q2", 16, {}), ("attn", 64, {}), ("wo", 32, {}), ("red", 8, {}), ("ffn1", 28, {}), ("ffn2", 32, {})]

if __name__ == "__main__":
    build_merged("merged.s", dict(), ASG1)
    build_merged("merged_trace.s", dict(trace=True), ASG1)
    build_bulk("bulk.s", dict())
```

```python
from asm import *
from layout import *
import struct, math

L_KS = 0x0000
L_VS = 0x2000
L_QT = 0x4000
L_KT = 0x5000
L_OX = 0x6000
L_MS = 0x6000
L_WO = 0x8000
SPIN_MAX = 200000

(V_L16, V_IDX, V_QW, V_QR0, V_F, V_KXA, V_VXA, V_WOL, V_PST, V_MST, V_DK, V_DV) = range(112, 124)
V_QR1 = 110
V_PM0 = 124
V_PM1 = 126
V_KV4 = 104
V_PX = 108
V_T = 110
S_WQ, S_WK, S_WV, S_WO, S_WS = 4, 8, 12, 16, 20
S_H, S_W, S_STEP = 24, 25, 26
S_C = 40
S_SPIN = 45
S_OXM, S_MSTM = 48, 50
S_MEMRD, S_MEMRD4 = 52, 53
S_PST = 54
S_PLD = 55
S_PPZ = 56
S_MST, S_MPZ = 57, 58
S_KM = 59
S_KD, S_VD = 90, 91
S_KL, S_VL = 92, 93
S_TK = 94
S_PSTB = 95
S_FKV = 99
S_FKM = 100
S_PPZ2 = 46
S_LO, S_HI = 42, 43
S_B2M = 38
S_MSW = 47
S_MR = 96
CSCALE = struct.unpack("<I", struct.pack("<f", (128 ** -0.5) * math.log2(math.e)))[0]
WSRD = f"s[{S_WS}:{S_WS+3}]"

def wreg(mat, t, c):
    if mat < 2:
        return ("a", 128 * mat + 64 * t + 8 * c)
    return ("v", 128 + 64 * t + 8 * c)
def rr(kind, base, n):
    return f"{kind}[{base}:{base+n-1}]"

def isvalu(s):
    return s.startswith("v_") and not s.startswith("v_mfma") and not s.startswith("v_smfmac")

def weave(A, mfmas, fillers, nv=1, no=2):
    fillers = list(fillers)
    for m in mfmas:
        A.e(m)
        v = o = 0
        while fillers:
            f = fillers[0]
            if f.endswith(":"):
                A.label(f[:-1]); fillers.pop(0); continue
            if isvalu(f):
                if v >= nv: break
                v += 1
            else:
                if o + v >= 3: break
                o += 1
            A.e(f); fillers.pop(0)
            if v + o >= 3: break
    return fillers

def flush(A, fillers):
    for f in fillers:
        if f.endswith(":"): A.label(f[:-1])
        else: A.e(f)

def stamp(A, opts, idx):
    if opts.get("stamps") and (opts.get("only") is None or idx in opts["only"]):
        A.e("s_waitcnt lgkmcnt(0)")
        A.e("s_memtime s[60:61]")
        A.e("s_waitcnt lgkmcnt(0)")
        A.e(f"s_sub_u32 s62, s60, s63")
        A.e(f"s_add_u32 s{64+idx}, s{64+idx}, s62")
        A.e("s_mov_b32 s63, s60")

def gen_setup(A, opts):
    for s, ka in ((S_WQ, KA_WQ), (S_WK, KA_WK), (S_WV, KA_WV), (S_WO, KA_WO), (S_WS, KA_WS)):
        A.e(f"s_load_dwordx2 s[{s}:{s+1}], s[0:1], {ka}")
    A.e("v_lshrrev_b32 v1, 6, v0")
    A.e("v_and_b32 v2, 63, v0                 ; lane")
    A.e("v_readfirstlane_b32 s25, v1          ; wave")
    A.e("s_waitcnt lgkmcnt(0)")
    for s, n in ((S_WQ, 0x400000), (S_WK, 0x400000), (S_WV, 0x400000), (S_WO, 0x400000), (S_WS, WS_SIZE)):
        A.e(f"s_mov_b32 s{s+2}, {hex(n)}")
        A.e(f"s_mov_b32 s{s+3}, 0x00020000")
    A.e(f"s_mov_b32 s{S_C}, {hex(CSCALE)}")
    A.e(f"s_mov_b32 s{S_C+1}, {hex(CSCALE)}")
    A.e(f"s_mov_b32 s{S_MSTM}, 0x00550055")
    A.e(f"s_mov_b32 s{S_MSTM+1}, 0x00550055")
    A.e("s_and_b32 s27, s25, 1")
    A.e("s_cmp_eq_u32 s27, 0")
    A.e(f"s_mov_b32 s28, 0xcccccccc")
    A.e(f"s_cselect_b32 s{S_OXM}, 0x33333333, s28")
    A.e(f"s_mov_b32 s{S_OXM+1}, s{S_OXM}")
    A.e("v_and_b32 v3, 15, v2")
    A.e("v_lshrrev_b32 v4, 4, v2")
    A.e("v_bfe_u32 v5, v2, 2, 2")
    A.e("v_and_b32 v6, 3, v2")
    A.e("v_and_b32 v9, 1, v4")
    A.e("v_lshrrev_b32 v10, 1, v4")
    A.e(f"v_lshlrev_b32 v{V_L16}, 4, v2")
    A.e(f"v_mov_b32 v{V_IDX}, 0x44444444")
    A.e("v_mov_b32 v7, 0xeeeeeeee")
    A.e("v_and_b32 v8, 2, v2")
    A.e("v_cmp_ne_u32 vcc, 0, v8")
    A.e("s_nop 1")
    A.e(f"v_cndmask_b32 v{V_IDX}, v{V_IDX}, v7, vcc")
    A.e("s_lshl_b32 s27, s25, 5")
    A.e("v_add_u32 v7, s27, v3")
    A.e("v_lshlrev_b32 v7, 5, v7")
    A.e("v_lshrrev_b32 v8, 1, v7")
    A.e("v_and_b32 v8, 128, v8")
    A.e("v_xor_b32 v7, v7, v8")
    A.e("v_lshl_add_u32 v7, v4, 3, v7")
    A.e(f"v_add_u32 v{V_QW}, {hex(L_QT)}, v7")
    A.e("v_lshlrev_b32 v7, 3, v4")
    A.e("v_add_u32 v7, v7, v5")
    A.e("v_lshlrev_b32 v7, 5, v7")
    A.e("v_lshrrev_b32 v8, 1, v7")
    A.e("v_and_b32 v8, 128, v8")
    A.e("v_xor_b32 v7, v7, v8")
    A.e("v_lshl_add_u32 v7, v6, 3, v7")
    A.e(f"v_add_u32 v{V_QR0}, {hex(L_QT)}, v7")
    A.e("v_xor_b32 v7, v4, v3")
    A.e("v_lshlrev_b32 v7, 4, v7")
    A.e("v_lshl_add_u32 v7, v3, 8, v7")
    A.e(f"v_add_u32 v{V_KXA}, {hex(L_KS)}, v7")
    A.e("v_lshlrev_b32 v7, 2, v4")
    A.e("v_add_u32 v7, v7, v5")
    A.e("v_lshlrev_b32 v7, 6, v7")
    A.e("v_lshl_add_u32 v7, v9, 5, v7")
    A.e("v_lshl_add_u32 v7, v6, 3, v7")
    A.e("s_lshl_b32 s27, s25, 11")
    A.e(f"s_add_u32 s27, s27, {hex(L_VS)}")
    A.e(f"v_add_u32 v{V_VXA}, s27, v7")
    A.e("s_lshl_b32 s27, s25, 15")
    A.e(f"s_add_u32 s27, s27, {hex(L_WO)}")
    A.e(f"v_add_u32 v{V_WOL}, s27, v{V_L16}")
    A.e("v_lshrrev_b32 v7, 2, v3")
    A.e("v_lshlrev_b32 v7, 13, v7")
    A.e("v_lshl_add_u32 v7, v4, 11, v7")
    A.e(f"v_lshl_add_u32 v{V_PST}, v6, 4, v7")
    A.e("v_bfe_u32 v7, v2, 2, 1")
    A.e("v_lshl_add_u32 v7, v7, 1, v10")
    A.e("s_lshl_b32 s27, s25, 2")
    A.e("v_add_u32 v7, s27, v7")
    A.e("v_lshlrev_b32 v7, 4, v7")
    A.e("v_bfe_u32 v8, v2, 1, 1")
    A.e("v_lshl_add_u32 v8, v9, 1, v8")
    A.e(f"v_lshl_add_u32 v{V_MST}, v8, 2, v7")
    A.e("v_xor_b32 v7, v3, v4")
    A.e("v_lshlrev_b32 v7, 4, v7")
    A.e("v_lshl_add_u32 v7, v4, 8, v7")
    A.e("s_lshl_b32 s27, s25, 1")
    A.e("s_and_b32 s27, s27, 3")
    A.e("s_lshl_b32 s27, s27, 6")
    A.e(f"v_xor_b32 v{V_DK}, s27, v7")
    A.e("v_lshlrev_b32 v7, 1, v9")
    A.e("v_xor_b32 v7, v7, v6")
    A.e("v_lshlrev_b32 v7, 4, v7")
    A.e("v_lshrrev_b32 v8, 2, v2")
    A.e(f"v_lshl_add_u32 v{V_DV}, v8, 8, v7")
    A.e(f"v_mov_b32 v{V_PM0+1}, 0")
    A.e(f"v_mov_b32 v{V_PM1}, 0")

def gen_weights(A, opts):
    A.e("v_lshrrev_b32 v7, 2, v2")
    A.e("v_lshlrev_b32 v7, 13, v7")
    A.e("v_lshl_add_u32 v20, v6, 4, v7")
    A.e("v_lshrrev_b32 v8, 1, v5              ; r>>1")
    A.e("v_lshlrev_b32 v7, 5, v8              ; 32*(r>>1)")
    A.e("v_lshl_add_u32 v7, v9, 4, v7         ; + 16*(gb&1)")
    A.e("v_lshl_add_u32 v7, v10, 2, v7        ; + 4*(gb>>1)")
    A.e("v_and_b32 v11, 1, v5                 ; r&1")
    A.e("v_add_u32 v7, v7, v11")
    A.e("v_lshlrev_b32 v7, 6, v7")
    A.e("v_lshl_add_u32 v7, v6, 3, v7")
    A.e("s_lshl_b32 s29, s25, 15")
    A.e(f"s_add_u32 s29, s29, {hex(L_WO)}")
    A.e("v_add_u32 v21, s29, v7")
    A.e("s_lshl_b32 s30, s25, 13")
    A.e("v_add_u32 v22, s30, v7")
    A.e("v_lshrrev_b32 v7, 1, v3")
    A.e("v_xor_b32 v7, v7, v9")
    A.e("v_lshlrev_b32 v7, 5, v7")
    A.e("v_lshl_add_u32 v7, v4, 10, v7")
    A.e("v_and_b32 v12, 1, v2")
    A.e("v_lshl_add_u32 v23, v12, 4, v7")
    A.e("v_lshlrev_b32 v7, 5, v8")
    A.e("v_lshl_add_u32 v7, v9, 4, v7")
    A.e("v_lshl_add_u32 v7, v10, 2, v7")
    A.e("v_add_u32 v7, v7, v11")
    A.e("v_lshlrev_b32 v7, 8, v7")
    A.e("v_lshl_add_u32 v12, v9, 1, v11")
    A.e("v_lshl_add_u32 v12, v8, 2, v12")
    A.e("v_lshl_add_u32 v7, v12, 5, v7")
    A.e("v_lshl_add_u32 v7, v6, 3, v7")
    A.e("v_add_u32 v25, s29, v7")
    A.e("s_lshl_b32 s28, s24, 8")
    A.e("s_lshl_b32 s33, s25, 6")
    A.e("s_add_u32 s28, s28, s33              ; h*256 + w*64")
    A.e("s_lshl_b32 s31, s24, 17")
    A.e("s_lshl_b32 s32, s25, 8")
    A.e("s_add_u32 s31, s31, s32              ; h*128*1024 + w*256")
    def issue_unit(u):
        mat, c = divmod(u, 8)
        slot = u % 10
        srdreg = (S_WQ, S_WK, S_WV)[mat]
        for uu in range(4):
            if slot < 8:
                A.e(f"s_add_u32 m0, s29, {slot*4096 + uu*1024}")
            else:
                A.e(f"s_add_u32 m0, s30, {(slot-8)*4096 + uu*1024}")
            if uu == 0:
                A.e("s_lshl_b32 s34, s25, 1")
                A.e(f"s_add_u32 s34, s34, {c}")
                A.e("s_and_b32 s34, s34, 7")
                A.e("s_lshl_b32 s34, s34, 19")
                A.e("s_add_u32 s34, s34, s28")
            A.e(f"s_add_u32 s33, s34, {(16*uu) * 8192}")
            A.e(f"buffer_load_dwordx4 v20, s[{srdreg}:{srdreg+3}], s33 offen lds")
    def issue_wo(k):
        A.e(f"v_xor_b32 v24, {(k & 3) << 6}, v23")
        for uu in range(4):
            A.e(f"s_add_u32 m0, s29, {k*4096 + uu*1024}")
            A.e(f"s_add_u32 s33, s31, {(16*k + 4*uu) * 1024}")
            A.e(f"buffer_load_dwordx4 v24, s[{S_WO}:{S_WO+3}], s33 offen lds")
    issued = 0
    for u in range(10):
        issue_unit(u); issued += 1
    for u in range(24):
        mat, c = divmod(u, 8)
        slot = u % 10
        A.e(f"s_waitcnt vmcnt({(issued - (u + 1)) * 4})")
        for t in range(2):
            kind, base = wreg(mat, t, c)
            for m in range(4):
                off = 512 * (m >> 1) + 128 * (m & 1) + 32 * t
                if slot < 8:
                    A.e(f"ds_read_b64_tr_b16 {rr(kind, base + 2*m, 2)}, v21 offset:{slot*4096 + off}")
                else:
                    A.e(f"ds_read_b64_tr_b16 {rr(kind, base + 2*m, 2)}, v22 offset:{(slot-8)*4096 + off}")
        A.e("s_waitcnt lgkmcnt(0)")
        if u + 10 < 24:
            issue_unit(u + 10); issued += 1
        elif 14 <= u <= 17:
            issue_wo(u - 10); issued += 1
        elif u >= 20:
            issue_wo(u - 20); issued += 1
    A.e("s_waitcnt vmcnt(0)")
    for cc in range(2):
        for t in range(8):
            if t == 0:
                ad = 25
            else:
                A.e(f"v_xor_b32 v26, {t << 5}, v25")
                ad = 26
            for m in range(4):
                off = (64 * cc + 8 * (m >> 1) + 2 * (m & 1)) * 256
                A.e(f"ds_read_b64_tr_b16 v[{32+8*t+2*m}:{33+8*t+2*m}], v{ad} offset:{off}")
            if t % 2 == 1:
                A.e("s_waitcnt lgkmcnt(0)")
        for t in range(8):
            for half in range(2):
                A.e(f"ds_write_b128 v{V_WOL}, v[{32+8*t+4*half}:{35+8*t+4*half}] offset:{cc*16384 + t*2048 + half*1024}")
            if t % 4 == 3:
                A.e("s_waitcnt lgkmcnt(0)")
    A.e("s_barrier")


def k_dma(T):
    return [f"s_mov_b32 m0, s{S_KL}",
            f"v_xor_b32 v{T}, 64, v{V_DK}",
            f"buffer_load_dwordx4 v{V_DK}, {WSRD}, s{S_KD} offen lds",
            f"s_add_u32 m0, s{S_KL}, 1024",
            f"s_add_u32 s{S_KD}, s{S_KD}, 1024",
            f"buffer_load_dwordx4 v{T}, {WSRD}, s{S_KD} offen lds"]
def v_dma():
    return [f"s_mov_b32 m0, s{S_VL}",
            f"s_add_u32 s33, s{S_VD}, 4096",
            f"buffer_load_dwordx4 v{V_DV}, {WSRD}, s{S_VD} offen lds",
            f"s_add_u32 m0, s{S_VL}, 1024",
            "s_nop 0",
            f"buffer_load_dwordx4 v{V_DV}, {WSRD}, s33 offen lds"]

class Lds:
    def __init__(self, A): self.A = A; self.q = []
    def issue(self, instr, tag=None):
        self.A.e(instr); self.q.append(tag)
        assert len(self.q) <= 15, "more than 15 LDS operations outstanding"
    def note(self, tag=None):
        self.q.append(tag)
        assert len(self.q) <= 15, "more than 15 LDS operations outstanding"
    def wait(self, tag):
        if tag not in self.q: return None
        i = max(k for k, t in enumerate(self.q) if t == tag)
        n = len(self.q) - 1 - i
        self.q = self.q[i + 1:]
        return f"s_waitcnt lgkmcnt({n})"
    def waitall(self):
        self.q = []
        return "s_waitcnt lgkmcnt(0)"


def gen_chain(A, opts):
    A("; ---------------- chain role: s24 = head ----------------")
    if opts.get("total"):
        A.e("s_memrealtime s[80:81]")
    gen_setup(A, opts)
    gen_weights(A, opts)
    if opts.get("inline_init"):
        import roles as _roles
        _roles.wait_init(A)
        A.e(f"v_mov_b32 v{V_PM0+1}, 0")
        A.e(f"v_mov_b32 v{V_PM1}, 0")
    flags = opts.get("flags")
    A.e(f"s_mov_b32 s{S_LO}, 0x00003f80")
    A.e(f"s_mov_b32 s{S_HI}, 0x3f800000")
    A.e(f"s_mov_b32 s{S_B2M}, 0xf0f0f0f0")
    A.e(f"s_mov_b32 s{S_B2M+1}, 0xf0f0f0f0")
    A.e("s_lshl_b32 s27, s25, 11")
    A.e(f"s_add_u32 s{S_KL}, s27, {hex(L_KS)}")
    A.e(f"s_add_u32 s{S_VL}, s27, {hex(L_VS)}")
    A.e(f"s_add_u32 s{S_MSW}, s27, 0                 ; w*2048")
    for p in range(1, 4):
        A.e(f"s_add_u32 s28, s27, {2048*p}")
        A.e(f"s_and_b32 s{S_MR+p-1}, s28, 0x1fff")
    A.e(f"s_add_u32 s{S_MEMRD}, s27, {hex(WS_MEM)}")
    A.e("s_mov_b32 s26, 0")
    flush(A, ["s_lshl_b32 s33, s24, 13",
              f"s_add_u32 s{S_KD}, s33, s27",
              f"s_add_u32 s{S_KD}, s{S_KD}, {hex(WS_KX)}",
              "s_lshl_b32 s34, s25, 6",
              f"s_add_u32 s{S_VD}, s33, s34",
              f"s_add_u32 s{S_VD}, s{S_VD}, {hex(WS_VX)}"])
    if flags:
        A.e("s_lshl_b32 s33, s24, 3")
        A.e(f"s_add_u32 s{S_FKV}, s33, {hex(WS_FLAG)}")
        A.e(f"v_lshrrev_b32 v110, 2, v{V_L16}")
        A.e(f"s_mov_b32 s{S_SPIN}, 0")
        for k_ in range(2):
            A.label(f"L_fkv0_{k_}")
            A.e(f"buffer_load_dword v111, v110, {WSRD}, s{S_FKV} offen sc1")
            A.e(f"s_add_u32 s{S_SPIN}, s{S_SPIN}, 1")
            A.e(f"s_cmp_gt_u32 s{S_SPIN}, {SPIN_MAX*10}")
            A.e("s_cbranch_scc1 L_fail")
            A.e("s_waitcnt vmcnt(0)")
            A.e("v_cmp_eq_u32 vcc, 0, v111")
            A.e("s_and_b32 vcc_lo, vcc_lo, 3")
            A.e(f"s_cbranch_scc1 L_fkv0_{k_}")
            A.e(f"s_add_u32 s{S_FKV}, s{S_FKV}, {FL_SEG}")
        A.e(f"buffer_load_dword v{V_F}, v110, {WSRD}, s{S_FKV} offen sc1")
        A.e("s_lshl_b32 s33, s24, 4")
        A.e("s_lshl_b32 s34, s25, 2")
        A.e("s_add_u32 s33, s33, s34")
        A.e(f"s_add_u32 s{S_FKM}, s33, {hex(WS_FLAG + 4*FL_KM - 2*FL_SEG)}")
    A.e("s_lshl_b32 s33, s24, 13")
    A.e("s_and_b32 s34, s25, 1")
    A.e("s_lshl_b32 s34, s34, 12")
    A.e("s_add_u32 s33, s33, s34")
    A.e("s_lshr_b32 s34, s25, 1")
    A.e("s_lshl_b32 s34, s34, 24")
    A.e("s_add_u32 s33, s33, s34")
    A.e(f"s_add_u32 s{S_TK}, s33, {hex(WS_KX + 0x40000)}")
    A.e(f"v_lshlrev_b32 v110, 2, v{V_L16}")
    A.e(f"buffer_load_dword v111, v110, {WSRD}, s{S_TK} offen")
    A.e(f"s_add_u32 s{S_TK}, s{S_TK}, 0x40000")
    A.e("s_waitcnt vmcnt(0)")
    flush(A, k_dma(V_T))
    flush(A, v_dma())
    for r in range(32, 56, 2):
        A.e(f"v_mov_b64 v[{r}:{r+1}], 0")
    flush(A, ["s_lshl_b32 s29, s24, 13",
              "s_lshl_b32 s30, s25, 11",
              "s_add_u32 s29, s29, s30",
              f"s_add_u32 s{S_PLD}, s29, {hex(WS_P)}",
              f"s_xor_b32 s{S_PPZ}, s{S_PLD}, 0x40000",
              "s_lshl_b32 s29, s25, 16              ; 8w*8192",
              "s_lshl_b32 s30, s24, 6",
              "s_add_u32 s29, s29, s30",
              f"s_add_u32 s{S_PSTB}, s29, {hex(WS_P)}",
              "s_lshl_b32 s29, s24, 8",
              f"s_add_u32 s{S_MPZ}, s29, {hex(WS_MEM)}",
              f"s_xor_b32 s{S_MST}, s{S_MPZ}, 0x2000",
              "s_lshl_b32 s27, s24, 12",
              "s_lshl_b32 s28, s25, 10",
              "s_add_u32 s27, s27, s28",
              f"s_add_u32 s{S_KM}, s27, {hex(WS_KMVM - 0x20000)}"])
    def ms_addr():
        return [f"v_add_u32 v88, s{S_MSW}, v{V_L16}"] + [f"v_add_u32 v{89+p}, s{S_MR+p}, v{V_L16}" for p in range(3)]
    flush(A, ms_addr())
    if opts.get("stamps"):
        for i in range(16):
            A.e(f"s_mov_b32 s{64+i}, 0")
        A.e("s_memtime s[60:61]")
        A.e("s_waitcnt lgkmcnt(0)")
        A.e("s_mov_b32 s63, s60")
    if opts.get("total"):
        A.e("s_mov_b32 s67, 0")
        A.e("s_mov_b32 s68, 0")
        A.e("s_waitcnt vmcnt(0)")
        A.e("s_memtime s[82:83]")
        A.e("s_memrealtime s[84:85]")
        A.e("s_waitcnt lgkmcnt(0)")
    A.e("s_waitcnt vmcnt(0)")

    L = Lds(A)
    def qk(c):
        out = []
        for mat in range(2):
            for t in range(2):
                kind, base = wreg(mat, t, c)
                acc = 32 + 8 * mat + 4 * t
                out.append(f"v_smfmac_f32_16x16x64_bf16 v[{acc}:{acc+3}], v[{4*c}:{4*c+3}], {rr(kind, base, 8)}, v{V_IDX}")
        return out
    def vm(c, t):
        kind, base = wreg(2, t, c)
        acc = 48 + 4 * t
        return f"v_smfmac_f32_16x16x64_bf16 v[{acc}:{acc+3}], v[{4*c}:{4*c+3}], {rr(kind, base, 8)}, v{V_IDX}"
    vms = [vm(c, t) for c in range(8) for t in range(2)]
    def em(x, tag=None):
        if x is None: return
        if x.startswith("ds_"): L.issue(x, tag)
        else: A.e(x)
    def slot(m, o=(), v=None):
        A.e(m)
        for x in o:
            if isinstance(x, tuple): em(x[0], x[1])
            else: em(x)
        if v: A.e(v)

    A.label("L_step")
    if opts.get("trace"):
        A.e("s_cmp_lg_u32 s25, 0")
        A.e("s_cbranch_scc1 L_notrace")
        A.e("s_memrealtime s[60:61]")
        A.e("s_lshl_b32 s27, s26, 2")
        A.e("s_lshl_b32 s28, s24, 11")
        A.e("s_add_u32 s27, s27, s28")
        A.e(f"s_add_u32 s27, s27, {hex(WS_TRACE)}")
        A.e("s_waitcnt lgkmcnt(0)")
        A.e("v_mov_b32 v108, s60")
        A.e("s_mov_b64 exec, 1")
        A.e(f"buffer_store_dword v108, v{V_PM0+1}, {WSRD}, s27 offen")
        A.e("s_mov_b64 exec, -1")
        A.label("L_notrace")
    def mem_ld(b):
        return [f"buffer_load_dwordx4 v[{b}:{b+3}], v{V_L16}, {WSRD}, s{S_MEMRD} offen sc1",
                f"buffer_load_dwordx4 v[{b+4}:{b+7}], v{V_L16}, {WSRD}, s{S_MEMRD} offen offset:1024 sc1"]
    def chk8(b, t):
        return [f"v_max3_u32 v{t}, v{b}, v{b+1}, v{b+2}",
                f"v_max3_u32 v{t+1}, v{b+3}, v{b+4}, v{b+5}",
                f"v_max3_u32 v{t}, v{t}, v{b+6}, v{b+7}",
                f"v_max_u32 v{t}, v{t}, v{t+1}",
                f"v_cmp_eq_u32 vcc, -1, v{t}"]
    BSET = 96
    flush(A, mem_ld(0))
    for _ in range(opts.get("d2", 3)): A.e("s_nop 7")
    A.e(f"s_mov_b32 s{S_SPIN}, 0")
    flush(A, mem_ld(BSET))
    A.label("L_poll2")
    A.e("s_waitcnt vmcnt(2)")
    flush(A, chk8(0, 108))
    A.e("s_cbranch_vccz L_h2_A")
    flush(A, mem_ld(0))
    A.e("s_waitcnt vmcnt(2)")
    flush(A, chk8(BSET, 108))
    A.e("s_cbranch_vccz L_h2_B")
    flush(A, mem_ld(BSET))
    A.e(f"s_add_u32 s{S_SPIN}, s{S_SPIN}, 1")
    A.e(f"s_cmp_gt_u32 s{S_SPIN}, {SPIN_MAX}")
    A.e("s_cbranch_scc0 L_poll2")
    A.e("s_branch L_fail")
    def qk_at(c, areg):
        out = []
        for mat in range(2):
            for t in range(2):
                kind, base = wreg(mat, t, c)
                acc = 32 + 8 * mat + 4 * t
                out.append(f"v_smfmac_f32_16x16x64_bf16 v[{acc}:{acc+3}], v[{areg}:{areg+3}], {rr(kind, base, 8)}, v{V_IDX}")
        return out
    A.label("L_h2_B")
    A.e(f"ds_write_b128 v88, v[{BSET}:{BSET+3}] offset:{L_MS}")
    A.e(f"ds_write_b128 v88, v[{BSET+4}:{BSET+7}] offset:{L_MS + 1024}")
    for m in qk_at(0, BSET) + qk_at(1, BSET + 4): A.e(m)
    A.e("s_branch L_h2_join")
    A.label("L_h2_A")
    if opts.get("total"): A.e(f"s_add_u32 s67, s67, s{S_SPIN}")
    stamp(A, opts, 0)
    L.issue(f"ds_write_b128 v88, v[0:3] offset:{L_MS}", "msw")
    L.issue(f"ds_write_b128 v88, v[4:7] offset:{L_MS + 1024}", "msw")
    for m in qk(0) + qk(1): A.e(m)
    A.label("L_h2_join")
    stamp(A, opts, 9)
    A.e(L.wait("msw"))
    A.e("s_barrier")
    msr = [(f"ds_read_b128 v[{4*c}:{4*c+3}], v{89 + (c-2)//2} offset:{L_MS + 1024*(c%2)}", f"m{c}") for c in range(2, 8)]
    for x in msr: em(*x)
    kx = []
    for ks in range(4):
        ad = V_KXA if ks == 0 else 109
        for kt in range(2):
            kx.append((f"ds_read_b128 v[{56+16*kt+4*ks}:{59+16*kt+4*ks}], v{ad} offset:{4096*kt}", "kx"))
    sched = {}
    sched[0] = ([kx[0], kx[1]], f"v_xor_b32 v109, 64, v{V_KXA}")
    sched[1] = ([kx[2], kx[3]], f"v_xor_b32 v109, 128, v{V_KXA}")
    sched[2] = ([kx[4], kx[5]], f"v_xor_b32 v109, 192, v{V_KXA}")
    sched[3] = ([kx[6], kx[7]], f"v_lshlrev_b32 v110, 2, v{V_L16}")
    nvm = 4
    if flags:
        sched[4] = ([], f"v_cmp_eq_u32 vcc, 0, v{V_F}")
        sched[6] = (["s_and_b32 vcc_lo, vcc_lo, 3", "s_cbranch_scc1 L_fkv_slow\nL_fkv_ok:"], None)
    sched[7] = ([f"buffer_load_dword v{V_F}, v110, {WSRD}, s{S_TK} offen", f"s_add_u32 s{S_TK}, s{S_TK}, 0x40000"], f"v_lshrrev_b32 v110, 2, v{V_L16}")
    if flags:
        sched[9] = ([f"s_add_u32 s{S_FKV}, s{S_FKV}, {FL_SEG}", f"buffer_load_dword v{V_F}, v110, {WSRD}, s{S_FKV} offen sc1"], None)
        sched[12] = ([f"s_mov_b64 exec, 1\n    buffer_store_dword v{V_IDX}, v{V_PM0+1}, {WSRD}, s{S_FKM} offen sc1\n    s_mov_b64 exec, -1"], None)
        sched[13] = ([f"s_add_u32 s{S_FKM}, s{S_FKM}, {FL_SEG}"], None)
        nvm = 6
    sched[10] = ([f"s_mov_b32 s{S_PST}, s{S_PSTB}", f"s_add_u32 s{S_KD}, s{S_KD}, {hex(0x40000 - 1024)}"], "v_mov_b64 v[88:89], -1")
    sched[11] = ([f"s_add_u32 s{S_VD}, s{S_VD}, 0x40000"], "v_mov_b64 v[90:91], -1")
    sched[15] = ([f"buffer_store_dwordx4 v[{V_KV4}:{V_KV4+3}], v{V_L16}, {WSRD}, s{S_KM} offen" + ("" if opts.get("x_kmplain") else " sc1")], None)
    sched[16] = ([f"s_add_u32 s{S_KM}, s{S_KM}, 0x20000"], None)
    sched[18] = ([f"buffer_store_dwordx4 v[88:91], v{V_L16}, {WSRD}, s{S_PPZ} offen"], None)
    sched[22] = ([f"buffer_store_dwordx4 v[88:91], v{V_L16}, {WSRD}, s{S_PPZ} offen offset:1024"], None)
    i = 0
    for c in range(2, 8):
        w = L.wait(f"m{c}")
        if w: A.e(w)
        for m in qk(c):
            o, v = sched.get(i, ((), None))
            slot(m, o, v)
            i += 1
    stamp(A, opts, 1)
    A.e(f"s_waitcnt vmcnt({nvm})")
    A.e(vms[0]); A.e(vms[1])
    A.e("s_cmp_eq_u32 s26, 63")
    A.e("v_pk_add_f32 v[32:33], v[32:33], v[34:35]")
    A.e("v_pk_add_f32 v[36:37], v[36:37], v[38:39]")
    A.e("v_pk_add_f32 v[40:41], v[40:41], v[42:43]")
    A.e("v_pk_add_f32 v[44:45], v[44:45], v[46:47]")
    A.e("v_cvt_pk_bf16_f32 v108, v32, v33")
    A.e("v_cvt_pk_bf16_f32 v109, v36, v37")
    L.issue(f"ds_write2_b32 v{V_QW}, v108, v108 offset0:0 offset1:1")
    A.e(f"v_cvt_pk_bf16_f32 v{V_KV4}, v40, v41")
    L.issue(f"ds_write2_b32 v{V_QW}, v109, v109 offset0:128 offset1:129")
    A.e(f"v_cvt_pk_bf16_f32 v{V_KV4+1}, v44, v45")
    L.issue(f"ds_write2st64_b32 v{V_QW}, v{V_KV4}, v{V_KV4+1} offset0:16 offset1:18")
    A.e("s_cbranch_scc1 L_last")
    for i in range(2, 8):
        A.e(vms[i])
    A.e(L.waitall())
    A.e("s_barrier")
    stamp(A, opts, 2)
    rd = []
    for ks in range(4):
        rd.append((f"ds_read_b64_tr_b16 v[{88+4*ks}:{89+4*ks}], v{V_QR0} offset:{1024*ks}", f"q{ks}"))
        rd.append((f"ds_read_b64_tr_b16 v[{90+4*ks}:{91+4*ks}], v{V_QR1} offset:{1024*ks}", f"q{ks}"))
    rk = []
    for ks in range(4):
        rk.append((f"ds_read_b64_tr_b16 v[{4*ks}:{4*ks+1}], v{V_QR0} offset:{4096 + 1024*ks}", "km"))
        rk.append((f"ds_read_b64_tr_b16 v[{4*ks+2}:{4*ks+3}], v{V_QR1} offset:{4096 + 1024*ks}", "km"))
    A.e(f"v_xor_b32 v{V_QR1}, 128, v{V_QR0}")
    for x in rd[:4]: em(*x)
    slot(vms[8], rd[4:6]); slot(vms[9], rd[6:8]); slot(vms[10], rk[0:2]); slot(vms[11], rk[2:4])
    sc = []
    for ks in range(4):
        for kt in range(2):
            c = "0" if ks == 0 else f"v[{32+4*kt}:{35+4*kt}]"
            sc.append(f"v_mfma_f32_16x16x32_bf16 v[{32+4*kt}:{35+4*kt}], v[{56+16*kt+4*ks}:{59+16*kt+4*ks}], v[{88+4*ks}:{91+4*ks}], {c}")
    kd = k_dma(110)
    if opts.get("x_nokdma"): kd = ["s_nop 0"] * 6
    A.e(L.wait("q0")); slot(sc[0], rk[4:6]); slot(sc[1], rk[6:8])
    w = L.wait("q1")
    if w: A.e(w)
    slot(sc[2], [kd[0]], kd[1]); slot(sc[3], [kd[2], kd[3]])
    w = L.wait("q2")
    if w: A.e(w)
    slot(sc[4], [kd[4]]); slot(sc[5], [kd[5]])
    w = L.wait("q3")
    if w: A.e(w)
    slot(sc[6]); slot(sc[7])
    A.e(L.wait("km"))
    ms = []
    for ks in range(4):
        c = "0" if ks == 0 else "v[40:43]"
        ms.append(f"v_mfma_f32_16x16x32_bf16 v[40:43], v[{4*ks}:{4*ks+3}], v[{88+4*ks}:{91+4*ks}], {c}")
    slot(ms[0], [(f"ds_read_b64_tr_b16 v[56:57], v{V_VXA}", "vx"), (f"ds_read_b64_tr_b16 v[58:59], v{V_VXA} offset:1024", "vx")], f"v_xor_b32 v110, 32, v{V_VXA}")
    slot(ms[1], [(f"ds_read_b64_tr_b16 v[60:61], v110", "vx"), (f"ds_read_b64_tr_b16 v[62:63], v110 offset:1024", "vx")])
    slot(ms[2]); slot(ms[3])
    ops = [(t, cc) for t in range(8) for cc in range(2)]
    slots = [0, 8, 16, 24, 44, 32, 96]
    def wo_rd(i):
        t, cc = ops[i]
        b = slots[i % len(slots)]
        return [(f"ds_read_b128 v[{b}:{b+3}], v{V_WOL} offset:{cc*16384 + t*2048}", f"w{i}"),
                (f"ds_read_b128 v[{b+4}:{b+7}], v{V_WOL} offset:{cc*16384 + t*2048 + 1024}", f"w{i}")]
    slot(vms[12], wo_rd(0)); slot(vms[13], wo_rd(1)); slot(vms[14]); slot(vms[15])
    stamp(A, opts, 3)
    A.e("v_max3_f32 v44, v32, v33, v34")
    A.e("v_max3_f32 v45, v35, v36, v37")
    A.e("v_max3_f32 v44, v44, v38, v39")
    A.e("v_max3_f32 v45, v45, v40, v41")
    A.e("v_max_f32 v46, v44, v45")
    A.e("v_max_f32 v47, v44, v45")
    for x in wo_rd(2): em(*x)
    A.e("v_permlane32_swap_b32 v46, v47")
    A.e("v_max_f32 v44, v46, v47")
    A.e("v_max_f32 v45, v46, v47")
    for x in wo_rd(3): em(*x)
    A.e("v_permlane16_swap_b32 v44, v45")
    A.e("v_max_f32 v44, v44, v45")
    A.e(f"v_mul_f32 v44, s{S_C}, v44")
    for j in range(5):
        A.e(f"v_pk_fma_f32 v[{32+2*j}:{33+2*j}], v[{32+2*j}:{33+2*j}], s[{S_C}:{S_C+1}], v[44:45] op_sel_hi:[1,1,0] neg_lo:[0,0,1] neg_hi:[0,0,1]")
    for j in range(10):
        A.e(f"v_exp_f32 v{32+j}, v{32+j}")
    A.e("v_pk_add_f32 v[48:49], v[48:49], v[50:51]")
    A.e(f"v_cvt_pk_bf16_f32 v{V_PX}, v32, v33")
    A.e(f"v_cvt_pk_bf16_f32 v{V_PX+1}, v34, v35")
    A.e(f"v_cvt_pk_bf16_f32 v{V_PX+2}, v36, v37")
    A.e(f"v_cvt_pk_bf16_f32 v{V_PX+3}, v38, v39")
    A.e("v_pk_add_f32 v[52:53], v[52:53], v[54:55]")
    A.e(L.wait("vx"))
    A.e(f"v_cvt_pk_bf16_f32 v{V_KV4+2}, v48, v49")
    A.e("v_mfma_f32_16x16x32_bf16 v[96:99], v[56:59], v[%d:%d], 0" % (V_PX, V_PX + 3))
    A.e(f"v_cvt_pk_bf16_f32 v{V_KV4+3}, v52, v53")
    A.e("v_mfma_f32_16x16x32_bf16 v[100:103], v[60:63], v[%d:%d], 0" % (V_PX, V_PX + 3))
    A.e(f"v_cvt_pk_bf16_f32 v{V_PM0}, v40, v41")
    A.e(f"v_cvt_pk_bf16_f32 v{V_PM1+1}, v40, v41")
    A.e("v_pk_add_f32 v[52:53], v[32:33], v[34:35]")
    stamp(A, opts, 4)
    if flags and opts.get("prompt"):
        A.e(f"s_cmp_ge_u32 s26, {opts['prompt']}")
        A.e("s_cbranch_scc1 L_pub_data")
        A.label("L_pub_data_ok")
    A.e(f"v_mfma_f32_16x16x16_bf16 v[96:99], v[{V_KV4+2}:{V_KV4+3}], v[{V_PM0}:{V_PM0+1}], v[96:99]")
    A.e("v_pk_add_f32 v[54:55], v[36:37], v[38:39]")
    A.e(f"v_mfma_f32_16x16x16_bf16 v[100:103], v[{V_KV4+2}:{V_KV4+3}], v[{V_PM1}:{V_PM1+1}], v[100:103]")
    A.e("v_pk_add_f32 v[52:53], v[52:53], v[40:41]")
    A.e("v_pk_add_f32 v[52:53], v[52:53], v[54:55]")
    A.e("v_mov_b64 v[48:49], 0")
    A.e("v_add_f32 v54, v52, v53")
    A.e("v_add_f32 v55, v52, v53")
    A.e("s_lshr_b32 s27, s25, 1")
    A.e("s_lshl_b32 s27, s27, 10")
    A.e("v_permlane32_swap_b32 v54, v55")
    A.e("v_add_f32 v52, v54, v55")
    A.e("v_add_f32 v53, v54, v55")
    A.e("v_mfma_f32_32x32x8_bf16 v[64:79], v[48:49], v[48:49], 0")
    A.e("s_nop 0")
    A.e("v_permlane16_swap_b32 v52, v53")
    A.e("v_add_f32 v52, v52, v53")
    A.e("v_rcp_f32 v52, v52")
    A.e(f"v_add_u32 v54, s27, v{V_L16}")
    for j in range(4):
        A.e(f"v_pk_mul_f32 v[{96+2*j}:{97+2*j}], v[{96+2*j}:{97+2*j}], v[52:53] op_sel_hi:[1,0]")
    for j in range(4):
        A.e(f"v_cvt_pk_bf16_f32 v{V_PX+j}, v{96+2*j}, v{97+2*j}")
    A.e(f"s_mov_b64 exec, s[{S_OXM}:{S_OXM+1}]")
    L.issue(f"ds_write_b128 v54, v[{V_PX}:{V_PX+3}] offset:{L_OX}", "ow")
    A.e("s_mov_b64 exec, -1")
    A.e("v_mfma_f32_32x32x8_bf16 v[80:95], v[48:49], v[48:49], 0")
    for x in wo_rd(5): em(*x)
    vd = v_dma()
    if opts.get("x_novdma"): vd = ["s_nop 0"] * 6
    flush(A, vd[:3])
    A.e(L.wait("ow"))
    A.e("s_barrier")
    stamp(A, opts, 5)
    L.issue(f"ds_read_b128 v[56:59], v{V_L16} offset:{L_OX}", "oa")
    L.issue(f"ds_read_b128 v[60:63], v{V_L16} offset:{L_OX + 1024}", "oa")
    for x in wo_rd(4): em(*x)
    for x in wo_rd(6): em(*x)
    flush(A, vd[3:])
    A.e(L.wait("oa"))
    wo_m = []
    for i in range(16):
        t, cc = ops[i]
        b = slots[i % len(slots)]
        acc = 64 + 4 * t
        wo_m.append(f"v_smfmac_f32_16x16x64_bf16 v[{acc}:{acc+3}], v[{56+4*cc}:{59+4*cc}], v[{b}:{b+7}], v{V_IDX}")
    def ext(t):
        a = 64 + 4 * t; g = 64 + 16 * (t // 4)
        return [f"v_pk_add_f32 v[{a}:{a+1}], v[{a}:{a+1}], v[{a+2}:{a+3}]", f"v_cvt_pk_bf16_f32 v{g + t % 4}, v{a}, v{a+1}"]
    vq = []
    for i in range(16):
        w = L.wait(f"w{i}")
        if w: A.e(w)
        o = wo_rd(i + 7) if i + 7 < 16 else []
        if i >= 3 and (i - 3) % 2 == 0: vq += ext((i - 3) // 2)
        if i == 12: o = [f"buffer_store_dwordx4 v[64:67], v{V_PST}, {WSRD}, s{S_PST} offen", f"s_add_u32 s{S_PST}, s{S_PST}, 0x8000"]
        slot(wo_m[i], o, vq.pop(0) if vq else None)
    flush(A, vq)
    A.e("v_mov_b64 v[32:33], 0")
    A.e("v_mov_b64 v[34:35], 0")
    A.e("v_mov_b64 v[36:37], 0")
    A.e("v_mov_b64 v[38:39], 0")
    A.e("v_mov_b64 v[40:41], 0")
    A.e("v_mov_b64 v[42:43], 0")
    flush(A, ext(7))
    A.e(f"buffer_store_dwordx4 v[80:83], v{V_PST}, {WSRD}, s{S_PST} offen")
    stamp(A, opts, 6)
    for r in range(44, 56, 2):
        A.e(f"v_mov_b64 v[{r}:{r+1}], 0")
    flush(A, ms_addr())
    def p_ld(b):
        return [f"buffer_load_dwordx4 v[{b}:{b+3}], v{V_L16}, {WSRD}, s{S_PLD} offen sc1",
                f"buffer_load_dwordx4 v[{b+4}:{b+7}], v{V_L16}, {WSRD}, s{S_PLD} offen offset:1024 sc1"]
    for _ in range(opts.get("d1", 0)): A.e("s_nop 7")
    flush(A, p_ld(0))
    for _ in range(opts.get("d1b", 3)): A.e("s_nop 7")
    A.e(f"s_mov_b32 s{S_SPIN}, 0")
    flush(A, p_ld(16))
    A.label("L_poll1")
    A.e("s_waitcnt vmcnt(2)")
    flush(A, chk8(0, 108))
    A.e("s_cbranch_vccz L_h1_A")
    flush(A, p_ld(0))
    A.e("s_waitcnt vmcnt(2)")
    flush(A, chk8(16, 108))
    A.e("s_cbranch_vccz L_h1_B")
    flush(A, p_ld(16))
    A.e(f"s_add_u32 s{S_SPIN}, s{S_SPIN}, 1")
    A.e(f"s_cmp_gt_u32 s{S_SPIN}, {SPIN_MAX}")
    A.e("s_cbranch_scc0 L_poll1")
    A.e("s_branch L_fail")
    def unpack(b):
        for d in range(4):
            A.e(f"v_dot2_f32_bf16 v{8+2*d}, v{b+d}, s{S_LO}, 0")
            A.e(f"v_dot2_f32_bf16 v{9+2*d}, v{b+d}, s{S_HI}, 0")
        for d in range(4):
            A.e(f"v_dot2_f32_bf16 v{8+2*d}, v{b+4+d}, s{S_LO}, v{8+2*d}")
            A.e(f"v_dot2_f32_bf16 v{9+2*d}, v{b+4+d}, s{S_HI}, v{9+2*d}")
    A.label("L_h1_B")
    unpack(16)
    A.e("s_branch L_h1_join")
    A.label("L_h1_A")
    stamp(A, opts, 7)
    unpack(0)
    A.label("L_h1_join")
    stamp(A, opts, 10)
    A.e("s_nop 0")
    for d in range(4):
        A.e(f"v_permlane32_swap_b32 v{8+2*d}, v{9+2*d}")
    for d in range(4):
        A.e(f"v_add_f32 v{8+2*d}, v{8+2*d}, v{9+2*d}")
    A.e("v_mov_b32 v24, -1")
    A.e("v_permlane16_swap_b32 v8, v10")
    A.e("v_permlane16_swap_b32 v12, v14")
    A.e("v_add_f32 v8, v8, v10")
    A.e("v_add_f32 v12, v12, v14")
    A.e("s_nop 0")
    A.e("v_add_f32_dpp v8, v8, v8 row_ror:8 row_mask:0xf bank_mask:0xf")
    A.e("v_add_f32_dpp v12, v12, v12 row_ror:8 row_mask:0xf bank_mask:0xf")
    A.e("s_nop 0")
    A.e("v_add_f32_dpp v8, v8, v8 row_ror:4 row_mask:0xf bank_mask:0xf")
    A.e("v_add_f32_dpp v12, v12, v12 row_ror:4 row_mask:0xf bank_mask:0xf")
    A.e("s_nop 1")
    A.e("v_mov_b32_dpp v9, v8 quad_perm:[1,0,3,2] row_mask:0xf bank_mask:0xf")
    A.e("v_mov_b32_dpp v13, v12 quad_perm:[1,0,3,2] row_mask:0xf bank_mask:0xf")
    A.e("v_cvt_pk_bf16_f32 v10, v8, v9")
    A.e("v_cvt_pk_bf16_f32 v14, v12, v13")
    A.e(f"v_cndmask_b32 v10, v10, v14, s[{S_B2M}:{S_B2M+1}]")
    A.e(f"s_mov_b64 exec, s[{S_MSTM}:{S_MSTM+1}]")
    A.e(f"buffer_store_dword v10, v{V_MST}, {WSRD}, s{S_MST} offen")
    A.e(f"buffer_store_dword v24, v{V_MST}, {WSRD}, s{S_MPZ} offen")
    A.e("s_mov_b64 exec, -1")
    if flags and opts.get("prompt"):
        A.e(f"s_cmp_ge_u32 s26, {opts['prompt']}")
        A.e("s_cbranch_scc1 L_pub_flag")
        A.label("L_pub_flag_ok")
    if opts.get("total"): A.e(f"s_add_u32 s68, s68, s{S_SPIN}")
    stamp(A, opts, 8)
    for r in (S_MEMRD, S_MST, S_MPZ):
        A.e(f"s_xor_b32 s{r}, s{r}, 0x2000")
    for r in (S_PLD, S_PPZ, S_PSTB):
        A.e(f"s_xor_b32 s{r}, s{r}, 0x40000")
    A.e("s_add_u32 s26, s26, 1")
    A.e("s_branch L_step")

    if flags and opts.get("prompt"):
        A.label("L_pub_data")
        A.e(f"buffer_store_dwordx4 v[{V_KV4}:{V_KV4+3}], v{V_L16}, {WSRD}, s{S_KM} offen sc1")
        A.e("s_branch L_pub_data_ok")
        A.label("L_pub_flag")
        A.e(f"s_add_u32 s27, s{S_FKM}, {FL_SEG}")
        A.e("s_mov_b64 exec, 1")
        A.e(f"buffer_store_dword v{V_IDX}, v{V_PM0+1}, {WSRD}, s27 offen sc1")
        A.e("s_mov_b64 exec, -1")
        A.e("s_branch L_pub_flag_ok")
    if flags:
        A.label("L_fkv_slow")
        A.e("s_cmp_ge_u32 s26, 62")
        A.e("s_cbranch_scc1 L_fkv_ok")
        A.e(f"s_mov_b32 s{S_SPIN}, 0")
        A.label("L_fkv_loop")
        A.e(f"v_lshrrev_b32 v111, 2, v{V_L16}")
        A.e(f"buffer_load_dword v{V_F}, v111, {WSRD}, s{S_FKV} offen sc1")
        A.e(f"s_add_u32 s{S_SPIN}, s{S_SPIN}, 1")
        A.e(f"s_cmp_gt_u32 s{S_SPIN}, {SPIN_MAX*10}")
        A.e("s_cbranch_scc1 L_fail")
        A.e("s_waitcnt vmcnt(0)")
        A.e(f"v_cmp_eq_u32 vcc, 0, v{V_F}")
        A.e("s_and_b32 vcc_lo, vcc_lo, 3")
        A.e("s_cbranch_scc1 L_fkv_loop")
        A.e("s_branch L_fkv_ok")
    A.label("L_last")
    for m in vms[2:]:
        A.e(m)
    A.e("s_nop 7")
    A.e("v_pk_add_f32 v[48:49], v[48:49], v[50:51]")
    A.e("v_pk_add_f32 v[52:53], v[52:53], v[54:55]")
    A.e(f"v_cvt_pk_bf16_f32 v{V_KV4+2}, v48, v49")
    A.e(f"v_cvt_pk_bf16_f32 v{V_KV4+3}, v52, v53")
    A.e(f"buffer_store_dwordx4 v[{V_KV4}:{V_KV4+3}], v{V_L16}, {WSRD}, s{S_KM} offen sc1")
    A.e("s_waitcnt vmcnt(0)")
    if flags:
        A.e("s_mov_b64 exec, 1")
        A.e(f"buffer_store_dword v{V_IDX}, v{V_PM0+1}, {WSRD}, s{S_FKM} offen sc1")
        A.e(f"s_add_u32 s{S_FKM}, s{S_FKM}, {FL_SEG}")
        A.e(f"buffer_store_dword v{V_IDX}, v{V_PM0+1}, {WSRD}, s{S_FKM} offen sc1")
        A.e("s_mov_b64 exec, -1")
        A.e("s_waitcnt vmcnt(0)")
    if opts.get("trace"):
        A.e("s_cmp_lg_u32 s25, 0")
        A.e("s_cbranch_scc1 L_notrace2")
        A.e("s_memrealtime s[60:61]")
        A.e("s_lshl_b32 s28, s24, 11")
        A.e(f"s_add_u32 s27, s28, {hex(WS_TRACE + 256)}")
        A.e("s_waitcnt lgkmcnt(0)")
        A.e("v_mov_b32 v108, s60")
        A.e("s_mov_b64 exec, 1")
        A.e(f"buffer_store_dword v108, v{V_PM0+1}, {WSRD}, s27 offen")
        A.e("s_mov_b64 exec, -1")
        A.e("s_waitcnt vmcnt(0)")
        A.label("L_notrace2")
    if opts.get("total"):
        A.e("s_memtime s[86:87]")
        A.e("s_memrealtime s[88:89]")
        A.e("s_waitcnt lgkmcnt(0)")
        A.e("s_sub_u32 s64, s84, s80")
        A.e("s_sub_u32 s65, s88, s84")
        A.e("s_sub_u32 s66, s86, s82")
    if opts.get("stamps") or opts.get("total"):
        A.e("s_cmp_lg_u32 s24, %d" % opts.get("rep", 0))
        A.e("s_cbranch_scc1 L_exit")
        A.e("s_cmp_lg_u32 s25, 0")
        A.e("s_cbranch_scc1 L_exit")
        A.e(f"s_load_dwordx2 s[36:37], s[0:1], {KA_DBG}")
        A.e("s_waitcnt lgkmcnt(0)")
        A.e("v_mov_b32 v1, 0")
        for i in range(12):
            A.e(f"v_mov_b32 v2, s{64+i}")
            A.e(f"global_store_dword v1, v2, s[36:37] offset:{128 + 4*i}")
        A.e("s_waitcnt vmcnt(0)")
    A.e("s_branch L_exit")
    A.label("L_fail")
    A.e("s_mov_b64 exec, -1")
    A.e(f"s_load_dwordx2 s[36:37], s[0:1], {KA_DBG}")
    A.e("s_waitcnt vmcnt(0) lgkmcnt(0)")
    A.e("v_mov_b32 v1, 0")
    A.e("v_mov_b32 v2, 0xdead")
    A.e("global_store_dword v1, v2, s[36:37] offset:252")
    A.e("s_waitcnt vmcnt(0)")
    A.e("s_branch L_exit")
```

```python
import sys
from asm import *
from layout import *
import chain, chain2, chain3, chain4, chain5, chain6

def header(A, launches):
    A("; generated by gen/main.py")
    for l in launches:
        A(l)
    A('.amdgcn_target "amdgcn-amd-amdhsa--gfx950"')
    A(".text")

def kstart(A, name):
    A(f".globl {name}")
    A(".p2align 8")
    A(f".type {name},@function")
    A(f"{name}:")

def kdesc(A, name, vgpr, sgpr, accum):
    A('.section .rodata,"a"')
    A(".p2align 6")
    A(f".amdhsa_kernel {name}")
    A(f"  .amdhsa_next_free_vgpr {vgpr}")
    A(f"  .amdhsa_next_free_sgpr {sgpr}")
    A(f"  .amdhsa_accum_offset {accum}")
    A("  .amdhsa_group_segment_fixed_size 0")
    A("  .amdhsa_kernarg_size 104")
    A("  .amdhsa_user_sgpr_count 2")
    A("  .amdhsa_user_sgpr_kernarg_segment_ptr 1")
    A("  .amdhsa_system_sgpr_workgroup_id_x 1")
    A(".end_amdhsa_kernel")
    A(".text")

def role_select(A):
    A.e("s_cmp_ge_u32 s2, 256")
    A.e("s_cbranch_scc1 L_exit")
    A.e(f"s_load_dwordx2 s[36:37], s[0:1], {KA_DBG}")
    A.e("s_getreg_b32 s38, hwreg(HW_REG_XCC_ID, 0, 4)")
    A.e("s_waitcnt lgkmcnt(0)")
    A.e("v_mov_b32 v1, 0")
    A.e("v_mov_b32 v2, 1")
    A.e("s_lshl_b32 s39, s38, 2")
    A.e("v_mov_b32 v3, s39")
    A.e("v_cmp_eq_u32 vcc, 0, v0")
    A.e("s_and_saveexec_b64 s[30:31], vcc")
    A.e("s_cbranch_execz L_noat")
    A.e("global_atomic_add v4, v3, v2, s[36:37] sc0")
    A.e("s_waitcnt vmcnt(0)")
    A.e("ds_write_b32 v1, v4")
    A.e("s_waitcnt lgkmcnt(0)")
    A.label("L_noat")
    A.e("s_mov_b64 exec, s[30:31]")
    A.e("s_barrier")
    A.e("ds_read_b32 v4, v1")
    A.e("s_waitcnt lgkmcnt(0)")
    A.e("s_nop 1")
    A.e("v_readfirstlane_b32 s24, v4")
    A.e("s_nop 3")
    A.e("s_barrier")
    A.e("s_cmp_lg_u32 s38, 0")
    A.e("s_cbranch_scc1 L_exit")
    A.e("s_cmp_ge_u32 s24, 32")
    A.e("s_cbranch_scc1 L_exit")

def build_chain_only(path, opts, mod=None):
    A = Asm()
    k = "chain_kernel"
    header(A, [f"; @launch grid=(256,1,1) block=(256,1,1) lds=163840"])
    kstart(A, k)
    role_select(A)
    (mod or chain).gen_chain(A, opts)
    A.label("L_exit")
    A.e("s_endpgm")
    kdesc(A, k, 512, 102, 256)
    open(path, "w").write(A.text())

if __name__ == "__main__":
    build_chain_only("chain_only.s", dict(stamps=False))
    build_chain_only("chain_stamps.s", dict(stamps=True))
    build_chain_only("chain_dump.s", dict(dump=True))
    build_chain_only("chain_total.s", dict(total=True))
    build_chain_only("chain2_only.s", dict(), chain2)
    build_chain_only("chain2_stamps.s", dict(stamps=True), chain2)
    build_chain_only("chain2_total.s", dict(total=True), chain2)
    build_chain_only("chain3_only.s", dict(), chain3)
    build_chain_only("chain3_stamps.s", dict(stamps=True), chain3)
    build_chain_only("chain3_total.s", dict(total=True), chain3)
    build_chain_only("chain3_nc12.s", dict(total=True, nocheck1=True, nocheck2=True), chain3)
    for a in range(9):
        build_chain_only(f"chain3_st{a}.s", dict(stamps=True, nocheck1=True, nocheck2=True, only={a, (a+1) % 9}), chain3)
    for d1, d2 in ((0,0),(4,0),(8,0),(0,4),(0,8),(4,4),(8,4),(8,8),(12,8)):
        build_chain_only(f"chain3_d{d1}_{d2}.s", dict(total=True, d1=d1, d2=d2), chain3)
    build_chain_only("chain4_total.s", dict(total=True), chain4)
    build_chain_only("chain4_nc12.s", dict(total=True, nocheck1=True, nocheck2=True), chain4)
    build_chain_only("chain4_r7.s", dict(total=True, rep=7), chain4)
    for a in range(9):
        build_chain_only(f"chain4_st{a}.s", dict(stamps=True, nocheck1=True, nocheck2=True, only={a, (a+1) % 9}), chain4)
    for d1, d2 in ((2,0),(4,0),(6,0),(0,2),(0,4),(2,2),(4,2),(4,4),(6,4),(6,6),(8,4)):
        build_chain_only(f"chain4_d{d1}_{d2}.s", dict(total=True, d1=d1, d2=d2, rep=7), chain4)
    for d1, d1b, d2 in ((0,3,3),(0,4,4),(4,3,3),(4,4,3),(8,3,3),(0,2,2),(4,3,2),(6,3,4)):
        build_chain_only(f"chain5_d{d1}_{d1b}_{d2}.s", dict(total=True, d1=d1, d1b=d1b, d2=d2, rep=7), chain5)
    build_chain_only("chain6_total.s", dict(total=True, rep=7), chain6)
    for nm, only in (("a", {9, 1}), ("b", {1, 2}), ("c", {2, 3}), ("d", {3, 4}), ("e", {4, 5}), ("f", {5, 6}), ("g", {6, 10}), ("h", {10, 8}), ("i", {8, 9})):
        build_chain_only(f"chain6_st{nm}.s", dict(stamps=True, only=only, rep=7), chain6)
```

```python
from asm import *
from layout import *
import struct, math

S_WS = 20
WSRD = f"s[{S_WS}:{S_WS+3}]"
FORMAT = "0x00020000"

def fbits(x):
    return hex(struct.unpack("<I", struct.pack("<f", x))[0])

def load_srd(A, s, ka, nbytes):
    A.e(f"s_load_dwordx2 s[{s}:{s+1}], s[0:1], {ka}")
def finish_srd(A, s, nbytes):
    A.e(f"s_mov_b32 s{s+2}, {hex(nbytes)}")
    A.e(f"s_mov_b32 s{s+3}, {FORMAT}")

def wave_lane(A):
    A.e("v_lshrrev_b32 v1, 6, v0")
    A.e("v_and_b32 v2, 63, v0")
    A.e("v_readfirstlane_b32 s25, v1")

def xlane_sum(A, v, t):
    for ctl in ("quad_perm:[1,0,3,2]", "quad_perm:[2,3,0,1]", "row_half_mirror", "row_mirror"):
        A.e("s_nop 1")
        A.e(f"v_add_f32_dpp v{v}, v{v}, v{v} {ctl} row_mask:0xf bank_mask:0xf")
    A.e(f"v_mov_b32 v{t}, v{v}")
    A.e("s_nop 1")
    A.e(f"v_permlane16_swap_b32 v{v}, v{t}")
    A.e(f"v_add_f32 v{v}, v{v}, v{t}")
    A.e(f"v_mov_b32 v{t}, v{v}")
    A.e("s_nop 1")
    A.e(f"v_permlane32_swap_b32 v{v}, v{t}")
    A.e(f"v_add_f32 v{v}, v{v}, v{t}")

def round_bf16(A, v):
    A.e(f"v_cvt_pk_bf16_f32 v{v}, v{v}, v{v}")
    A.e(f"v_lshlrev_b32 v{v}, 16, v{v}")

def unpack8(A, src, dst):
    for j in range(4):
        A.e(f"v_lshlrev_b32 v{dst+2*j}, 16, v{src+j}")
        A.e(f"v_and_b32 v{dst+2*j+1}, 0xffff0000, v{src+j}")

def layernorm8(A, x, out, t):
    A.e(f"v_pk_add_f32 v[{t}:{t+1}], v[{x}:{x+1}], v[{x+2}:{x+3}]")
    A.e(f"v_pk_add_f32 v[{t+2}:{t+3}], v[{x+4}:{x+5}], v[{x+6}:{x+7}]")
    A.e(f"v_pk_add_f32 v[{t}:{t+1}], v[{t}:{t+1}], v[{t+2}:{t+3}]")
    A.e(f"v_add_f32 v{t}, v{t}, v{t+1}")
    xlane_sum(A, t, t + 1)
    A.e(f"v_mul_f32 v{t}, {fbits(1.0/512)}, v{t}          ; mean")
    for j in range(8):
        A.e(f"v_sub_f32 v{t+4+j}, v{x+j}, v{t}")
    A.e(f"v_mul_f32 v{t+2}, v{t+4}, v{t+4}")
    for j in range(1, 8):
        A.e(f"v_fmac_f32 v{t+2}, v{t+4+j}, v{t+4+j}")
    xlane_sum(A, t + 2, t + 3)
    A.e(f"v_mul_f32 v{t+2}, {fbits(1.0/512)}, v{t+2}      ; variance")
    round_bf16(A, t + 2)
    A.e(f"v_add_f32 v{t+2}, {fbits(1e-5)}, v{t+2}")
    round_bf16(A, t + 2)
    A.e(f"v_sqrt_f32 v{t+2}, v{t+2}")
    A.e("s_nop 0")
    round_bf16(A, t + 2)
    A.e(f"v_rcp_f32 v{t+2}, v{t+2}")
    round_bf16(A, t)
    for j in range(8):
        A.e(f"v_sub_f32 v{t+4+j}, v{x+j}, v{t}")
    for j in range(4):
        A.e(f"v_cvt_pk_bf16_f32 v{t+1}, v{t+4+2*j}, v{t+5+2*j}")
        A.e(f"v_lshlrev_b32 v{t+4+2*j}, 16, v{t+1}")
        A.e(f"v_and_b32 v{t+5+2*j}, 0xffff0000, v{t+1}")
    for j in range(8):
        A.e(f"v_mul_f32 v{t+4+j}, v{t+4+j}, v{t+2}")
    for j in range(4):
        A.e(f"v_cvt_pk_bf16_f32 v{out+j}, v{t+4+2*j}, v{t+5+2*j}")

def gen_init(A):
    A.e("s_cmp_ge_u32 s2, 256")
    A.e("s_cbranch_scc1 L0_exit")
    load_srd(A, 4, KA_X, 0); load_srd(A, 8, KA_MEM0, 0); load_srd(A, S_WS, KA_WS, 0)
    wave_lane(A)
    A.e("s_waitcnt lgkmcnt(0)")
    finish_srd(A, 4, 0x200000); finish_srd(A, 8, 0x2000); finish_srd(A, S_WS, WS_SIZE)
    A.e("v_lshlrev_b32 v3, 4, v2                 ; lane*16")
    A.e("s_lshl_b32 s27, s2, 3")
    A.e("s_lshl_b32 s28, s25, 1")
    A.e("s_add_u32 s27, s27, s28")
    A.e("s_lshl_b32 s27, s27, 10                 ; row*1024")
    A.e("buffer_load_dwordx4 v[8:11], v3, s[4:7], s27 offen")
    A.e("buffer_load_dwordx4 v[12:15], v3, s[4:7], s27 offen offset:1024")
    A.e("v_lshlrev_b32 v4, 4, v0                 ; tid*16")
    for r in range(16, 20): A.e(f"v_mov_b32 v{r}, 0")
    for r in range(20, 24): A.e(f"v_mov_b32 v{r}, -1")
    A.e("s_lshl_b32 s28, s2, 12")
    A.e("s_cmp_ge_u32 s2, 128")
    A.e("s_cbranch_scc1 L0_nop")
    A.e(f"s_add_u32 s29, s28, {hex(WS_P)}")
    A.e(f"buffer_store_dwordx4 v[20:23], v4, {WSRD}, s29 offen")
    A.label("L0_nop")
    A.e("s_cmp_ge_u32 s2, 32")
    A.e("s_cbranch_scc1 L0_noflag")
    A.e(f"s_add_u32 s29, s28, {hex(WS_FLAG)}")
    A.e(f"buffer_store_dwordx4 v[16:19], v4, {WSRD}, s29 offen")
    A.label("L0_noflag")
    A.e("s_cmp_lg_u32 s2, 40")
    A.e("s_cbranch_scc1 L0_nopz")
    for r in range(20, 24): A.e(f"v_mov_b32 v{r}, -1")
    A.e(f"s_mov_b32 s29, {hex(WS_MEM + 8192)}")
    A.e(f"buffer_store_dwordx4 v[20:23], v4, {WSRD}, s29 offen")
    A.e(f"s_mov_b32 s29, {hex(WS_MEM + 8192 + 4096)}")
    A.e(f"buffer_store_dwordx4 v[20:23], v4, {WSRD}, s29 offen")
    A.label("L0_nopz")
    A.e("s_cmp_lg_u32 s2, 41")
    A.e("s_cbranch_scc1 L0_nomem")
    A.e("v_and_b32 v5, 15, v0                    ; rho")
    A.e("v_lshrrev_b32 v6, 2, v5")
    A.e("v_lshlrev_b32 v6, 1, v6")
    A.e("v_and_b32 v7, 1, v5")
    A.e("v_add_u32 v6, v6, v7                    ; i")
    A.e("v_lshlrev_b32 v6, 10, v6                ; i*1024")
    A.e("v_bfe_u32 v7, v5, 1, 1                  ; hf")
    A.e("v_lshl_add_u32 v6, v7, 6, v6            ; + hf*32*2")
    A.e("v_bfe_u32 v7, v0, 4, 2                  ; ga")
    A.e("v_lshl_add_u32 v6, v7, 3, v6            ; + 4*ga*2")
    A.e("v_lshrrev_b32 v7, 6, v0                 ; c (0..3)")
    A.e("v_lshl_add_u32 v6, v7, 7, v6            ; + 64*2*c")
    A.e("buffer_load_dwordx2 v[20:21], v6, s[8:11], 0 offen")
    A.e("buffer_load_dwordx2 v[22:23], v6, s[8:11], 0 offen offset:32")
    A.e("buffer_load_dwordx2 v[24:25], v6, s[8:11], 0 offen offset:512")
    A.e("buffer_load_dwordx2 v[26:27], v6, s[8:11], 0 offen offset:544")
    A.e("s_waitcnt vmcnt(0)")
    A.e(f"s_mov_b32 s29, {hex(WS_MEM)}")
    A.e(f"buffer_store_dwordx4 v[20:23], v4, {WSRD}, s29 offen")
    A.e(f"s_mov_b32 s29, {hex(WS_MEM + 4096)}")
    A.e(f"buffer_store_dwordx4 v[24:27], v4, {WSRD}, s29 offen")
    A.label("L0_nomem")
    A.e("s_waitcnt vmcnt(0)")
    A.e(f"s_add_u32 s27, s27, {hex(WS_XN)}")
    for k in range(2):
        unpack8(A, 8 + 4 * k, 32)
        layernorm8(A, 32, 28, 40)
        A.e(f"buffer_store_dwordx4 v[28:31], v3, {WSRD}, s27 offen offset:{1024*k}")
        A.e("s_nop 1")
    A.e("s_waitcnt vmcnt(0)")
    A.label("L0_exit")
    A.e("s_endpgm")

def load_weights_32col(A, srd, s_off, rowstride, nks, stage_base_s, areg0, vtmp):
    assert nks % 1 == 0
    A.e(f"v_lshrrev_b32 v{vtmp}, 2, v2")
    A.e(f"s_mov_b32 s33, {rowstride}")
    A.e(f"v_mul_lo_u32 v{vtmp}, v{vtmp}, s33")
    A.e(f"v_and_b32 v{vtmp+1}, 3, v2")
    A.e(f"v_lshl_add_u32 v{vtmp}, v{vtmp+1}, 4, v{vtmp}")
    for ks in range(nks):
        A.e(f"s_add_u32 m0, s{stage_base_s}, {ks*1024}")
        if ks: A.e(f"s_add_u32 s{s_off}, s{s_off}, {16*rowstride}")
        else: A.e("s_nop 0")
        A.e(f"buffer_load_dwordx4 v{vtmp}, s[{srd}:{srd+3}], s{s_off} offen lds")
    A.e(f"v_lshrrev_b32 v{vtmp}, 5, v2")
    A.e(f"v_lshlrev_b32 v{vtmp}, 3, v{vtmp}")
    A.e(f"v_bfe_u32 v{vtmp+1}, v2, 2, 2")
    A.e(f"v_add_u32 v{vtmp}, v{vtmp}, v{vtmp+1}")
    A.e(f"v_lshlrev_b32 v{vtmp}, 6, v{vtmp}")
    A.e(f"v_bfe_u32 v{vtmp+1}, v2, 4, 1")
    A.e(f"v_lshl_add_u32 v{vtmp}, v{vtmp+1}, 5, v{vtmp}")
    A.e(f"v_and_b32 v{vtmp+1}, 3, v2")
    A.e(f"v_lshl_add_u32 v{vtmp}, v{vtmp+1}, 3, v{vtmp}")
    A.e(f"v_add_u32 v{vtmp}, s{stage_base_s}, v{vtmp}")
    for ks in range(nks):
        if ks % 4 == 0:
            rem = nks - min(nks, ks + 4)
            A.e(f"s_waitcnt vmcnt({rem})")
        for m in range(2):
            A.e(f"ds_read_b64_tr_b16 a[{areg0+4*ks+2*m}:{areg0+4*ks+2*m+1}], v{vtmp} offset:{ks*1024 + m*256}")
        if ks % 4 == 3 or ks == nks - 1:
            A.e("s_waitcnt lgkmcnt(0)")

def gen_proj(A, L, cfg):
    BUF = [0, 33280]; OST = 66560; ORS = 272
    ws, seg_stride = cfg["wstride"], cfg["seg_stride"]
    BUFX = BUF[1]
    A.e(f"s_cmp_ge_u32 s26, 64")
    A.e(f"s_cbranch_scc1 {L}_exit")
    A.e("s_lshl_b32 s29, s25, 6")
    A.e("s_add_u32 s29, s29, s24")
    A.e("s_lshl_b32 s30, s25, 15")
    load_weights_32col(A, 4, 29, ws, 32, 30, 0, 8)
    if cfg.get("after_weights"): cfg["after_weights"](A)
    A.e("s_barrier")
    A.e("v_lshlrev_b32 v3, 4, v2                 ; lane*16")
    A.e("v_and_b32 v4, 31, v2")
    A.e("s_movk_i32 s33, 1040")
    A.e("v_mul_lo_u32 v4, v4, s33")
    A.e("v_lshrrev_b32 v5, 5, v2                 ; hi")
    A.e("v_lshl_add_u32 v4, v5, 4, v4")
    A.e("v_and_b32 v6, 31, v2")
    A.e(f"s_movk_i32 s33, {ORS}")
    A.e("v_mul_lo_u32 v6, v6, s33")
    A.e("v_lshl_add_u32 v6, v5, 3, v6")
    A.e("s_lshl_b32 s33, s25, 6")
    A.e(f"s_add_u32 s33, s33, {OST}")
    A.e("v_add_u32 v6, s33, v6")
    A.e("v_lshrrev_b32 v7, 4, v2")
    A.e("s_lshl_b32 s33, s25, 3")
    A.e("v_add_u32 v7, s33, v7                   ; row")
    A.e("v_and_b32 v8, 15, v2")
    A.e(f"s_movk_i32 s33, {ORS}")
    A.e("v_mul_lo_u32 v9, v7, s33")
    A.e("v_lshl_add_u32 v9, v8, 4, v9")
    A.e(f"v_add_u32 v9, {OST}, v9")
    A.e(f"s_mov_b32 s33, {cfg['out_row']}")
    A.e("v_mul_lo_u32 v10, v7, s33")
    A.e("v_lshl_add_u32 v10, v8, 4, v10")
    def dma(buf_s):
        A.e("s_lshl_b32 s33, s31, 5")
        A.e("s_lshl_b32 s34, s25, 3")
        A.e("s_add_u32 s33, s33, s34")
        A.e("s_lshl_b32 s33, s33, 10")
        A.e(f"s_add_u32 s33, s33, {hex(cfg['a_base'])}")
        A.e("s_mul_i32 s34, s34, 1040")
        A.e(f"s_add_u32 s34, s34, s{buf_s}")
        for r in range(8):
            A.e(f"s_add_u32 m0, s34, {r*1040}")
            if r: A.e("s_add_u32 s33, s33, 1024")
            else: A.e("s_nop 0")
            A.e(f"buffer_load_dwordx4 v3, {WSRD}, s33 offen sc1 lds")
    A.e("s_mov_b32 s35, 0")
    A.e("s_mov_b32 s31, s26")
    if cfg.get("wait_in"): cfg["wait_in"](A, 31)
    dma(35)
    A.e("s_mov_b32 s57, 1")
    A.label(f"{L}_loop")
    A.e("s_cmp_eq_u32 s57, 1")
    A.e(f"s_cbranch_scc1 {L}_have")
    A.e("s_mov_b32 s31, s26")
    if cfg.get("wait_in"): cfg["wait_in"](A, 31)
    dma(35)
    A.label(f"{L}_have")
    A.e("s_waitcnt vmcnt(0)")
    A.e("s_barrier")
    A.e(f"s_xor_b32 s36, s35, {BUFX}")
    A.e(f"s_add_u32 s31, s26, {seg_stride}")
    A.e("s_mov_b32 s57, 0")
    A.e("s_cmp_ge_u32 s31, 64")
    A.e(f"s_cbranch_scc1 {L}_nodma")
    if cfg.get("try_in"):
        cfg["try_in"](A, 31)
        A.e(f"s_cbranch_scc0 {L}_nodma")
    A.e("s_mov_b32 s57, 1")
    dma(36)
    A.label(f"{L}_nodma")
    A.e("v_add_u32 v11, s35, v4")
    for ks in range(4):
        A.e(f"ds_read_b128 v[{32+4*ks}:{35+4*ks}], v11 offset:{ks*32}")
    for ks in range(32):
        A.e(f"s_waitcnt lgkmcnt({min(3, 31-ks)})")
        c = "0" if ks == 0 else "v[16:31]"
        b = 32 + 4 * (ks % 5)
        A.e(f"v_mfma_f32_32x32x16_bf16 v[16:31], a[{4*ks}:{4*ks+3}], v[{b}:{b+3}], {c}")
        if ks + 4 < 32:
            b2 = 32 + 4 * ((ks + 4) % 5)
            A.e(f"ds_read_b128 v[{b2}:{b2+3}], v11 offset:{(ks+4)*32}")
    A.e("s_nop 7")
    A.e("s_nop 4")
    for j in range(8):
        A.e(f"v_cvt_pk_bf16_f32 v{52+j}, v{16+2*j}, v{17+2*j}")
    if cfg.get("relu"):
        for j in range(8):
            A.e(f"v_pk_max_i16 v{52+j}, v{52+j}, 0")
    for q in range(4):
        A.e(f"ds_write_b64 v6, v[{52+2*q}:{53+2*q}] offset:{16*q}")
    A.e("s_waitcnt lgkmcnt(0)")
    A.e("s_barrier")
    A.e("ds_read_b128 v[32:35], v9")
    A.e(f"ds_read_b128 v[36:39], v9 offset:{4*ORS}")
    A.e(f"s_mul_i32 s33, s26, {cfg['out_seg']}")
    A.e("s_add_u32 s33, s33, s28")
    A.e(f"s_add_u32 s34, s33, {4*cfg['out_row']}")
    A.e("s_waitcnt lgkmcnt(0)")
    A.e(f"buffer_store_dwordx4 v[32:35], v10, {WSRD}, s33 offen sc1")
    A.e(f"buffer_store_dwordx4 v[36:39], v10, {WSRD}, s34 offen sc1")
    if cfg.get("signal"): cfg["signal"](A, L)
    A.e("s_mov_b32 s35, s36")
    A.e(f"s_add_u32 s26, s26, {seg_stride}")
    A.e("s_cmp_lt_u32 s26, 64")
    A.e(f"s_cbranch_scc1 {L}_loop")
    A.e("s_waitcnt vmcnt(0)")

CSCALE = struct.unpack("<I", struct.pack("<f", (128 ** -0.5) * math.log2(math.e)))[0]

def gen_attn(A, L, cfg):
    seg_stride = cfg["seg_stride"]
    VS = 0; KT = 0x2000; OST = 0x3000; ORS = 272
    A.e("s_cmp_ge_u32 s26, 64")
    A.e(f"s_cbranch_scc1 {L}_exit")
    A.e("s_and_b32 s27, s25, 1                   ; qt")
    A.e("s_lshr_b32 s28, s25, 1                  ; dhh")
    A.e("v_and_b32 v3, 15, v2                    ; n")
    A.e("v_lshrrev_b32 v4, 4, v2                 ; g")
    A.e("v_bfe_u32 v5, v2, 2, 2                  ; r")
    A.e("v_and_b32 v6, 3, v2                     ; cq")
    A.e("v_lshlrev_b32 v7, 4, v2                 ; l*16")
    A.e("v_lshlrev_b32 v8, 8, v3")
    A.e("v_lshl_add_u32 v8, v4, 4, v8")
    A.e("s_lshl_b32 s33, s25, 5")
    A.e("v_add_u32 v9, s33, v3")
    A.e("v_lshlrev_b32 v9, 5, v9")
    A.e("v_lshrrev_b32 v10, 1, v9")
    A.e("v_and_b32 v10, 128, v10")
    A.e("v_xor_b32 v9, v9, v10")
    A.e("v_lshl_add_u32 v9, v4, 3, v9")
    A.e(f"v_add_u32 v9, {KT}, v9")
    A.e("v_lshlrev_b32 v10, 3, v4")
    A.e("v_add_u32 v10, v10, v5")
    A.e("v_lshlrev_b32 v10, 5, v10")
    A.e("v_lshrrev_b32 v11, 1, v10")
    A.e("v_and_b32 v11, 128, v11")
    A.e("v_xor_b32 v10, v10, v11")
    A.e("v_lshl_add_u32 v10, v6, 3, v10")
    A.e(f"v_add_u32 v10, {KT}, v10")
    A.e("v_xor_b32 v11, 128, v10")
    A.e("v_lshlrev_b32 v12, 2, v4")
    A.e("v_add_u32 v12, v12, v5")
    A.e("v_and_b32 v13, 7, v12")
    A.e("s_lshl_b32 s33, s28, 2")
    A.e("v_xor_b32 v13, s33, v13")
    A.e("v_lshlrev_b32 v13, 5, v13")
    A.e("v_lshl_add_u32 v12, v12, 8, v13")
    A.e("v_lshl_add_u32 v12, v6, 3, v12")
    A.e(f"v_add_u32 v12, {VS}, v12")
    A.e("v_lshrrev_b32 v13, 1, v3")
    A.e("v_xor_b32 v13, v13, v4")
    A.e("v_lshlrev_b32 v13, 5, v13")
    A.e("v_lshl_add_u32 v13, v4, 8, v13")
    A.e("v_and_b32 v14, 1, v2")
    A.e("v_lshl_add_u32 v13, v14, 4, v13")
    A.e("v_xor_b32 v14, 128, v13")
    A.e("s_lshl_b32 s33, s27, 4")
    A.e("v_add_u32 v15, s33, v3")
    A.e(f"s_movk_i32 s33, {ORS}")
    A.e("v_mul_lo_u32 v15, v15, s33")
    A.e("v_lshl_add_u32 v15, v4, 3, v15")
    A.e("s_lshl_b32 s33, s28, 7")
    A.e(f"s_add_u32 s33, s33, {OST}")
    A.e("v_add_u32 v15, s33, v15")
    A.e("s_lshl_b32 s33, s25, 3")
    A.e("v_add_u32 v17, s33, v4                  ; row = 8w + (l>>4)")
    A.e(f"s_movk_i32 s33, {ORS}")
    A.e("v_mul_lo_u32 v16, v17, s33")
    A.e("v_lshl_add_u32 v16, v3, 4, v16")
    A.e(f"v_add_u32 v16, {OST}, v16")
    A.e("v_lshlrev_b32 v17, 13, v17")
    A.e("v_lshl_add_u32 v17, v3, 4, v17")
    A.e("s_lshl_b32 s33, s27, 4")
    A.e("v_add_u32 v18, s33, v3")
    A.e("v_lshlrev_b32 v19, 2, v4")
    A.e("v_sub_u32 v18, v18, v19")
    for kt in range(2):
        for r in range(4):
            A.e(f"v_cmp_le_i32 s[{40+2*(4*kt+r)}:{41+2*(4*kt+r)}], {16*kt+r}, v18")
    A.e(f"s_mov_b32 s56, {hex(CSCALE)}")
    A.e(f"s_mov_b32 s57, {hex(CSCALE)}")
    A.e(f"v_mov_b32 v18, {fbits(-1e30)}")
    A.e("v_mov_b32 v21, 0                        ; [PM,0] = v[20:21]")
    A.e("v_mov_b32 v22, 0                        ; [0,PM] = v[22:23]")
    A.label(f"{L}_loop")
    if cfg.get("wait_in"): cfg["wait_in"](A, 26)
    A.e("s_lshl_b32 s33, s26, 5")
    A.e("s_add_u32 s33, s33, s24                 ; s*32+h")
    A.e("s_lshl_b32 s34, s33, 13")
    A.e(f"s_add_u32 s35, s34, {hex(WS_KX)}")
    A.e("s_add_u32 s36, s35, 4096")
    for kt in range(2):
        for ks in range(4):
            A.e(f"buffer_load_dwordx4 v[{32+16*kt+4*ks}:{35+16*kt+4*ks}], v8, {WSRD}, s{35+kt} offen offset:{64*ks} sc1")
    A.e("s_lshl_b32 s37, s27, 12")
    A.e("s_add_u32 s37, s37, s34")
    A.e(f"s_add_u32 s37, s37, {hex(WS_QX)}")
    for ks in range(4):
        A.e(f"buffer_load_dwordx4 v[{64+4*ks}:{67+4*ks}], v8, {WSRD}, s37 offen offset:{64*ks} sc1")
    A.e("s_lshl_b32 s38, s33, 12")
    A.e(f"s_add_u32 s38, s38, {hex(WS_KMVM)}")
    A.e("s_lshl_b32 s39, s25, 10")
    A.e("s_add_u32 s39, s39, s38")
    A.e(f"buffer_load_dwordx2 v[24:25], v7, {WSRD}, s39 offen sc1")
    A.e("s_lshl_b32 s39, s28, 11")
    A.e("s_add_u32 s39, s39, s38")
    A.e(f"buffer_load_dwordx2 v[26:27], v7, {WSRD}, s39 offen offset:8 sc1")
    A.e(f"buffer_load_dwordx2 v[28:29], v7, {WSRD}, s39 offen offset:1032 sc1")
    A.e("s_lshl_b32 s39, s25, 11")
    A.e("s_add_u32 s35, s34, s39")
    A.e(f"s_add_u32 s35, s35, {hex(WS_VX)}")
    A.e(f"s_add_u32 m0, s39, {VS}")
    A.e("s_nop 0")
    A.e(f"buffer_load_dwordx4 v13, {WSRD}, s35 offen sc1 lds")
    A.e("s_add_u32 s35, s35, 1024")
    A.e(f"s_add_u32 m0, s39, {VS + 1024}")
    A.e("s_nop 0")
    A.e(f"buffer_load_dwordx4 v14, {WSRD}, s35 offen sc1 lds")
    A.e("s_waitcnt vmcnt(0)")
    A.e("ds_write2st64_b32 v9, v24, v25 offset0:0 offset1:2")
    A.e("s_waitcnt lgkmcnt(0)")
    A.e("s_barrier")
    for ks in range(4):
        A.e(f"ds_read_b64_tr_b16 v[{80+4*ks}:{81+4*ks}], v10 offset:{1024*ks}")
        A.e(f"ds_read_b64_tr_b16 v[{82+4*ks}:{83+4*ks}], v11 offset:{1024*ks}")
    for ks in range(4):
        for kt in range(2):
            c = "0" if ks == 0 else f"v[{96+4*kt}:{99+4*kt}]"
            A.e(f"v_mfma_f32_16x16x32_bf16 v[{96+4*kt}:{99+4*kt}], v[{32+16*kt+4*ks}:{35+16*kt+4*ks}], v[{64+4*ks}:{67+4*ks}], {c}")
    A.e("s_waitcnt lgkmcnt(0)")
    for ks in range(4):
        c = "0" if ks == 0 else "v[104:107]"
        A.e(f"v_mfma_f32_16x16x32_bf16 v[104:107], v[{80+4*ks}:{83+4*ks}], v[{64+4*ks}:{67+4*ks}], {c}")
    for tp in range(4):
        if tp == 0:
            ad = 12
        else:
            A.e(f"v_xor_b32 v19, {tp << 5}, v12")
            ad = 19
        for kt in range(2):
            A.e(f"ds_read_b64_tr_b16 v[{32+4*tp+2*kt}:{33+4*tp+2*kt}], v{ad} offset:{4096*kt}")
    A.e("s_nop 3")
    for kt in range(2):
        for r in range(4):
            A.e(f"v_cndmask_b32 v{96+4*kt+r}, v18, v{96+4*kt+r}, s[{40+2*(4*kt+r)}:{41+2*(4*kt+r)}]")
    A.e("v_max3_f32 v48, v96, v97, v98")
    A.e("v_max3_f32 v49, v99, v100, v101")
    A.e("v_max3_f32 v48, v48, v102, v103")
    A.e("v_max3_f32 v49, v49, v104, v105")
    A.e("v_max_f32 v50, v48, v49")
    A.e("v_max_f32 v51, v48, v49")
    A.e("s_nop 1")
    A.e("v_permlane32_swap_b32 v50, v51")
    A.e("v_max_f32 v48, v50, v51")
    A.e("v_max_f32 v49, v50, v51")
    A.e("s_nop 1")
    A.e("v_permlane16_swap_b32 v48, v49")
    A.e("v_max_f32 v48, v48, v49")
    A.e("v_mul_f32 v48, s56, v48")
    for j in range(5):
        A.e(f"v_pk_fma_f32 v[{96+2*j}:{97+2*j}], v[{96+2*j}:{97+2*j}], s[56:57], v[48:49] op_sel_hi:[1,1,0] neg_lo:[0,0,1] neg_hi:[0,0,1]")
    for j in range(10):
        A.e(f"v_exp_f32 v{96+j}, v{96+j}")
    A.e("s_nop 0")
    for j in range(4):
        A.e(f"v_cvt_pk_bf16_f32 v{48+j}, v{96+2*j}, v{97+2*j}")
    A.e("v_cvt_pk_bf16_f32 v20, v104, v105")
    A.e("v_cvt_pk_bf16_f32 v23, v104, v105")
    A.e("s_waitcnt lgkmcnt(0)")
    A.e("s_nop 0")
    for tp in range(4):
        A.e(f"v_mfma_f32_16x16x32_bf16 v[{64+4*tp}:{67+4*tp}], v[{32+4*tp}:{35+4*tp}], v[48:51], 0")
    for tp in range(4):
        vp = 26 + 2 * (tp >> 1)
        pm = 20 if tp % 2 == 0 else 22
        A.e(f"v_mfma_f32_16x16x16_bf16 v[{64+4*tp}:{67+4*tp}], v[{vp}:{vp+1}], v[{pm}:{pm+1}], v[{64+4*tp}:{67+4*tp}]")
    A.e("v_pk_add_f32 v[52:53], v[96:97], v[98:99]")
    A.e("v_pk_add_f32 v[54:55], v[100:101], v[102:103]")
    A.e("v_pk_add_f32 v[52:53], v[52:53], v[104:105]")
    A.e("v_pk_add_f32 v[52:53], v[52:53], v[54:55]")
    A.e("v_add_f32 v54, v52, v53")
    A.e("v_add_f32 v55, v52, v53")
    A.e("s_nop 1")
    A.e("v_permlane32_swap_b32 v54, v55")
    A.e("v_add_f32 v52, v54, v55")
    A.e("v_add_f32 v53, v54, v55")
    A.e("s_nop 1")
    A.e("v_permlane16_swap_b32 v52, v53")
    A.e("v_add_f32 v52, v52, v53")
    A.e("v_rcp_f32 v52, v52")
    A.e("s_nop 3")
    for j in range(8):
        A.e(f"v_pk_mul_f32 v[{64+2*j}:{65+2*j}], v[{64+2*j}:{65+2*j}], v[52:53] op_sel_hi:[1,0]")
    for j in range(8):
        A.e(f"v_cvt_pk_bf16_f32 v{80+j}, v{64+2*j}, v{65+2*j}")
    for tp in range(4):
        A.e(f"ds_write_b64 v15, v[{80+2*tp}:{81+2*tp}] offset:{32*tp}")
    A.e("s_waitcnt lgkmcnt(0)")
    A.e("s_barrier")
    A.e("ds_read_b128 v[32:35], v16")
    A.e(f"ds_read_b128 v[36:39], v16 offset:{4*ORS}")
    A.e("s_lshl_b32 s33, s26, 18                 ; s*32 rows*8192")
    A.e("s_lshl_b32 s34, s24, 8")
    A.e("s_add_u32 s33, s33, s34")
    A.e(f"s_add_u32 s33, s33, {hex(WS_O)}")
    A.e("s_add_u32 s34, s33, 0x8000")
    A.e("s_waitcnt lgkmcnt(0)")
    A.e(f"buffer_store_dwordx4 v[32:35], v17, {WSRD}, s33 offen sc1")
    A.e(f"buffer_store_dwordx4 v[36:39], v17, {WSRD}, s34 offen sc1")
    if cfg.get("signal"): cfg["signal"](A, L)
    A.e("s_barrier")
    A.e(f"s_add_u32 s26, s26, {seg_stride}")
    A.e("s_cmp_lt_u32 s26, 64")
    A.e(f"s_cbranch_scc1 {L}_loop")
    A.e("s_waitcnt vmcnt(0)")

def gen_attn2(A, L, cfg):
    seg_stride = cfg["seg_stride"]
    VS = 0; VS1 = 0x2000; KT = 0x4000; OST = 0x5000; ORS = 272
    A.e("s_cmp_ge_u32 s26, 64")
    A.e(f"s_cbranch_scc1 {L}_exit")
    A.e("s_and_b32 s27, s25, 1                   ; qt")
    A.e("s_lshr_b32 s28, s25, 1                  ; dhh")
    if cfg.get("after_weights"): cfg["after_weights"](A)
    A.e("v_and_b32 v3, 15, v2                    ; n")
    A.e("v_lshrrev_b32 v4, 4, v2                 ; g")
    A.e("v_bfe_u32 v5, v2, 2, 2                  ; r")
    A.e("v_and_b32 v6, 3, v2                     ; cq")
    A.e("v_lshlrev_b32 v7, 4, v2                 ; l*16")
    A.e("v_lshlrev_b32 v8, 8, v3")
    A.e("v_lshl_add_u32 v8, v4, 4, v8")
    A.e("s_lshl_b32 s33, s25, 5")
    A.e("v_add_u32 v9, s33, v3")
    A.e("v_lshlrev_b32 v9, 5, v9")
    A.e("v_lshrrev_b32 v10, 1, v9")
    A.e("v_and_b32 v10, 128, v10")
    A.e("v_xor_b32 v9, v9, v10")
    A.e("v_lshl_add_u32 v9, v4, 3, v9")
    A.e(f"v_add_u32 v9, {KT}, v9")
    A.e("v_lshlrev_b32 v10, 3, v4")
    A.e("v_add_u32 v10, v10, v5")
    A.e("v_lshlrev_b32 v10, 5, v10")
    A.e("v_lshrrev_b32 v11, 1, v10")
    A.e("v_and_b32 v11, 128, v11")
    A.e("v_xor_b32 v10, v10, v11")
    A.e("v_lshl_add_u32 v10, v6, 3, v10")
    A.e(f"v_add_u32 v10, {KT}, v10")
    A.e("v_xor_b32 v11, 128, v10")
    A.e("v_lshlrev_b32 v12, 2, v4")
    A.e("v_add_u32 v12, v12, v5")
    A.e("v_and_b32 v13, 7, v12")
    A.e("s_lshl_b32 s33, s28, 2")
    A.e("v_xor_b32 v13, s33, v13")
    A.e("v_lshlrev_b32 v13, 5, v13")
    A.e("v_lshl_add_u32 v12, v12, 8, v13")
    A.e("v_lshl_add_u32 v12, v6, 3, v12")
    A.e(f"v_add_u32 v12, {VS}, v12")
    A.e("v_lshrrev_b32 v13, 1, v3")
    A.e("v_xor_b32 v13, v13, v4")
    A.e("v_lshlrev_b32 v13, 5, v13")
    A.e("v_lshl_add_u32 v13, v4, 8, v13")
    A.e("v_and_b32 v14, 1, v2")
    A.e("v_lshl_add_u32 v13, v14, 4, v13")
    A.e("v_xor_b32 v14, 128, v13")
    A.e("s_lshl_b32 s33, s27, 4")
    A.e("v_add_u32 v15, s33, v3")
    A.e(f"s_movk_i32 s33, {ORS}")
    A.e("v_mul_lo_u32 v15, v15, s33")
    A.e("v_lshl_add_u32 v15, v4, 3, v15")
    A.e("s_lshl_b32 s33, s28, 7")
    A.e(f"s_add_u32 s33, s33, {OST}")
    A.e("v_add_u32 v15, s33, v15")
    A.e("s_lshl_b32 s33, s25, 3")
    A.e("v_add_u32 v17, s33, v4                  ; row = 8w + (l>>4)")
    A.e(f"s_movk_i32 s33, {ORS}")
    A.e("v_mul_lo_u32 v16, v17, s33")
    A.e("v_lshl_add_u32 v16, v3, 4, v16")
    A.e(f"v_add_u32 v16, {OST}, v16")
    A.e("v_lshlrev_b32 v17, 13, v17")
    A.e("v_lshl_add_u32 v17, v3, 4, v17")
    A.e("s_lshl_b32 s33, s27, 4")
    A.e("v_add_u32 v18, s33, v3")
    A.e("v_lshlrev_b32 v19, 2, v4")
    A.e("v_sub_u32 v18, v18, v19")
    for kt in range(2):
        for r in range(4):
            A.e(f"v_cmp_le_i32 s[{40+2*(4*kt+r)}:{41+2*(4*kt+r)}], {16*kt+r}, v18")
    A.e(f"s_mov_b32 s56, {hex(CSCALE)}")
    A.e(f"s_mov_b32 s57, {hex(CSCALE)}")
    A.e(f"v_mov_b32 v18, {fbits(-1e30)}")
    A.e("v_mov_b32 v21, 0                        ; [PM,0] = v[20:21]")
    A.e("v_mov_b32 v22, 0                        ; [0,PM] = v[22:23]")
    wait_qkv, wait_km = cfg["wait_qkv"], cfg["wait_km"]
    def issue_qkv(seg, vsbuf):
        A.e(f"s_lshl_b32 s33, s{seg}, 5")
        A.e("s_add_u32 s33, s33, s24")
        A.e("s_lshl_b32 s34, s33, 13")
        A.e(f"s_add_u32 s35, s34, {hex(WS_KX)}")
        A.e("s_add_u32 s36, s35, 4096")
        for kt in range(2):
            for ks in range(4):
                A.e(f"buffer_load_dwordx4 v[{128+16*kt+4*ks}:{131+16*kt+4*ks}], v8, {WSRD}, s{35+kt} offen offset:{64*ks} sc1")
        A.e("s_lshl_b32 s37, s27, 12")
        A.e("s_add_u32 s37, s37, s34")
        A.e(f"s_add_u32 s37, s37, {hex(WS_QX)}")
        for ks in range(4):
            A.e(f"buffer_load_dwordx4 v[{160+4*ks}:{163+4*ks}], v8, {WSRD}, s37 offen offset:{64*ks} sc1")
        A.e("s_lshl_b32 s39, s25, 11")
        A.e("s_add_u32 s35, s34, s39")
        A.e(f"s_add_u32 s35, s35, {hex(WS_VX)}")
        A.e(f"s_add_u32 s39, s39, s{vsbuf}")
        A.e("s_mov_b32 m0, s39")
        A.e("s_nop 0")
        A.e(f"buffer_load_dwordx4 v13, {WSRD}, s35 offen sc1 lds")
        A.e("s_add_u32 s35, s35, 1024")
        A.e("s_add_u32 m0, s39, 1024")
        A.e("s_nop 0")
        A.e(f"buffer_load_dwordx4 v14, {WSRD}, s35 offen sc1 lds")
    A.e(f"s_mov_b32 s29, {VS}")
    wait_qkv(A, 26)
    issue_qkv(26, 29)
    A.label(f"{L}_loop")
    A.e("s_waitcnt vmcnt(0)")
    for ks in range(4):
        for kt in range(2):
            c = "0" if ks == 0 else f"v[{96+4*kt}:{99+4*kt}]"
            A.e(f"v_mfma_f32_16x16x32_bf16 v[{96+4*kt}:{99+4*kt}], v[{128+16*kt+4*ks}:{131+16*kt+4*ks}], v[{160+4*ks}:{163+4*ks}], {c}")
    for j in range(8):
        A.e(f"v_mov_b64 v[{64+2*j}:{65+2*j}], v[{160+2*j}:{161+2*j}]")
    wait_km(A, 26)
    A.e("s_lshl_b32 s33, s26, 5")
    A.e("s_add_u32 s33, s33, s24")
    A.e("s_lshl_b32 s38, s33, 12")
    A.e(f"s_add_u32 s38, s38, {hex(WS_KMVM)}")
    A.e("s_lshl_b32 s39, s25, 10")
    A.e("s_add_u32 s39, s39, s38")
    A.e(f"buffer_load_dwordx2 v[24:25], v7, {WSRD}, s39 offen sc1")
    A.e("s_lshl_b32 s39, s28, 11")
    A.e("s_add_u32 s39, s39, s38")
    A.e(f"buffer_load_dwordx2 v[26:27], v7, {WSRD}, s39 offen offset:8 sc1")
    A.e(f"buffer_load_dwordx2 v[28:29], v7, {WSRD}, s39 offen offset:1032 sc1")
    for kt in range(2):
        for r in range(4):
            A.e(f"v_cndmask_b32 v{96+4*kt+r}, v18, v{96+4*kt+r}, s[{40+2*(4*kt+r)}:{41+2*(4*kt+r)}]")
    A.e("s_waitcnt vmcnt(2)")
    A.e("ds_write2st64_b32 v9, v24, v25 offset0:0 offset1:2")
    A.e("s_waitcnt lgkmcnt(0)")
    A.e("s_barrier")
    for ks in range(4):
        A.e(f"ds_read_b64_tr_b16 v[{80+4*ks}:{81+4*ks}], v10 offset:{1024*ks}")
        A.e(f"ds_read_b64_tr_b16 v[{82+4*ks}:{83+4*ks}], v11 offset:{1024*ks}")
    A.e("v_add_u32 v19, s29, v12")
    for tp in range(4):
        if tp: A.e(f"v_xor_b32 v30, {tp << 5}, v19")
        ad = 19 if tp == 0 else 30
        if tp == 3: A.e("s_waitcnt lgkmcnt(6)")
        for kt in range(2):
            A.e(f"ds_read_b64_tr_b16 v[{32+4*tp+2*kt}:{33+4*tp+2*kt}], v{ad} offset:{4096*kt}")
    A.e("s_waitcnt lgkmcnt(8)")
    for ks in range(4):
        c = "0" if ks == 0 else "v[104:107]"
        A.e(f"v_mfma_f32_16x16x32_bf16 v[104:107], v[{80+4*ks}:{83+4*ks}], v[{64+4*ks}:{67+4*ks}], {c}")
    A.e(f"s_add_u32 s31, s26, {seg_stride}")
    A.e("s_cmp_ge_u32 s31, 64")
    A.e(f"s_cbranch_scc1 {L}_nopre")
    A.e("s_waitcnt vmcnt(0)")
    wait_qkv(A, 31)
    A.e(f"s_xor_b32 s30, s29, {VS1}")
    issue_qkv(31, 30)
    A.label(f"{L}_nopre")
    A.e("s_nop 3")
    A.e("v_max3_f32 v48, v96, v97, v98")
    A.e("v_max3_f32 v49, v99, v100, v101")
    A.e("v_max3_f32 v48, v48, v102, v103")
    A.e("v_max3_f32 v49, v49, v104, v105")
    A.e("v_max_f32 v50, v48, v49")
    A.e("v_max_f32 v51, v48, v49")
    A.e("s_nop 1")
    A.e("v_permlane32_swap_b32 v50, v51")
    A.e("v_max_f32 v48, v50, v51")
    A.e("v_max_f32 v49, v50, v51")
    A.e("s_nop 1")
    A.e("v_permlane16_swap_b32 v48, v49")
    A.e("v_max_f32 v48, v48, v49")
    A.e("v_mul_f32 v48, s56, v48")
    for j in range(5):
        A.e(f"v_pk_fma_f32 v[{96+2*j}:{97+2*j}], v[{96+2*j}:{97+2*j}], s[56:57], v[48:49] op_sel_hi:[1,1,0] neg_lo:[0,0,1] neg_hi:[0,0,1]")
    for j in range(10):
        A.e(f"v_exp_f32 v{96+j}, v{96+j}")
    A.e("s_nop 0")
    for j in range(4):
        A.e(f"v_cvt_pk_bf16_f32 v{48+j}, v{96+2*j}, v{97+2*j}")
    A.e("v_cvt_pk_bf16_f32 v20, v104, v105")
    A.e("v_cvt_pk_bf16_f32 v23, v104, v105")
    A.e("s_waitcnt lgkmcnt(0)")
    A.e("s_nop 0")
    for tp in range(4):
        A.e(f"v_mfma_f32_16x16x32_bf16 v[{64+4*tp}:{67+4*tp}], v[{32+4*tp}:{35+4*tp}], v[48:51], 0")
    for tp in range(4):
        vp = 26 + 2 * (tp >> 1)
        pm = 20 if tp % 2 == 0 else 22
        A.e(f"v_mfma_f32_16x16x16_bf16 v[{64+4*tp}:{67+4*tp}], v[{vp}:{vp+1}], v[{pm}:{pm+1}], v[{64+4*tp}:{67+4*tp}]")
    A.e("v_pk_add_f32 v[52:53], v[96:97], v[98:99]")
    A.e("v_pk_add_f32 v[54:55], v[100:101], v[102:103]")
    A.e("v_pk_add_f32 v[52:53], v[52:53], v[104:105]")
    A.e("v_pk_add_f32 v[52:53], v[52:53], v[54:55]")
    A.e("v_add_f32 v54, v52, v53")
    A.e("v_add_f32 v55, v52, v53")
    A.e("s_nop 1")
    A.e("v_permlane32_swap_b32 v54, v55")
    A.e("v_add_f32 v52, v54, v55")
    A.e("v_add_f32 v53, v54, v55")
    A.e("s_nop 1")
    A.e("v_permlane16_swap_b32 v52, v53")
    A.e("v_add_f32 v52, v52, v53")
    A.e("v_rcp_f32 v52, v52")
    A.e("s_nop 3")
    for j in range(8):
        A.e(f"v_pk_mul_f32 v[{64+2*j}:{65+2*j}], v[{64+2*j}:{65+2*j}], v[52:53] op_sel_hi:[1,0]")
    for j in range(8):
        A.e(f"v_cvt_pk_bf16_f32 v{80+j}, v{64+2*j}, v{65+2*j}")
    for tp in range(4):
        A.e(f"ds_write_b64 v15, v[{80+2*tp}:{81+2*tp}] offset:{32*tp}")
    A.e("s_waitcnt lgkmcnt(0)")
    A.e("s_barrier")
    A.e("ds_read_b128 v[32:35], v16")
    A.e(f"ds_read_b128 v[36:39], v16 offset:{4*ORS}")
    A.e("s_lshl_b32 s33, s26, 18                 ; s*32 rows*8192")
    A.e("s_lshl_b32 s34, s24, 8")
    A.e("s_add_u32 s33, s33, s34")
    A.e(f"s_add_u32 s33, s33, {hex(WS_O)}")
    A.e("s_add_u32 s34, s33, 0x8000")
    A.e("s_waitcnt lgkmcnt(0)")
    A.e(f"buffer_store_dwordx4 v[32:35], v17, {WSRD}, s33 offen sc1")
    A.e(f"buffer_store_dwordx4 v[36:39], v17, {WSRD}, s34 offen sc1")
    if cfg.get("signal"): cfg["signal"](A, L)
    A.e(f"s_xor_b32 s29, s29, {VS1}")
    A.e(f"s_add_u32 s26, s26, {seg_stride}")
    A.e("s_cmp_lt_u32 s26, 64")
    A.e(f"s_cbranch_scc1 {L}_loop")
    A.e("s_waitcnt vmcnt(0)")


def next_seg(A, dst, cfg):
    if cfg.get("split") is not None:
        A.e(f"s_cmp_ge_u32 s26, {cfg['split']}")
        A.e("s_cselect_b32 s56, 2, 1")
        A.e(f"s_add_u32 s{dst}, s26, s56")
    else:
        A.e(f"s_add_u32 s{dst}, s26, {cfg['seg_stride']}")

def gen_wo(A, L, cfg):
    seg_stride = cfg["seg_stride"]
    RS = 2064; BUF1 = 32 * RS; OST = 2 * BUF1; ORS = 272; BUFX = BUF1
    A.e("s_cmp_ge_u32 s26, 64")
    A.e(f"s_cbranch_scc1 {L}_exit")
    A.e("s_lshr_b32 s27, s24, 3                  ; kq")
    A.e("s_and_b32 s28, s24, 7                   ; nb")
    A.e("s_and_b32 s37, s25, 1                   ; nh")
    A.e("s_lshr_b32 s38, s25, 1                  ; kh")
    A.e("s_lshl_b32 s29, s27, 20")
    A.e("s_lshl_b32 s33, s38, 19")
    A.e("s_add_u32 s29, s29, s33")
    A.e("s_lshl_b32 s33, s28, 7")
    A.e("s_add_u32 s29, s29, s33")
    A.e("s_lshl_b32 s33, s37, 6")
    A.e("s_add_u32 s29, s29, s33")
    A.e("s_lshl_b32 s30, s25, 15")
    load_weights_32col(A, 4, 29, 1024, 32, 30, 0, 8)
    if cfg.get("after_weights"): cfg["after_weights"](A)
    A.e("s_barrier")
    A.e("v_lshlrev_b32 v3, 4, v2")
    A.e("v_and_b32 v4, 31, v2")
    A.e(f"s_movk_i32 s33, {RS}")
    A.e("v_mul_lo_u32 v4, v4, s33")
    A.e("v_lshrrev_b32 v5, 5, v2                 ; hi")
    A.e("v_lshl_add_u32 v4, v5, 4, v4")
    A.e("s_lshl_b32 s33, s38, 10")
    A.e("v_add_u32 v4, s33, v4")
    A.e("v_and_b32 v6, 31, v2")
    A.e(f"s_movk_i32 s33, {ORS}")
    A.e("v_mul_lo_u32 v6, v6, s33")
    A.e("v_lshl_add_u32 v6, v5, 4, v6")
    A.e(f"s_mul_i32 s33, s38, {32*ORS}")
    A.e("s_lshl_b32 s34, s37, 7")
    A.e("s_add_u32 s33, s33, s34")
    A.e(f"s_add_u32 s33, s33, {OST}")
    A.e("v_add_u32 v6, s33, v6")
    A.e("v_lshrrev_b32 v7, 4, v2")
    A.e("s_lshl_b32 s33, s25, 3")
    A.e("v_add_u32 v7, s33, v7")
    A.e("v_and_b32 v8, 15, v2")
    A.e(f"s_movk_i32 s33, {ORS}")
    A.e("v_mul_lo_u32 v9, v7, s33")
    A.e("v_lshl_add_u32 v9, v8, 4, v9")
    A.e(f"v_add_u32 v9, {OST}, v9")
    A.e("v_lshlrev_b32 v10, 11, v7               ; row*2048")
    A.e("v_lshl_add_u32 v10, v8, 4, v10")
    def dma(buf_s):
        A.e("s_lshl_b32 s33, s31, 5")
        A.e("s_lshl_b32 s34, s25, 3")
        A.e("s_add_u32 s33, s33, s34")
        A.e("s_lshl_b32 s33, s33, 13             ; row*8192")
        A.e("s_lshl_b32 s39, s27, 11")
        A.e("s_add_u32 s33, s33, s39")
        A.e(f"s_add_u32 s33, s33, {hex(WS_O)}")
        A.e(f"s_mul_i32 s34, s34, {RS}")
        A.e(f"s_add_u32 s34, s34, s{buf_s}")
        for r in range(8):
            for hh in range(2):
                A.e(f"s_add_u32 m0, s34, {r*RS + hh*1024}")
                A.e(f"s_add_u32 s39, s33, {r*8192 + hh*1024}")
                A.e(f"buffer_load_dwordx4 v3, {WSRD}, s39 offen sc1 lds")
    A.e("s_mov_b32 s35, 0")
    A.e("s_mov_b32 s31, s26")
    if cfg.get("wait_in"): cfg["wait_in"](A, 31)
    dma(35)
    A.e("s_mov_b32 s57, 1")
    A.label(f"{L}_loop")
    A.e("s_cmp_eq_u32 s57, 1")
    A.e(f"s_cbranch_scc1 {L}_have")
    A.e("s_mov_b32 s31, s26")
    if cfg.get("wait_in"): cfg["wait_in"](A, 31)
    dma(35)
    A.label(f"{L}_have")
    A.e("s_waitcnt vmcnt(0)")
    A.e("s_barrier")
    A.e(f"s_xor_b32 s36, s35, {BUFX}")
    next_seg(A, 31, cfg)
    A.e("s_mov_b32 s57, 0")
    A.e("s_cmp_ge_u32 s31, 64")
    A.e(f"s_cbranch_scc1 {L}_nodma")
    if cfg.get("try_in"):
        cfg["try_in"](A, 31)
        A.e(f"s_cbranch_scc0 {L}_nodma")
    A.e("s_mov_b32 s57, 1")
    dma(36)
    A.label(f"{L}_nodma")
    A.e("v_add_u32 v11, s35, v4")
    for ks in range(4):
        A.e(f"ds_read_b128 v[{32+4*ks}:{35+4*ks}], v11 offset:{ks*32}")
    for ks in range(32):
        A.e(f"s_waitcnt lgkmcnt({min(3, 31-ks)})")
        c = "0" if ks == 0 else "v[16:31]"
        b = 32 + 4 * (ks % 5)
        A.e(f"v_mfma_f32_32x32x16_bf16 v[16:31], a[{4*ks}:{4*ks+3}], v[{b}:{b+3}], {c}")
        if ks + 4 < 32:
            b2 = 32 + 4 * ((ks + 4) % 5)
            A.e(f"ds_read_b128 v[{b2}:{b2+3}], v11 offset:{(ks+4)*32}")
    A.e("s_nop 7")
    A.e("s_nop 4")
    for q in range(4):
        A.e(f"ds_write_b128 v6, v[{16+4*q}:{19+4*q}] offset:{32*q}")
    A.e("s_waitcnt lgkmcnt(0)")
    A.e("s_barrier")
    A.e("ds_read_b128 v[32:35], v9")
    A.e(f"ds_read_b128 v[36:39], v9 offset:{32*ORS}")
    A.e(f"ds_read_b128 v[40:43], v9 offset:{4*ORS}")
    A.e(f"ds_read_b128 v[44:47], v9 offset:{36*ORS}")
    A.e("s_lshl_b32 s33, s27, 22")
    A.e("s_lshl_b32 s34, s26, 16")
    A.e("s_add_u32 s33, s33, s34")
    A.e("s_lshl_b32 s34, s28, 8")
    A.e("s_add_u32 s33, s33, s34")
    A.e(f"s_add_u32 s33, s33, {hex(WS_PART)}")
    A.e("s_add_u32 s34, s33, 8192")
    A.e("s_waitcnt lgkmcnt(0)")
    A.e("v_pk_add_f32 v[32:33], v[32:33], v[36:37]")
    A.e("v_pk_add_f32 v[34:35], v[34:35], v[38:39]")
    A.e("v_pk_add_f32 v[40:41], v[40:41], v[44:45]")
    A.e("v_pk_add_f32 v[42:43], v[42:43], v[46:47]")
    A.e(f"buffer_store_dwordx4 v[32:35], v10, {WSRD}, s33 offen sc1")
    A.e(f"buffer_store_dwordx4 v[40:43], v10, {WSRD}, s34 offen sc1")
    if cfg.get("signal"): cfg["signal"](A, L)
    A.e("s_mov_b32 s35, s36")
    next_seg(A, 26, cfg)
    A.e("s_cmp_lt_u32 s26, 64")
    A.e(f"s_cbranch_scc1 {L}_loop")
    A.e("s_waitcnt vmcnt(0)")

def gen_red(A, L, cfg):
    st = cfg["grp_stride"]
    A.e("s_cmp_ge_u32 s26, 512")
    A.e(f"s_cbranch_scc1 {L}_exit")
    if cfg.get("after_weights"): cfg["after_weights"](A)
    A.e("v_lshlrev_b32 v3, 4, v2                 ; l*16")
    A.e("v_lshlrev_b32 v4, 5, v2                 ; l*32")
    A.label(f"{L}_loop")
    if cfg.get("wait_in"): cfg["wait_in"](A, 26)
    A.e("s_lshl_b32 s27, s26, 2")
    A.e("s_add_u32 s27, s27, s25                 ; row")
    A.e("s_lshl_b32 s28, s27, 10")
    A.e("buffer_load_dwordx4 v[8:11], v3, s[4:7], s28 offen")
    A.e("s_lshl_b32 s29, s27, 11")
    A.e(f"s_add_u32 s29, s29, {hex(WS_PART)}")
    for kq in range(4):
        A.e(f"buffer_load_dwordx4 v[{16+8*kq}:{19+8*kq}], v4, {WSRD}, s29 offen sc1")
        A.e(f"buffer_load_dwordx4 v[{20+8*kq}:{23+8*kq}], v4, {WSRD}, s29 offen offset:16 sc1")
        if kq < 3: A.e("s_add_u32 s29, s29, 0x400000")
    A.e("s_waitcnt vmcnt(0)")
    for j in range(4):
        A.e(f"v_pk_add_f32 v[{16+2*j}:{17+2*j}], v[{16+2*j}:{17+2*j}], v[{24+2*j}:{25+2*j}]")
        A.e(f"v_pk_add_f32 v[{32+2*j}:{33+2*j}], v[{32+2*j}:{33+2*j}], v[{40+2*j}:{41+2*j}]")
    for j in range(4):
        A.e(f"v_pk_add_f32 v[{16+2*j}:{17+2*j}], v[{16+2*j}:{17+2*j}], v[{32+2*j}:{33+2*j}]")
    for j in range(4):
        A.e(f"v_cvt_pk_bf16_f32 v{24+j}, v{16+2*j}, v{17+2*j}")
    unpack8(A, 24, 32)
    unpack8(A, 8, 40)
    for j in range(4):
        A.e(f"v_pk_add_f32 v[{32+2*j}:{33+2*j}], v[{32+2*j}:{33+2*j}], v[{40+2*j}:{41+2*j}]")
    for j in range(4):
        A.e(f"v_cvt_pk_bf16_f32 v{24+j}, v{32+2*j}, v{33+2*j}")
    A.e(f"s_add_u32 s29, s28, {hex(WS_H)}")
    A.e(f"buffer_store_dwordx4 v[24:27], v3, {WSRD}, s29 offen sc1")
    unpack8(A, 24, 32)
    layernorm8(A, 32, 12, 48)
    A.e(f"s_add_u32 s29, s28, {hex(WS_HN)}")
    A.e(f"buffer_store_dwordx4 v[12:15], v3, {WSRD}, s29 offen sc1")
    if cfg.get("signal"): cfg["signal"](A, L)
    A.e(f"s_add_u32 s26, s26, {st}")
    A.e("s_cmp_lt_u32 s26, 512")
    A.e(f"s_cbranch_scc1 {L}_loop")
    A.e("s_waitcnt vmcnt(0)")

def gen_ffn2(A, L, cfg):
    seg_stride = cfg["seg_stride"]
    RS = 912; WB = 32 * RS; OST = 4 * WB; ORS = 144
    A.e("s_cmp_ge_u32 s26, 64")
    A.e(f"s_cbranch_scc1 {L}_exit")
    A.e("s_mul_i32 s29, s25, %d" % (448 * 1024))
    A.e("s_lshl_b32 s33, s24, 6")
    A.e("s_add_u32 s29, s29, s33")
    A.e("s_mul_i32 s30, s25, %d" % WB)
    load_weights_32col(A, 4, 29, 1024, 28, 30, 0, 8)
    if cfg.get("after_weights"): cfg["after_weights"](A)
    A.e("s_barrier")
    A.e("v_lshlrev_b32 v3, 4, v2")
    A.e("v_and_b32 v4, 31, v2")
    A.e(f"s_movk_i32 s33, {RS}")
    A.e("v_mul_lo_u32 v4, v4, s33")
    A.e("v_lshrrev_b32 v5, 5, v2")
    A.e("v_lshl_add_u32 v4, v5, 4, v4")
    A.e("v_add_u32 v4, s30, v4")
    A.e("v_and_b32 v6, 31, v2")
    A.e(f"s_movk_i32 s33, {ORS}")
    A.e("v_mul_lo_u32 v6, v6, s33")
    A.e("v_lshl_add_u32 v6, v5, 4, v6")
    A.e(f"s_mul_i32 s33, s25, {32*ORS}")
    A.e(f"s_add_u32 s33, s33, {OST}")
    A.e("v_add_u32 v6, s33, v6")
    A.e("v_lshrrev_b32 v7, 3, v0")
    A.e("v_and_b32 v8, 7, v0")
    A.e(f"s_movk_i32 s33, {ORS}")
    A.e("v_mul_lo_u32 v9, v7, s33")
    A.e("v_lshl_add_u32 v9, v8, 4, v9")
    A.e(f"v_add_u32 v9, {OST}, v9")
    A.e("v_lshlrev_b32 v10, 10, v7")
    A.e("v_lshl_add_u32 v10, v8, 3, v10")
    A.label(f"{L}_loop")
    if cfg.get("wait_in"): cfg["wait_in"](A, 26)
    A.e("s_mul_i32 s33, s26, %d" % (32 * 3584))
    A.e("s_mul_i32 s34, s25, 896")
    A.e("s_add_u32 s33, s33, s34")
    A.e(f"s_add_u32 s33, s33, {hex(WS_A1)}")
    A.e("s_mov_b32 exec_hi, 0x00ffffff")
    for r in range(32):
        A.e(f"s_add_u32 m0, s30, {r*RS}")
        if r: A.e("s_add_u32 s33, s33, 3584")
        else: A.e("s_nop 0")
        A.e(f"buffer_load_dwordx4 v3, {WSRD}, s33 offen sc1 lds")
    A.e("s_mov_b32 exec_hi, -1")
    A.e("s_lshl_b32 s34, s26, 15")
    A.e("s_lshl_b32 s35, s24, 6")
    A.e("s_add_u32 s34, s34, s35")
    A.e(f"s_add_u32 s35, s34, {hex(WS_H)}")
    A.e(f"buffer_load_dwordx2 v[12:13], v10, {WSRD}, s35 offen sc1")
    A.e("s_waitcnt vmcnt(0)")
    for ks in range(4):
        A.e(f"ds_read_b128 v[{32+4*ks}:{35+4*ks}], v4 offset:{ks*32}")
    for ks in range(28):
        A.e(f"s_waitcnt lgkmcnt({min(3, 27-ks)})")
        c = "0" if ks == 0 else "v[16:31]"
        b = 32 + 4 * (ks % 5)
        A.e(f"v_mfma_f32_32x32x16_bf16 v[16:31], a[{4*ks}:{4*ks+3}], v[{b}:{b+3}], {c}")
        if ks + 4 < 28:
            b2 = 32 + 4 * ((ks + 4) % 5)
            A.e(f"ds_read_b128 v[{b2}:{b2+3}], v4 offset:{(ks+4)*32}")
    A.e("s_nop 7")
    A.e("s_nop 4")
    for q in range(4):
        A.e(f"ds_write_b128 v6, v[{16+4*q}:{19+4*q}] offset:{32*q}")
    A.e("s_waitcnt lgkmcnt(0)")
    A.e("s_barrier")
    for w in range(4):
        A.e(f"ds_read_b128 v[{32+4*w}:{35+4*w}], v9 offset:{w*32*ORS}")
    A.e("s_waitcnt lgkmcnt(0)")
    for j in range(2):
        A.e(f"v_pk_add_f32 v[{32+2*j}:{33+2*j}], v[{32+2*j}:{33+2*j}], v[{36+2*j}:{37+2*j}]")
        A.e(f"v_pk_add_f32 v[{40+2*j}:{41+2*j}], v[{40+2*j}:{41+2*j}], v[{44+2*j}:{45+2*j}]")
    for j in range(2):
        A.e(f"v_pk_add_f32 v[{32+2*j}:{33+2*j}], v[{32+2*j}:{33+2*j}], v[{40+2*j}:{41+2*j}]")
    A.e("v_cvt_pk_bf16_f32 v36, v32, v33")
    A.e("v_cvt_pk_bf16_f32 v37, v34, v35")
    for j in range(2):
        A.e(f"v_lshlrev_b32 v{32+2*j}, 16, v{36+j}")
        A.e(f"v_and_b32 v{33+2*j}, 0xffff0000, v{36+j}")
        A.e(f"v_lshlrev_b32 v{40+2*j}, 16, v{12+j}")
        A.e(f"v_and_b32 v{41+2*j}, 0xffff0000, v{12+j}")
    A.e("v_pk_add_f32 v[32:33], v[32:33], v[40:41]")
    A.e("v_pk_add_f32 v[34:35], v[34:35], v[42:43]")
    A.e("v_cvt_pk_bf16_f32 v36, v32, v33")
    A.e("v_cvt_pk_bf16_f32 v37, v34, v35")
    A.e("buffer_store_dwordx2 v[36:37], v10, s[8:11], s34 offen")
    if cfg.get("signal"): cfg["signal"](A, L)
    A.e("s_barrier")
    next_seg(A, 26, cfg)
    A.e("s_cmp_lt_u32 s26, 64")
    A.e(f"s_cbranch_scc1 {L}_loop")
    A.e("s_waitcnt vmcnt(0)")

SPIN_W = 1500000
def make_wait(voff, nlanes, shift=0, vtmp=126, bar=False, sleep=4):
    def w(A, sreg):
        lab = A.new_label("Lw")
        if bar:
            A.e("s_cmp_lg_u32 s25, 0")
            A.e(f"s_cbranch_scc1 {lab}_ok")
        if shift: A.e(f"s_lshr_b32 s60, s{sreg}, {shift}")
        else: A.e(f"s_mov_b32 s60, s{sreg}")
        A.e("s_lshl_b32 s60, s60, 11")
        A.e(f"s_add_u32 s60, s60, {hex(WS_FLAG)}")
        A.e("s_mov_b32 s61, 0")
        A.label(lab)
        A.e(f"buffer_load_dword v{vtmp}, v{voff}, {WSRD}, s60 offen sc1")
        A.e("s_add_u32 s61, s61, 1")
        A.e(f"s_cmp_gt_u32 s61, {SPIN_W}")
        A.e("s_cbranch_scc1 L_fail")
        A.e("s_waitcnt vmcnt(0)")
        A.e(f"v_cmp_eq_u32 vcc, 0, v{vtmp}")
        mask = (1 << nlanes) - 1
        A.e(f"s_and_b32 vcc_lo, vcc_lo, {hex(mask)}")
        A.e(f"s_cbranch_scc0 {lab}_ok")
        A.e(f"s_sleep {sleep}")
        A.e(f"s_branch {lab}")
        A.label(f"{lab}_ok")
        if bar: A.e("s_barrier")
    return w

def make_signal(seg_sreg, word_sreg, word_base, shift=0, vzero=127, barrier_after=False):
    def sig(A, L):
        lab = A.new_label("Ls")
        A.e("s_waitcnt vmcnt(0)")
        A.e("s_barrier")
        A.e("s_cmp_lg_u32 s25, 0")
        A.e(f"s_cbranch_scc1 {lab}")
        if shift: A.e(f"s_lshr_b32 s60, s{seg_sreg}, {shift}")
        else: A.e(f"s_mov_b32 s60, s{seg_sreg}")
        A.e("s_lshl_b32 s60, s60, 11")
        A.e(f"s_lshl_b32 s61, s{word_sreg}, 2")
        A.e("s_add_u32 s60, s60, s61")
        A.e(f"s_add_u32 s60, s60, {hex(WS_FLAG + 4*word_base)}")
        A.e(f"v_mov_b32 v{vzero}, 0")
        A.e(f"v_mov_b32 v{vzero-2}, 1")
        A.e("s_mov_b64 exec, 1")
        A.e(f"buffer_store_dword v{vzero-2}, v{vzero}, {WSRD}, s60 offen sc1")
        A.e("s_mov_b64 exec, -1")
        A.label(lab)
    return sig

def trace(A, slot, seg_sreg, cond_sreg=None):
    lab = A.new_label("Lt")
    A.e("s_cmp_lg_u32 s25, 0")
    A.e(f"s_cbranch_scc1 {lab}")
    A.e("s_memrealtime s[60:61]")
    A.e(f"s_and_b32 s58, s{seg_sreg}, 511")
    A.e(f"s_lshl_b32 s58, s58, 2")
    A.e(f"s_lshl_b32 s64, s63, 11")
    A.e(f"s_add_u32 s58, s58, s64")
    A.e(f"s_add_u32 s58, s58, {hex(WS_TRACE + slot * 0x20000)}")
    A.e("s_waitcnt lgkmcnt(0)")
    A.e("v_mov_b32 v125, s60")
    A.e("v_mov_b32 v127, 0")
    A.e("s_mov_b64 exec, 1")
    A.e(f"buffer_store_dword v125, v127, {WSRD}, s58 offen")
    A.e("s_mov_b64 exec, -1")
    A.label(lab)

def traced_wait(w, slot, on):
    if not on: return w
    def f(A, sreg):
        w(A, sreg)
        trace(A, slot, sreg)
    return f

def make_try(voff, nlanes, vtmp=126):
    def t(A, sreg):
        A.e(f"s_lshl_b32 s60, s{sreg}, 11")
        A.e(f"s_add_u32 s60, s60, {hex(WS_FLAG)}")
        A.e(f"buffer_load_dword v{vtmp}, v{voff}, {WSRD}, s60 offen sc1")
        A.e("s_waitcnt vmcnt(0)")
        A.e(f"v_cmp_eq_u32 vcc, 0, v{vtmp}")
        A.e(f"s_and_b32 vcc_lo, vcc_lo, {hex((1 << nlanes) - 1)}")
        A.e("s_cselect_b32 s61, 0, 1")
        A.e("s_cmp_eq_u32 s61, 1")
    return t

def flag_store(A, seg_expr_sreg, word_sreg, word_base, shift=0, add=0):
    lab = A.new_label("Lf")
    A.e("s_cmp_lg_u32 s25, 0")
    A.e(f"s_cbranch_scc1 {lab}")
    if shift: A.e(f"s_lshr_b32 s60, s{seg_expr_sreg}, {shift}")
    else: A.e(f"s_mov_b32 s60, s{seg_expr_sreg}")
    A.e("s_lshl_b32 s60, s60, 11")
    A.e(f"s_lshl_b32 s61, s{word_sreg}, 2")
    A.e("s_add_u32 s60, s60, s61")
    A.e(f"s_add_u32 s60, s60, {hex(WS_FLAG + 4*(word_base + add))}")
    A.e("v_mov_b32 v127, 0")
    A.e("v_mov_b32 v125, 1")
    A.e("s_mov_b64 exec, 1")
    A.e(f"buffer_store_dword v125, v127, {WSRD}, s60 offen sc1")
    A.e("s_mov_b64 exec, -1")
    A.label(lab)

def gen_proj2(A, L, cfg):
    BUF1 = 33280; OST = 66560; ORS = 272
    seg_stride = cfg["seg_stride"]; ws = cfg["wstride"]
    A.e("s_cmp_ge_u32 s26, 64")
    A.e(f"s_cbranch_scc1 {L}_exit")
    for t in range(2):
        A.e("s_lshl_b32 s29, s25, 6")
        A.e(f"s_add_u32 s29, s29, s{cfg['col'][t]}")
        A.e("s_lshl_b32 s30, s25, 15")
        load_weights_32col(A, 4 + 4 * t, 29, ws, 32, 30, 128 * t, 8)
    if cfg.get("after_weights"): cfg["after_weights"](A)
    A.e("s_barrier")
    A.e("v_lshlrev_b32 v3, 4, v2")
    A.e("v_and_b32 v4, 31, v2")
    A.e("s_movk_i32 s33, 1040")
    A.e("v_mul_lo_u32 v4, v4, s33")
    A.e("v_lshrrev_b32 v5, 5, v2")
    A.e("v_lshl_add_u32 v4, v5, 4, v4")
    A.e("v_and_b32 v6, 31, v2")
    A.e(f"s_movk_i32 s33, {ORS}")
    A.e("v_mul_lo_u32 v6, v6, s33")
    A.e("v_lshl_add_u32 v6, v5, 3, v6")
    A.e("s_lshl_b32 s33, s25, 6")
    A.e(f"s_add_u32 s33, s33, {OST}")
    A.e("v_add_u32 v6, s33, v6")
    A.e("v_lshrrev_b32 v7, 4, v2")
    A.e("s_lshl_b32 s33, s25, 3")
    A.e("v_add_u32 v7, s33, v7")
    A.e("v_and_b32 v8, 15, v2")
    A.e(f"s_movk_i32 s33, {ORS}")
    A.e("v_mul_lo_u32 v9, v7, s33")
    A.e("v_lshl_add_u32 v9, v8, 4, v9")
    A.e(f"v_add_u32 v9, {OST}, v9")
    A.e(f"s_mov_b32 s33, {cfg['out_row']}")
    A.e("v_mul_lo_u32 v10, v7, s33")
    A.e("v_lshl_add_u32 v10, v8, 4, v10")
    def dma(buf_s):
        A.e("s_lshl_b32 s33, s31, 5")
        A.e("s_lshl_b32 s34, s25, 3")
        A.e("s_add_u32 s33, s33, s34")
        A.e("s_lshl_b32 s33, s33, 10")
        A.e(f"s_add_u32 s33, s33, {hex(cfg['a_base'])}")
        A.e("s_mul_i32 s34, s34, 1040")
        A.e(f"s_add_u32 s34, s34, s{buf_s}")
        for r in range(8):
            A.e(f"s_add_u32 m0, s34, {r*1040}")
            if r: A.e("s_add_u32 s33, s33, 1024")
            else: A.e("s_nop 0")
            A.e(f"buffer_load_dwordx4 v3, {WSRD}, s33 offen sc1 lds")
    A.e("s_mov_b32 s35, 0")
    A.e("s_mov_b32 s31, s26")
    A.e("s_mov_b32 s37, -1")
    dma(35)
    A.e("s_waitcnt vmcnt(0)")
    A.label(f"{L}_loop")
    A.e("s_waitcnt vmcnt(4)")
    A.e("s_barrier")
    A.e(f"s_xor_b32 s36, s35, {BUF1}")
    A.e(f"s_add_u32 s31, s26, {seg_stride}")
    A.e("s_min_u32 s31, s31, 63")
    dma(36)
    A.e("v_add_u32 v11, s35, v4")
    for ks in range(4):
        A.e(f"ds_read_b128 v[{32+4*ks}:{35+4*ks}], v11 offset:{ks*32}")
    for ks in range(32):
        A.e(f"s_waitcnt lgkmcnt({min(3, 31-ks)})")
        b = 32 + 4 * (ks % 5)
        for t in range(2):
            c = "0" if ks == 0 else f"v[{64+16*t}:{79+16*t}]"
            A.e(f"v_mfma_f32_32x32x16_bf16 v[{64+16*t}:{79+16*t}], a[{128*t+4*ks}:{128*t+4*ks+3}], v[{b}:{b+3}], {c}")
            if t == 0 and ks + 4 < 32:
                b2 = 32 + 4 * ((ks + 4) % 5)
                A.e(f"ds_read_b128 v[{b2}:{b2+3}], v11 offset:{(ks+4)*32}")
    A.e("s_waitcnt vmcnt(8)")
    A.e("s_nop 7")
    A.e("s_nop 3")
    for t in range(2):
        pk = 96 + 8 * t
        for j in range(8):
            A.e(f"v_cvt_pk_bf16_f32 v{pk+j}, v{64+16*t+2*j}, v{65+16*t+2*j}")
        for q in range(4):
            A.e(f"ds_write_b64 v6, v[{pk+2*q}:{pk+1+2*q}] offset:{16*q + t*32*ORS}")
    A.e("s_waitcnt lgkmcnt(0)")
    A.e("s_barrier")
    lab = A.new_label("Lp")
    A.e("s_cmp_eq_u32 s37, -1")
    A.e(f"s_cbranch_scc1 {lab}")
    for t in range(2): flag_store(A, 37, cfg['word'][t], cfg['wbase'][t])
    if cfg.get("trace"): cfg["trace"](A, 37)
    A.label(lab)
    for t in range(2):
        A.e(f"ds_read_b128 v[{32+8*t}:{35+8*t}], v9 offset:{t*32*ORS}")
        A.e(f"ds_read_b128 v[{36+8*t}:{39+8*t}], v9 offset:{4*ORS + t*32*ORS}")
    A.e("s_waitcnt lgkmcnt(0)")
    for t in range(2):
        A.e(f"s_mul_i32 s33, s26, {cfg['out_seg']}")
        A.e(f"s_add_u32 s33, s33, s{cfg['out'][t]}")
        A.e(f"s_add_u32 s34, s33, {4*cfg['out_row']}")
        A.e(f"buffer_store_dwordx4 v[{32+8*t}:{35+8*t}], v10, {WSRD}, s33 offen sc1")
        A.e(f"buffer_store_dwordx4 v[{36+8*t}:{39+8*t}], v10, {WSRD}, s34 offen sc1")
    A.e("s_mov_b32 s37, s26")
    A.e("s_mov_b32 s35, s36")
    A.e(f"s_add_u32 s26, s26, {seg_stride}")
    A.e("s_cmp_lt_u32 s26, 64")
    A.e(f"s_cbranch_scc1 {L}_loop")
    A.e("s_waitcnt vmcnt(0)")
    A.e("s_barrier")
    for t in range(2): flag_store(A, 37, cfg['word'][t], cfg['wbase'][t])
    A.e("s_waitcnt vmcnt(0)")

INIT_LN_WGS = 128
INIT_MISC0 = 128
INIT_TOTAL = 192

def gen_init_inline(A):
    A.e("s_add_u32 s58, s62, 176")
    A.e("s_cmp_ge_u32 s58, 224")
    A.e("s_cselect_b32 s27, 224, 0")
    A.e("s_sub_u32 s58, s58, s27")
    A.e(f"s_cmp_ge_u32 s58, {INIT_TOTAL}")
    A.e("s_cbranch_scc1 LI_done")
    A.e(f"s_load_dwordx2 s[4:5], s[0:1], {KA_X}")
    A.e(f"s_load_dwordx2 s[8:9], s[0:1], {KA_MEM0}")
    A.e("s_waitcnt lgkmcnt(0)")
    finish_srd(A, 4, 0x200000); finish_srd(A, 8, 0x2000)
    A.e("v_lshlrev_b32 v3, 4, v2                 ; lane*16")
    A.e("v_lshlrev_b32 v4, 4, v0                 ; tid*16")
    A.e(f"s_cmp_ge_u32 s58, {INIT_LN_WGS}")
    A.e("s_cbranch_scc1 LI_misc")
    A.e("s_lshl_b32 s27, s58, 4")
    A.e("s_lshl_b32 s28, s25, 2")
    A.e("s_add_u32 s27, s27, s28")
    A.e("s_lshl_b32 s27, s27, 10")
    for k in range(4):
        A.e(f"buffer_load_dwordx4 v[{8+4*k}:{11+4*k}], v3, s[4:7], s27 offen offset:{1024*k}")
    A.e(f"s_add_u32 s27, s27, {hex(WS_XN)}")
    for k in range(4):
        A.e(f"s_waitcnt vmcnt({3})" if k == 0 else f"s_waitcnt vmcnt({3})")
        unpack8(A, 8 + 4 * k, 32)
        layernorm8(A, 32, 28, 40)
        A.e(f"buffer_store_dwordx4 v[28:31], v3, {WSRD}, s27 offen offset:{1024*k} sc1")
        A.e("s_nop 1")
    A.e("s_branch LI_signal")
    A.label("LI_misc")
    A.e(f"s_sub_u32 s27, s58, {INIT_MISC0}            ; 0..63")
    for r in range(16, 20): A.e(f"v_mov_b32 v{r}, 0")
    for r in range(20, 24): A.e(f"v_mov_b32 v{r}, -1")
    A.e("s_lshl_b32 s28, s27, 13")
    A.e(f"s_add_u32 s29, s28, {hex(WS_P)}")
    A.e(f"buffer_store_dwordx4 v[20:23], v4, {WSRD}, s29 offen sc1")
    A.e("s_add_u32 s29, s29, 4096")
    A.e(f"buffer_store_dwordx4 v[20:23], v4, {WSRD}, s29 offen sc1")
    A.e("s_lshl_b32 s28, s27, 11")
    A.e(f"s_add_u32 s29, s28, {hex(WS_FLAG)}")
    A.e("v_cmp_gt_u32 vcc, 128, v0")
    A.e("s_and_saveexec_b64 s[30:31], vcc")
    A.e("s_cbranch_execz LI_nf")
    A.e(f"buffer_store_dwordx4 v[16:19], v4, {WSRD}, s29 offen sc1")
    A.label("LI_nf")
    A.e("s_mov_b64 exec, s[30:31]")
    A.e("s_cmp_lg_u32 s27, 0")
    A.e("s_cbranch_scc1 LI_nopz")
    A.e(f"s_mov_b32 s29, {hex(WS_MEM + 8192)}")
    A.e(f"buffer_store_dwordx4 v[20:23], v4, {WSRD}, s29 offen sc1")
    A.e(f"s_mov_b32 s29, {hex(WS_MEM + 8192 + 4096)}")
    A.e(f"buffer_store_dwordx4 v[20:23], v4, {WSRD}, s29 offen sc1")
    A.label("LI_nopz")
    A.e("s_cmp_lg_u32 s27, 1")
    A.e("s_cbranch_scc1 LI_signal")
    A.e("v_and_b32 v5, 15, v0                    ; rho")
    A.e("v_lshrrev_b32 v6, 2, v5")
    A.e("v_lshlrev_b32 v6, 1, v6")
    A.e("v_and_b32 v7, 1, v5")
    A.e("v_add_u32 v6, v6, v7                    ; i")
    A.e("v_lshlrev_b32 v6, 10, v6")
    A.e("v_bfe_u32 v7, v5, 1, 1                  ; hf")
    A.e("v_lshl_add_u32 v6, v7, 6, v6")
    A.e("v_bfe_u32 v7, v0, 4, 2                  ; ga")
    A.e("v_lshl_add_u32 v6, v7, 3, v6")
    A.e("v_lshrrev_b32 v7, 6, v0                 ; c (0..3)")
    A.e("v_lshl_add_u32 v6, v7, 7, v6")
    A.e("buffer_load_dwordx2 v[20:21], v6, s[8:11], 0 offen")
    A.e("buffer_load_dwordx2 v[22:23], v6, s[8:11], 0 offen offset:32")
    A.e("buffer_load_dwordx2 v[24:25], v6, s[8:11], 0 offen offset:512")
    A.e("buffer_load_dwordx2 v[26:27], v6, s[8:11], 0 offen offset:544")
    A.e("s_waitcnt vmcnt(0)")
    A.e(f"s_mov_b32 s29, {hex(WS_MEM)}")
    A.e(f"buffer_store_dwordx4 v[20:23], v4, {WSRD}, s29 offen sc1")
    A.e(f"s_mov_b32 s29, {hex(WS_MEM + 4096)}")
    A.e(f"buffer_store_dwordx4 v[24:27], v4, {WSRD}, s29 offen sc1")
    A.label("LI_signal")
    A.e("s_waitcnt vmcnt(0)")
    A.e("s_barrier")
    A.e("s_cmp_lg_u32 s25, 0")
    A.e("s_cbranch_scc1 LI_done")
    A.e(f"s_load_dwordx2 s[36:37], s[0:1], {KA_DBG}")
    A.e("s_waitcnt lgkmcnt(0)")
    A.e("v_mov_b32 v5, 0")
    A.e("v_mov_b32 v6, 1")
    A.e("s_mov_b64 exec, 1")
    A.e("global_atomic_add v5, v6, s[36:37] offset:8")
    A.e("s_mov_b64 exec, -1")
    A.e("s_waitcnt vmcnt(0)")
    A.label("LI_done")

def wait_init(A):
    lab = A.new_label("Lwi")
    A.e(f"s_load_dwordx2 s[64:65], s[0:1], {KA_DBG}")
    A.e("v_mov_b32 v125, 0")
    A.e("s_mov_b32 s61, 0")
    A.e("s_waitcnt lgkmcnt(0)")
    A.label(lab)
    A.e("global_load_dword v126, v125, s[64:65] offset:8 sc1")
    A.e("s_add_u32 s61, s61, 1")
    A.e(f"s_cmp_gt_u32 s61, {SPIN_W}")
    A.e("s_cbranch_scc1 L_fail")
    A.e("s_waitcnt vmcnt(0)")
    A.e(f"v_cmp_gt_u32 vcc, {INIT_TOTAL}, v126")
    A.e(f"s_cbranch_vccz {lab}_ok")
    A.e("s_sleep 4")
    A.e(f"s_branch {lab}")
    A.label(f"{lab}_ok")
```

```python
import sys
from asm import *
from layout import *
import roles, chain3, chain5, chain6
from main import header, kstart, kdesc, role_select

def bulk_kernel(A, name, L, pre, body, vgpr=512, accum=256):
    kstart(A, name)
    pre()
    body()
    A.label(f"{L}_exit")
    A.e("s_endpgm")

def common_pre(A, L, nwg, srds):
    A.e(f"s_cmp_ge_u32 s2, {nwg}")
    A.e(f"s_cbranch_scc1 {L}_exit")
    for s, ka, n in srds: roles.load_srd(A, s, ka, n)
    roles.load_srd(A, roles.S_WS, KA_WS, 0)
    roles.wave_lane(A)
    A.e("s_waitcnt lgkmcnt(0)")
    for s, ka, n in srds: roles.finish_srd(A, s, n)
    roles.finish_srd(A, roles.S_WS, WS_SIZE)

def build_bulk(path, opts):
    A = Asm()
    launches = [
        "; @launch kernel=k0_init_kernel grid=(256,1,1) block=(256,1,1) lds=0",
        "; @launch kernel=k1_proj_kernel grid=(192,1,1) block=(256,1,1) lds=131072",
        "; @launch kernel=k2_chain_kernel grid=(256,1,1) block=(256,1,1) lds=163840",
        "; @launch kernel=k3_attn_kernel grid=(256,1,1) block=(256,1,1) lds=24576",
        "; @launch kernel=k4_wo_kernel grid=(256,1,1) block=(256,1,1) lds=163840",
        "; @launch kernel=k5_red_kernel grid=(256,1,1) block=(256,1,1) lds=0",
        "; @launch kernel=k6_ffn1_kernel grid=(224,1,1) block=(256,1,1) lds=131072",
        "; @launch kernel=k7_ffn2_kernel grid=(256,1,1) block=(256,1,1) lds=163840",
    ]
    header(A, launches)
    descs = []
    kstart(A, "k0_init_kernel"); roles.gen_init(A); descs.append(("k0_init_kernel", 64, 64, 64))
    kstart(A, "k1_proj_kernel")
    L = "L1"
    A.e("s_cmp_ge_u32 s2, 192"); A.e(f"s_cbranch_scc1 {L}_exit")
    A.e("s_cmp_ge_u32 s2, 96"); A.e("s_cselect_b32 s26, 1, 0"); A.e("s_mul_i32 s27, s26, 96"); A.e("s_sub_u32 s27, s2, s27")
    A.e("s_lshr_b32 s30, s27, 5                  ; matrix")
    A.e("s_lshl_b32 s31, s30, 3")
    A.e(f"s_add_u32 s31, s31, {KA_WQ}")
    A.e("s_load_dwordx2 s[4:5], s[0:1], s31")
    roles.load_srd(A, roles.S_WS, KA_WS, 0)
    roles.wave_lane(A)
    A.e("s_waitcnt lgkmcnt(0)")
    roles.finish_srd(A, 4, 0x400000); roles.finish_srd(A, roles.S_WS, WS_SIZE)
    A.e("s_and_b32 s27, s27, 31                  ; head")
    A.e("s_lshl_b32 s24, s27, 8")
    A.e(f"s_mov_b32 s28, {hex(WS_QX)}")
    A.e("s_cmp_eq_u32 s30, 1"); A.e(f"s_cselect_b32 s28, {hex(WS_KX)}, s28")
    A.e("s_cmp_eq_u32 s30, 2"); A.e(f"s_cselect_b32 s28, {hex(WS_VX)}, s28")
    A.e("s_lshl_b32 s27, s27, 13"); A.e("s_add_u32 s28, s28, s27")
    roles.gen_proj(A, L, dict(wstride=8192, a_base=WS_XN, out_seg=0x40000, out_row=256, seg_stride=2))
    A.label(f"{L}_exit"); A.e("s_endpgm"); descs.append(("k1_proj_kernel", 384, 102, 256))
    kstart(A, "k2_chain_kernel")
    role_select(A)
    chain3.gen_chain(A, opts)
    A.label("L_exit"); A.e("s_endpgm"); descs.append(("k2_chain_kernel", 512, 102, 256))
    kstart(A, "k3_attn_kernel"); L = "L3"
    common_pre(A, L, 256, [])
    A.e("s_and_b32 s24, s2, 31"); A.e("s_lshr_b32 s26, s2, 5")
    roles.gen_attn(A, L, dict(seg_stride=8))
    A.label(f"{L}_exit"); A.e("s_endpgm"); descs.append(("k3_attn_kernel", 128, 102, 128))
    kstart(A, "k4_wo_kernel"); L = "L4"
    common_pre(A, L, 256, [(4, KA_WO, 0x400000)])
    A.e("s_and_b32 s24, s2, 31"); A.e("s_lshr_b32 s26, s2, 5")
    roles.gen_wo(A, L, dict(seg_stride=8))
    A.label(f"{L}_exit"); A.e("s_endpgm"); descs.append(("k4_wo_kernel", 384, 102, 256))
    kstart(A, "k5_red_kernel"); L = "L5"
    common_pre(A, L, 256, [(4, KA_X, 0x200000)])
    A.e("s_mov_b32 s26, s2")
    roles.gen_red(A, L, dict(grp_stride=256))
    A.label(f"{L}_exit"); A.e("s_endpgm"); descs.append(("k5_red_kernel", 64, 102, 64))
    kstart(A, "k6_ffn1_kernel"); L = "L6"
    common_pre(A, L, 224, [(4, KA_W1, 512 * 3584)])
    A.e(f"s_mov_b32 s27, {hex(-(-(1 << 32) // 14))}")
    A.e("s_mul_hi_u32 s26, s2, s27"); A.e("s_mul_i32 s27, s26, 14"); A.e("s_sub_u32 s27, s2, s27")
    A.e("s_lshl_b32 s24, s27, 8")
    A.e(f"s_add_u32 s28, s24, {hex(WS_A1)}")
    roles.gen_proj(A, L, dict(wstride=3584, a_base=WS_HN, out_seg=32 * 3584, out_row=3584, seg_stride=16, relu=True))
    A.label(f"{L}_exit"); A.e("s_endpgm"); descs.append(("k6_ffn1_kernel", 384, 102, 256))
    kstart(A, "k7_ffn2_kernel"); L = "L7"
    common_pre(A, L, 256, [(4, KA_W2, 1792 * 1024), (8, KA_OUT, 0x200000)])
    A.e("s_and_b32 s24, s2, 15"); A.e("s_lshr_b32 s26, s2, 4")
    roles.gen_ffn2(A, L, dict(seg_stride=16))
    A.label(f"{L}_exit"); A.e("s_endpgm"); descs.append(("k7_ffn2_kernel", 384, 102, 256))
    for d in descs: kdesc(A, *d)
    open(path, "w").write(A.text())

def role_select_merged(A):
    A.e("s_cmp_ge_u32 s2, 256")
    A.e("s_cbranch_scc1 L_exit")
    A.e(f"s_load_dwordx2 s[36:37], s[0:1], {KA_DBG}")
    A.e("s_getreg_b32 s38, hwreg(HW_REG_XCC_ID, 0, 4)")
    A.e("s_waitcnt lgkmcnt(0)")
    A.e("v_mov_b32 v2, 1")
    A.e("v_mov_b32 v1, 0")
    A.e("v_cmp_eq_u32 vcc, 0, v0")
    A.e("s_and_saveexec_b64 s[30:31], vcc")
    A.e("s_cbranch_execz L_noat")
    A.e("s_cmp_lg_u32 s38, 0")
    A.e("s_cbranch_scc1 L_wtick")
    A.e("global_atomic_add v4, v1, v2, s[36:37] sc0")
    A.e("s_waitcnt vmcnt(0)")
    A.e("v_cmp_gt_u32 vcc, 32, v4")
    A.e("s_cbranch_vccz L_wtick")
    A.e("v_or_b32 v4, 0x1000, v4")
    A.e("s_branch L_tickdone")
    A.label("L_wtick")
    A.e("global_atomic_add v4, v1, v2, s[36:37] offset:4 sc0")
    A.e("s_waitcnt vmcnt(0)")
    A.label("L_tickdone")
    A.e("ds_write_b32 v1, v4")
    A.e("s_waitcnt lgkmcnt(0)")
    A.label("L_noat")
    A.e("s_mov_b64 exec, s[30:31]")
    A.e("s_barrier")
    A.e("v_mov_b32 v1, 0")
    A.e("ds_read_b32 v4, v1")
    A.e("s_waitcnt lgkmcnt(0)")
    A.e("s_nop 1")
    A.e("v_readfirstlane_b32 s24, v4")
    A.e("s_nop 3")
    A.e("s_barrier")
    A.e("s_bitcmp1_b32 s24, 12")
    A.e("s_cbranch_scc0 L_worker")
    A.e("s_and_b32 s24, s24, 31")

def traced(sig, slot, seg, on):
    if not on: return sig
    def f(A, L):
        if sig: sig(A, L)
        roles.trace(A, slot, seg, 63)
    return f

def build_merged(path, opts, asg):
    A = Asm()
    inl = opts.get("inline_init")
    KM = KNAME + "_kernel" if inl else "k1_main_kernel"
    if inl:
        launches = ["; @launch grid=(256,1,1) block=(256,1,1) lds=163840"]
    else:
        launches = [
            "; @launch kernel=k0_init_kernel grid=(256,1,1) block=(256,1,1) lds=0",
            "; @launch kernel=k1_main_kernel grid=(256,1,1) block=(256,1,1) lds=163840",
        ]
    header(A, launches)
    descs = []
    if not inl:
        kstart(A, "k0_init_kernel"); roles.gen_init(A); descs.append(("k0_init_kernel", 64, 64, 64))
    kstart(A, KM)
    role_select_merged(A)
    o = dict(opts); o["flags"] = True
    chain6.gen_chain(A, o)
    A.label("L_worker")
    A.e("s_mov_b32 s62, s24                      ; worker index")
    roles.load_srd(A, roles.S_WS, KA_WS, 0)
    roles.wave_lane(A)
    A.e("s_waitcnt lgkmcnt(0)")
    roles.finish_srd(A, roles.S_WS, WS_SIZE)
    AW = None
    if inl:
        roles.gen_init_inline(A)
        AW = roles.wait_init
    base = 0
    names = []
    for i, (role, cnt, kw) in enumerate(asg):
        A.e(f"s_cmp_lt_u32 s62, {base + cnt}")
        A.e(f"s_cbranch_scc1 LR{i}")
        base += cnt
    A.e("s_branch L_exit")
    base = 0
    for i, (role, cnt, kw) in enumerate(asg):
        L = f"LR{i}"
        A.label(L)
        A.e(f"s_sub_u32 s63, s62, {base}")
        base += cnt
        if role in ("kv2", "q2"):
            nt = 32 if role == "kv2" else 16
            parts = cnt // nt
            A.e(f"s_and_b32 s27, s63, {nt-1}")
            A.e(f"s_lshr_b32 s26, s63, {nt.bit_length()-1}")
            if role == "kv2":
                A.e(f"s_load_dwordx2 s[4:5], s[0:1], {KA_WK}"); A.e(f"s_load_dwordx2 s[8:9], s[0:1], {KA_WV}")
                A.e("s_waitcnt lgkmcnt(0)")
                A.e("s_lshl_b32 s40, s27, 8"); A.e("s_mov_b32 s41, s40")
                A.e("s_lshl_b32 s29, s27, 13")
                A.e(f"s_add_u32 s42, s29, {hex(WS_KX)}"); A.e(f"s_add_u32 s43, s29, {hex(WS_VX)}")
                A.e("s_lshl_b32 s44, s27, 1"); A.e("s_add_u32 s45, s44, 1")
                wb = (FL_KV, FL_KV)
            else:
                A.e(f"s_load_dwordx2 s[4:5], s[0:1], {KA_WQ}"); A.e(f"s_load_dwordx2 s[8:9], s[0:1], {KA_WQ}")
                A.e("s_waitcnt lgkmcnt(0)")
                A.e("s_lshl_b32 s44, s27, 1"); A.e("s_add_u32 s45, s44, 1")
                A.e("s_lshl_b32 s40, s44, 8"); A.e("s_lshl_b32 s41, s45, 8")
                A.e("s_lshl_b32 s42, s44, 13"); A.e(f"s_add_u32 s42, s42, {hex(WS_QX)}")
                A.e("s_lshl_b32 s43, s45, 13"); A.e(f"s_add_u32 s43, s43, {hex(WS_QX)}")
                wb = (FL_Q, FL_Q)
            roles.finish_srd(A, 4, 0x400000); roles.finish_srd(A, 8, 0x400000)
            tr = (lambda A_, sreg, _slot=(1 if role == "kv2" else 2): roles.trace(A_, _slot, sreg, 63)) if opts.get("trace") else None
            roles.gen_proj2(A, L, dict(wstride=8192, a_base=WS_XN, out_seg=0x40000, out_row=256, seg_stride=parts,
                                       col=(40, 41), out=(42, 43), word=(44, 45), wbase=wb, trace=tr, after_weights=AW))
        elif role == "attn":
            parts = cnt // 32
            A.e("s_and_b32 s24, s63, 31"); A.e("s_lshr_b32 s26, s63, 5")
            A.e("s_lshl_b32 s33, s24, 3")
            A.e("v_lshlrev_b32 v124, 2, v2")
            A.e("v_add_u32 v124, s33, v124")
            A.e("s_lshl_b32 s33, s24, 2")
            A.e(f"s_add_u32 s33, s33, {4*FL_Q}")
            A.e("v_mov_b32 v123, s33")
            A.e("v_cmp_eq_u32 vcc, 2, v2")
            A.e("s_nop 1")
            A.e("v_cndmask_b32 v124, v124, v123, vcc")
            A.e("s_lshl_b32 s33, s24, 4")
            A.e(f"s_add_u32 s33, s33, {4*FL_KM}")
            A.e("v_lshlrev_b32 v123, 2, v2")
            A.e("v_add_u32 v123, s33, v123")
            A.e("s_mov_b32 s59, s24")
            roles.gen_attn2(A, L, dict(seg_stride=parts, after_weights=AW, wait_qkv=roles.make_wait(124, 3, bar=True), wait_km=roles.traced_wait(roles.make_wait(123, 4, bar=True), 8, opts.get('trace')),
                                       signal=traced(roles.make_signal(26, 59, FL_O), 3, 26, opts.get('trace'))))
        elif role == "wo":
            parts = cnt // 32
            A.e("s_lshr_b32 s26, s63, 5")
            A.label("L_wo_entry")
            A.e(f"s_load_dwordx2 s[4:5], s[0:1], {KA_WO}"); A.e("s_waitcnt lgkmcnt(0)")
            roles.finish_srd(A, 4, 0x400000)
            A.e("s_and_b32 s24, s63, 31")
            A.e("s_lshr_b32 s33, s24, 3"); A.e("s_lshl_b32 s33, s33, 5")
            A.e(f"s_add_u32 s33, s33, {4*FL_O}")
            A.e("v_lshlrev_b32 v124, 2, v2"); A.e("v_add_u32 v124, s33, v124")
            A.e("s_mov_b32 s59, s24")
            roles.gen_wo(A, L, dict(seg_stride=parts, after_weights=AW, split=opts.get("split"), wait_in=roles.traced_wait(roles.make_wait(124, 8, sleep=8), 9, opts.get('trace')), try_in=roles.make_try(124, 8),
                                    signal=traced(roles.make_signal(26, 59, FL_P), 4, 26, opts.get('trace'))))
        elif role == "red":
            A.e(f"s_load_dwordx2 s[4:5], s[0:1], {KA_X}"); A.e("s_waitcnt lgkmcnt(0)")
            roles.finish_srd(A, 4, 0x200000)
            A.e("s_mov_b32 s26, s63")
            A.e("v_lshlrev_b32 v124, 2, v2"); A.e(f"v_add_u32 v124, {4*FL_P}, v124")
            def sig(A, L, _s=roles.make_signal(26, 59, FL_H, shift=3)):
                A.e("s_and_b32 s59, s26, 7")
                _s(A, L)
            roles.gen_red(A, L, dict(grp_stride=cnt, after_weights=AW, wait_in=roles.traced_wait(roles.make_wait(124, 32, shift=3, bar=True), 10, opts.get('trace')), signal=traced(sig, 5, 26, opts.get('trace'))))
        elif role == "ffn1":
            parts = cnt // 14
            A.e(f"s_load_dwordx2 s[4:5], s[0:1], {KA_W1}"); A.e("s_waitcnt lgkmcnt(0)")
            roles.finish_srd(A, 4, 512 * 3584)
            A.e(f"s_mov_b32 s27, {hex(-(-(1 << 32) // 14))}")
            A.e("s_mul_hi_u32 s26, s63, s27"); A.e("s_mul_i32 s27, s26, 14"); A.e("s_sub_u32 s27, s63, s27")
            A.e("s_lshl_b32 s24, s27, 8")
            A.e(f"s_add_u32 s28, s24, {hex(WS_A1)}")
            A.e("s_mov_b32 s59, s27")
            A.e("v_lshlrev_b32 v124, 2, v2"); A.e(f"v_add_u32 v124, {4*FL_H}, v124")
            roles.gen_proj(A, L, dict(wstride=3584, a_base=WS_HN, out_seg=32 * 3584, out_row=3584, seg_stride=parts, relu=True, after_weights=AW,
                                      wait_in=roles.traced_wait(roles.make_wait(124, 8, sleep=8), 11, opts.get('trace')), try_in=roles.make_try(124, 8), signal=traced(roles.make_signal(26, 59, FL_A1), 6, 26, opts.get('trace'))))
        elif role == "ffn2":
            parts = cnt // 16
            A.e("s_lshr_b32 s26, s63, 4")
            A.label("L_ffn2_entry")
            A.e(f"s_load_dwordx2 s[4:5], s[0:1], {KA_W2}"); A.e(f"s_load_dwordx2 s[8:9], s[0:1], {KA_OUT}"); A.e("s_waitcnt lgkmcnt(0)")
            roles.finish_srd(A, 4, 1792 * 1024); roles.finish_srd(A, 8, 0x200000)
            A.e("s_and_b32 s24, s63, 15")
            A.e("v_lshlrev_b32 v124, 2, v2"); A.e(f"v_add_u32 v124, {4*FL_A1}, v124")
            roles.gen_ffn2(A, L, dict(seg_stride=parts, after_weights=AW, split=opts.get("split"), wait_in=roles.traced_wait(roles.make_wait(124, 14, bar=True), 12, opts.get('trace')), signal=traced(None, 7, 26, True) if opts.get('trace') else None))
        A.label(f"{L}_exit")
        if role == "kv2" and opts.get("split"):
            A.e("s_barrier")
            A.e(f"s_mov_b32 s26, {opts['split'] + 1}")
            A.e("s_branch L_wo_entry")
        elif role == "q2" and opts.get("split"):
            A.e("s_barrier")
            A.e(f"s_mov_b32 s26, {opts['split'] + 1}")
            A.e("s_branch L_ffn2_entry")
        else:
            A.e("s_branch L_exit")
    A.label("L_exit"); A.e("s_endpgm"); descs.append((KM, 512, 102, 256))
    for d in descs: kdesc(A, *d)
    open(path, "w").write(A.text())

ASG1 = [("kv2", 32, {}), ("q2", 16, {}), ("attn", 64, {}), ("wo", 32, {}), ("red", 16, {}), ("ffn1", 42, {}), ("ffn2", 16, {})]

if __name__ == "__main__":
    base = dict(split=44, inline_init=True)
    build_merged("merged.s", dict(base), ASG1)
    build_merged("merged_trace.s", dict(base, trace=True), ASG1)
    build_merged("merged_total.s", dict(base, total=True, rep=7), ASG1)
```
